```python
import torch

def _softmax(x, axis=-1):
    return torch.softmax(x, dim=axis)
def _gelu(x):
    return torch.nn.functional.gelu(x, approximate="tanh")
def _silu(x):
    return torch.nn.functional.silu(x)
def _sigmoid(x):
    return torch.sigmoid(x)
def _layernorm(x, axis=-1, eps=1e-5):
    m = x.mean(dim=axis, keepdim=True)
    v = x.var(dim=axis, keepdim=True, unbiased=False)
    return (x - m) / torch.sqrt(v + eps)
def _scatter_add(tgt, idx, src, axis=0):
    return tgt.clone().index_add_(axis, idx, src)
def _segment_sum(src, seg, n):
    out = torch.zeros((n,) + src.shape[1:], dtype=src.dtype)
    return out.index_add_(0, seg, src)
def _pad(x, pw):
    flat = tuple(v for pair in reversed(pw) for v in pair)
    return torch.nn.functional.pad(x, flat)

kernel_name = 'standalone__mha_block_cached__near_ridge'

def setup_inputs():

    _w = (lambda a: (lambda t: t.to(torch.bfloat16) if t.is_floating_point() else t)(torch.as_tensor(a)))
    B, Sq, D = 8, 80, 1024
    H, Sk, Dh = 32, 80, 128
    return {
        "x": _w((lambda *s: torch.randn(*s, dtype=torch.bfloat16) * 0.8)(B, Sq, D)),
        "k_cache": _w((lambda *s: torch.randn(*s, dtype=torch.bfloat16) * 0.8)(B, H, Sk, Dh)),
        "v_cache": _w((lambda *s: torch.randn(*s, dtype=torch.bfloat16) * 0.05)(B, H, Sk, Dh)),
        "wq": _w((lambda *s: torch.randn(*s, dtype=torch.bfloat16) * 0.8)(D, H * Dh) * (D ** -0.5)),
        "wo": _w((lambda *s: torch.randn(*s, dtype=torch.bfloat16) * 0.05)(H * Dh, D) * ((H * Dh) ** -0.5)),
    }

def reference(x, k_cache, v_cache, wq, wo):
    B, Sq, D = x.shape
    H, Dh = 32, 128
    q = (lambda x, *d: x.permute(*d))((x @ wq).reshape(B, Sq, H, Dh), 0, 2, 1, 3)
    scores = torch.einsum("bhqd,bhkd->bhqk", q, k_cache) * (Dh ** -0.5)
    p = _softmax(scores, axis=-1)
    o = torch.einsum("bhqk,bhkd->bhqd", p, v_cache)
    return (lambda x, *d: x.permute(*d))(o, 0, 2, 1, 3).reshape(B, Sq, H * Dh) @ wo
```

```python
import re


def v(n, cnt=1):
    return f"v{n}" if cnt == 1 else f"v[{n}:{n + cnt - 1}]"


def a(n, cnt=1):
    return f"a{n}" if cnt == 1 else f"a[{n}:{n + cnt - 1}]"


def s(n, cnt=1):
    return f"s{n}" if cnt == 1 else f"s[{n}:{n + cnt - 1}]"


class R:
    def __init__(self, f, n, cnt=1):
        self.f, self.n, self.cnt = f, n, cnt

    def __getitem__(self, i):
        if isinstance(i, slice):
            assert i.stop <= self.cnt
            return R(self.f, self.n + i.start, i.stop - i.start)
        assert 0 <= i < self.cnt, (i, self.cnt)
        return R(self.f, self.n + i, 1)

    def sub(self, off, cnt):
        assert off + cnt <= self.cnt, (off, cnt, self.cnt)
        return R(self.f, self.n + off, cnt)

    def __str__(self):
        return f"{self.f}{self.n}" if self.cnt == 1 else f"{self.f}[{self.n}:{self.n + self.cnt - 1}]"

    __repr__ = __str__


class Alloc:
    def __init__(self, f, start, limit):
        self.f, self.cur, self.limit, self.hi = f, start, limit, start

    def get(self, cnt=1, align=1):
        if cnt >= 2 and align == 1:
            align = 2
        self.cur = (self.cur + align - 1) // align * align
        r = R(self.f, self.cur, cnt)
        self.cur += cnt
        assert self.cur <= self.limit, f"out of {self.f} registers: {self.cur} > {self.limit}"
        self.hi = max(self.hi, self.cur)
        return r


class Asm:
    def __init__(self):
        self.lines = []

    def __call__(self, text):
        for ln in str(text).split("\n"):
            ln = ln.strip()
            if ln:
                self.lines.append(ln)

    def label(self, name):
        self.lines.append(name + ":")

    def comment(self, text):
        self.lines.append("; " + text)

    def text(self):
        out = []
        for ln in self.lines:
            if ln.endswith(":") or ln.startswith(".") or ln.startswith(";"):
                out.append(ln)
            else:
                out.append("    " + ln)
        return "\n".join(out) + "\n"


def interleave(main, fill, start=0, per=1, every=1):
    out = []
    fi = 0
    for i, m in enumerate(main):
        out.append(m)
        if i >= start and (i - start) % every == 0:
            for _ in range(per):
                if fi < len(fill):
                    out.append(fill[fi])
                    fi += 1
    out.extend(fill[fi:])
    return out


def spread(main, fill, lo=0, hi=None):
    hi = len(main) if hi is None else hi
    n = hi - lo
    slots = [[] for _ in main]
    for j, f in enumerate(fill):
        slots[lo + (j * n) // max(len(fill), 1)].append(f)
    out = []
    for m, sl in zip(main, slots):
        out.append(m)
        out.extend(sl)
    return out


def flat(items):
    out = []
    for it in items:
        if isinstance(it, (list, tuple)):
            out.extend(flat(it))
        else:
            out.append(it)
    return out


_REG = re.compile(r"^-?(?:abs\()?([vas])(?:(\d+)|\[(\d+):(\d+)\])\)?$")
TRANS = ("v_exp_f32", "v_log_f32", "v_rcp_f32", "v_rsq_f32", "v_sqrt_f32", "v_sin_f32", "v_cos_f32")


def regs_of(op):
    op = op.strip()
    if op in ("vcc", "exec", "m0", "scc"):
        return {(op, 0)}
    if op in ("vcc_lo", "vcc_hi"):
        return {("vcc", 0)}
    m = _REG.match(op)
    if not m:
        return set()
    f = m.group(1)
    if m.group(2) is not None:
        return {(f, int(m.group(2)))}
    return {(f, i) for i in range(int(m.group(3)), int(m.group(4)) + 1)}


class Ins:
    def __init__(self, text):
        self.text = text
        body = text.split(";")[0].strip()
        parts = body.split(None, 1)
        self.op = parts[0]
        for suf in ("_e32", "_e64", "_dpp", "_sdwa"):
            if self.op.endswith(suf):
                self.op = self.op[: -len(suf)]
        rest = parts[1] if len(parts) > 1 else ""
        ops = [o.strip() for o in rest.split(",")] if rest else []
        mods = ""
        if ops:
            last = ops[-1].split(None, 1)
            ops[-1] = last[0]
            mods = last[1] if len(last) > 1 else ""
        self.ops, self.mods = ops, mods
        op = self.op
        self.is_mfma = op.startswith("v_mfma")
        self.is_valu = op.startswith("v_") and not self.is_mfma
        self.is_salu = op.startswith("s_") and not op.startswith(("s_load", "s_buffer_load", "s_waitcnt", "s_nop", "s_barrier", "s_cbranch", "s_branch", "s_endpgm", "s_memtime", "s_memrealtime", "s_sleep", "s_setprio"))
        self.is_smem = op.startswith(("s_load", "s_buffer_load", "s_memtime", "s_memrealtime"))
        self.is_ds = op.startswith("ds_")
        self.is_vmem = op.startswith(("buffer_", "global_"))
        self.is_dma = self.is_vmem and (" lds" in " " + mods or "_lds_" in op)
        self.is_store = self.is_vmem and "store" in op
        self.is_dpp = "row_" in mods or "quad_perm" in mods
        rs = [regs_of(o) for o in ops]
        w, r = set(), set()
        if self.is_mfma:
            w = rs[0]
            self.A, self.B, self.C = rs[1], rs[2], rs[3]
            r = rs[1] | rs[2] | rs[3]
            self.passes = 8 if "32x32" in op else 4
        elif self.is_dma or self.is_store or op.startswith(("ds_write", "s_cmp", "s_bitcmp", "buffer_inv", "buffer_wbl2")):
            for x in rs:
                r |= x
            if self.is_dma:
                r |= {("m0", 0)}
        elif "atomic" in op:
            for x in rs:
                r |= x
            if "sc0" in mods:
                w = rs[0]
        elif op.startswith("v_permlane") and "swap" in op:
            w = rs[0] | rs[1]
            r = set(w)
        elif op.startswith(("s_waitcnt", "s_nop", "s_barrier", "s_branch", "s_endpgm", "s_sleep", "s_setprio")):
            pass
        elif op.startswith("s_cbranch"):
            if "vcc" in op:
                r = {("vcc", 0)}
        else:
            if rs:
                w = set(rs[0])
                for x in rs[1:]:
                    r |= x
            if op.startswith(("v_add_co", "v_sub_co", "v_addc_co", "v_subb_co")):
                w |= rs[1]
                r = set().union(*rs[2:])
            if op.startswith(("v_fmac", "v_pk_fmac", "s_addk", "s_mulk", "v_writelane", "s_bitset")):
                r |= rs[0]
            if "saveexec" in op:
                w |= {("exec", 0)}
        self.w, self.r = w, r
        self.store_data = rs[0] if (self.is_store and op.startswith("buffer_")) else (rs[1] if self.is_store else set())
        self.wide_store = self.is_store and ("x4" in op or "x3" in op)

    def states(self):
        if self.op == "s_nop":
            return int(self.ops[0], 0) + 1
        return 1


def vec(rs):
    return {x for x in rs if x[0] in "va"}


def sca(rs):
    return {x for x in rs if x[0] in ("s", "vcc")}


def check(lines, name="", verbose=True):
    ins = [Ins(l) for l in lines if l and not l.endswith(":") and not l.startswith((".", ";"))]
    probs = []
    vm, lg = [], []
    for i, c in enumerate(ins):
        if c.op == "s_waitcnt":
            t = " ".join(c.ops) + " " + c.mods
            m = re.search(r"vmcnt\((\d+)\)", t)
            if m:
                n = int(m.group(1))
                assert n <= 63
                vm = vm[len(vm) - n:] if n < len(vm) and n > 0 else ([] if n == 0 else vm)
            m = re.search(r"lgkmcnt\((\d+)\)", t)
            if m:
                n = int(m.group(1))
                assert n <= 15
                if n > 0 and any(k == "smem" for k, _, _ in lg):
                    probs.append(f"[{i}] counted lgkmcnt with SMEM outstanding: {c.text}")
                lg = lg[len(lg) - n:] if n < len(lg) and n > 0 else ([] if n == 0 else lg)
        touched = c.r | c.w
        for q in (vm, lg):
            for kind, dst, txt in q:
                if dst & touched and not (c.is_ds and kind == "ds" and not (dst & c.r)) and not (c.is_vmem and kind == "vm" and not (dst & c.r)):
                    probs.append(f"[{i}] '{c.text}' touches {sorted(dst & touched)[:2]} with outstanding '{txt}'")
        if c.is_vmem:
            vm.append(("vm", set(c.w), c.text))
            if len(vm) > 63:
                probs.append(f"[{i}] more than 63 vector-memory ops outstanding (issue stalls): {c.text}")
                vm = vm[1:]
        if c.is_ds:
            lg.append(("ds", set(c.w), c.text))
        if c.is_smem:
            lg.append(("smem", set(c.w), c.text))
        dist = 0
        for j in range(i - 1, max(i - 24, -1), -1):
            p = ins[j]
            need = 0
            if p.is_valu:
                if c.is_mfma and vec(p.w) & c.r:
                    need = max(need, 2)
                if c.op.startswith("v_permlane") and vec(p.w) & c.r:
                    need = max(need, 2)
                if c.is_dpp and vec(p.w) & c.r:
                    need = max(need, 2)
                if c.op in ("v_readfirstlane_b32", "v_readlane_b32") and vec(p.w) & c.r:
                    need = max(need, 1)
                if p.op in TRANS and c.is_valu and vec(p.w) & (c.r | c.w):
                    need = max(need, 1)
                if sca(p.w) & c.r:
                    if c.is_valu:
                        need = max(need, 2)
                    if c.is_vmem:
                        need = max(need, 5)
                    if c.op.startswith("v_readlane") or c.op.startswith("v_writelane"):
                        need = max(need, 4)
                if ("exec", 0) in p.w and (c.is_valu or c.is_mfma):
                    need = max(need, 5)
            if p.is_mfma:
                full = 8 if p.passes == 4 else 12
                if c.is_mfma:
                    if p.w & (c.A | c.B):
                        need = max(need, full)
                    if p.w & c.C and not (p.w == c.C and p.op == c.op):
                        need = max(need, full - 2)
                    if p.w & c.w and not (p.w & c.C):
                        need = max(need, full - 2)
                elif (c.is_valu or c.is_vmem or c.is_ds) and p.w & (c.r | c.w):
                    need = max(need, full)
                if c.is_valu and p.C & c.w:
                    need = max(need, 3 if p.passes == 4 else 7)
            if p.is_salu and ("m0", 0) in p.w and c.is_dma:
                need = max(need, 1)
            if p.wide_store and p.store_data & c.w:
                need = max(need, 2 if c.is_valu or c.is_mfma else 1)
            if dist < need:
                probs.append(f"[{i}] hazard: '{p.text}' -> '{c.text}' needs {need} wait states, has {dist}")
            dist += p.states()
    if verbose:
        for pr in probs[:40]:
            print(f"CHECK {name}: {pr}")
        print(f"check {name}: {len(ins)} instructions, {len(probs)} problems")
    return probs


def descriptor(name, vgpr, agpr, sgpr):
    acc = (vgpr + 3) // 4 * 4
    nfv = acc + agpr if agpr else vgpr
    return f""".section .rodata,"a"
.p2align 6
.amdhsa_kernel {name}
  .amdhsa_next_free_vgpr {nfv}
  .amdhsa_next_free_sgpr {sgpr}
  .amdhsa_accum_offset {acc}
  .amdhsa_group_segment_fixed_size 0
  .amdhsa_kernarg_size 64
  .amdhsa_user_sgpr_count 2
  .amdhsa_user_sgpr_kernarg_segment_ptr 1
  .amdhsa_system_sgpr_workgroup_id_x 1
  .amdhsa_float_denorm_mode_32 3
.end_amdhsa_kernel
"""


HEADER = """; Kernarg layout for this problem (64 bytes, ptrs only, base s[0:1]):
;   offset  16: d_in[2] v_cache  shape=(8, 32, 80, 128) dtype=bfloat16 strides=(655360, 20480, 256, 2) contiguous=True
"""
```

```python
import math
import struct
import sys

from asmlib import *

SLOT = 53248
KBASE = 2 * SLOT
VBASE = KBASE + 20480
POFF = 8 << 20
MF = "v_mfma_f32_16x16x32_bf16"
MF16 = "v_mfma_f32_16x16x16_bf16"
ROT = int(sys.argv[2]) if len(sys.argv) > 2 else 1


def f32bits(x):
    return struct.unpack("<I", struct.pack("<f", x))[0]


def srd(A, d, lo, hi, off_sgpr, size):
    if off_sgpr is None:
        A(f"s_mov_b32 s{d}, s{lo}")
        A(f"s_and_b32 s{d + 1}, s{hi}, 0xffff")
    else:
        A(f"s_add_u32 s{d}, s{lo}, s{off_sgpr}")
        A(f"s_addc_u32 s{d + 1}, s{hi}, 0")
        A(f"s_and_b32 s{d + 1}, s{d + 1}, 0xffff")
    A(f"s_mov_b32 s{d + 2}, {size}")
    A(f"s_mov_b32 s{d + 3}, 0x20000")


def lds_ref(regsets, const):
    k = const // 65536
    return regsets[k], const - k * 65536


def prologue(A, name, nwg):
    A(f".globl {name}")
    A(".p2align 8")
    A(f".type {name},@function")
    A.label(name)
    A(f"s_cmp_ge_u32 s2, {nwg}")
    A(f"s_cbranch_scc1 {name}_end")
    A("s_load_dwordx16 s[4:19], s[0:1], 0")


def gemm_loop(A, acc, bufA, bufB, readsA, readsB, dma_stage, tail_dma):
    def mfmas(buf, first):
        out = []
        for t in range(5):
            for tt in range(2):
                c = "0" if first else acc[tt][t]
                out.append(f"{MF} {acc[tt][t]}, {bufA[buf][tt]}, {bufB[buf][t]}, {c}")
        return out

    def reads(st, i):
        ra, rb = readsA(st, i, bufA[i & 1]), readsB(st, i, bufB[i & 1])
        return ra[:2] + rb[:1] + ra[2:] + rb[1:]

    for g in dma_stage(0) + dma_stage(1):
        A("\n".join(g))
    for st in range(8):
        A.comment(f"stage {st}")
        pend = 13 if st < 7 else len(tail_dma)
        A(f"s_waitcnt vmcnt({pend}) lgkmcnt(0)")
        A("s_barrier")
        dm = dma_stage(st + 2) if st + 2 < 8 else (tail_dma if st == 6 else [])
        parts = [dm[0:3], dm[3:6], dm[6:10], dm[10:13]]
        for i in range(4):
            rd = reads(st, i)
            if st == 0 and i == 0:
                seq = rd + parts[0]
            else:
                m = mfmas((i + 1) & 1, st == 0 and i == 1)
                seq = interleave(m, rd, start=0, per=1)
                seq = spread(seq, parts[i], lo=2)
            A("\n".join(flat(seq)))
            if i < 3:
                A("s_waitcnt lgkmcnt(0)")
    A("s_waitcnt lgkmcnt(0)")
    A("\n".join(mfmas(1, False)))


def dma_groups(srd_regs, vregs, soff, slot_base, first_index, wreg):
    out = []
    for j, vr in enumerate(vregs):
        so = soff[j] if isinstance(soff, list) else soff
        out.append([f"s_add_u32 m0, {wreg}, {slot_base + (first_index + j) * 4096}", "s_nop 0",
                    f"buffer_load_dwordx4 {vr}, {srd_regs}, {so} offen lds"])
    return out


def softmax(sacc, P, tmp, cs):
    vals = [sacc[kt][r] for kt in range(5) for r in range(4)]
    m, t, nm = tmp[0], tmp[1], tmp[2]
    o = [f"v_max3_f32 {m}, {vals[0]}, {vals[1]}, {vals[2]}"]
    for i in range(3, 19, 2):
        o.append(f"v_max3_f32 {m}, {m}, {vals[i]}, {vals[i + 1]}")
    o.append(f"v_max_f32 {m}, {m}, {vals[19]}")
    for sw in ("v_permlane32_swap_b32", "v_permlane16_swap_b32"):
        o += [[f"v_mov_b32 {t}, {m}", "s_nop 1", f"{sw} {m}, {t}"], f"v_max_f32 {m}, {m}, {t}"]
    o.append(f"v_mul_f32 {nm}, {cs}, {m}")
    for x in vals:
        o.append(f"v_fma_f32 {x}, {x}, {cs}, -{nm}")
    for x in vals:
        o.append(f"v_exp_f32 {x}, {x}")
    o.append(f"v_add_f32 {m}, {vals[0]}, {vals[1]}")
    o.append(f"v_add_f32 {t}, {vals[2]}, {vals[3]}")
    for i in range(4, 20, 2):
        o.append(f"v_add_f32 {m}, {m}, {vals[i]}")
        o.append(f"v_add_f32 {t}, {t}, {vals[i + 1]}")
    o.append(f"v_add_f32 {m}, {m}, {t}")
    for sw in ("v_permlane32_swap_b32", "v_permlane16_swap_b32"):
        o += [[f"v_mov_b32 {t}, {m}", "s_nop 1", f"{sw} {m}, {t}"], f"v_add_f32 {m}, {m}, {t}"]
    o.append([f"v_rcp_f32 {m}, {m}", "s_nop 0"])
    for x in vals:
        o.append(f"v_mul_f32 {x}, {x}, {m}")
    for i in range(10):
        o.append(f"v_cvt_pk_bf16_f32 {P[i]}, {vals[2 * i]}, {vals[2 * i + 1]}")
    return o


def lane_setup(A, V):
    lane, q, g, r, c, r4 = (V.get() for _ in range(6))
    A(f"v_lshrrev_b32 {r4}, 6, v0")
    A(f"v_and_b32 {lane}, 63, v0")
    A(f"v_readfirstlane_b32 s20, {r4}")
    A(f"v_and_b32 {q}, 15, v0")
    A(f"v_lshrrev_b32 {g}, 4, {lane}")
    A(f"v_bfe_u32 {r}, v0, 2, 2")
    A(f"v_and_b32 {c}, 3, v0")
    A(f"v_lshrrev_b32 {r4}, 4, v0")
    A("s_lshl_b32 s49, s20, 10")
    return lane, q, g, r, c, r4


def kernel1():
    A = Asm()
    name = "mha_attn_kernel"
    prologue(A, name, 256)
    V = Alloc("v", 1, 256)
    lane, q, g, r, c, r4 = lane_setup(A, V)
    t0, t1, t2 = V.get(), V.get(), V.get()
    A("s_and_b32 s23, s2, 7")
    A("s_lshr_b32 s21, s2, 5")
    A("s_bfe_u32 s22, s2, 0x20003")
    A("s_lshl_b32 s3, s23, 2")
    A("s_add_u32 s22, s22, s3")
    if not ROT:
        A("s_mov_b32 s23, 0")
    A("s_lshl_b32 s3, s21, 5")
    A("s_add_u32 s3, s3, s22")
    A("s_mul_i32 s50, s3, 20480")
    A("s_mul_i32 s51, s21, 163840")
    A("s_lshl_b32 s52, s22, 8")
    for j in range(5):
        A(f"s_mov_b32 s{56 + j}, {j * 4096}")
    vx = [V.get() for _ in range(5)]
    vq = [V.get() for _ in range(8)]
    vk, vv = V.get(), V.get()
    A(f"v_xor_b32 {t0}, {q}, {r4}")
    A(f"v_lshlrev_b32 {t0}, 4, {t0}")
    A(f"v_lshl_add_u32 {vx[0]}, {r4}, 11, {t0}")
    A(f"v_lshl_add_u32 {vk}, {r4}, 8, {t0}")
    for j in range(1, 5):
        A(f"v_add_u32 {vx[j]}, {j * 32768}, {vx[0]}")
    A(f"v_lshrrev_b32 {t1}, 3, {r4}")
    A(f"v_lshl_or_b32 {t1}, {t1}, 2, {g}")
    A(f"v_lshlrev_b32 {t1}, 1, {t1}")
    A(f"v_xor_b32 {t1}, {q}, {t1}")
    A(f"v_lshlrev_b32 {t1}, 4, {t1}")
    A(f"v_lshl_add_u32 {vq[0]}, {r4}, 13, {t1}")
    for j in range(1, 8):
        A(f"v_add_u32 {vq[j]}, {j * 16 * 8192}, {vq[0]}")
    A(f"v_and_b32 {t1}, 7, {r4}")
    A(f"v_lshlrev_b32 {t1}, 1, {t1}")
    A(f"v_xor_b32 {t1}, {q}, {t1}")
    A(f"v_lshlrev_b32 {t1}, 4, {t1}")
    A(f"v_lshl_add_u32 {vv}, {r4}, 8, {t1}")
    A("s_waitcnt lgkmcnt(0)")
    srd(A, 24, 4, 5, 51, 163840)
    srd(A, 28, 10, 11, 52, 8388608 - 7936)
    srd(A, 32, 6, 7, 50, 20480)
    srd(A, 36, 8, 9, 50, 20480)
    srd(A, 40, 18, 19, 50, 20480)

    def dma_stage(st):
        slot = (st % 3) * SLOT
        pre = [f"s_add_u32 s53, s23, {st}", "s_and_b32 s53, s53, 7", "s_lshl_b32 s54, s53, 8", "s_lshl_b32 s55, s53, 20"]
        gx = dma_groups("s[24:27]", vx, "s54", slot, 0, "s49")
        gq = dma_groups("s[28:31]", vq, "s55", slot, 5, "s49")
        gx[0] = pre + gx[0]
        return gx + gq

    so5 = [f"s{56 + j}" for j in range(5)]
    tail = dma_groups("s[32:35]", [vk] * 5, so5, KBASE, 0, "s49") + dma_groups("s[36:39]", [vv] * 5, so5, KBASE, 5, "s49")

    xa = [[V.get() for _ in range(3)] for _ in range(4)]
    wa = [[V.get() for _ in range(3)] for _ in range(2)]
    pre = Asm()
    for s4 in range(4):
        pre(f"v_or_b32 {t0}, {4 * s4}, {g}")
        pre(f"v_xor_b32 {t0}, {t0}, {q}")
        pre(f"v_lshlrev_b32 {t0}, 4, {t0}")
        pre(f"v_lshl_add_u32 {xa[s4][0]}, {q}, 8, {t0}")
        pre(f"v_add_u32 {xa[s4][1]}, 0x10000, {xa[s4][0]}")
        pre(f"v_add_u32 {xa[s4][2]}, 0x20000, {xa[s4][0]}")
    pre(f"v_and_b32 {t0}, 1, {g}")
    pre(f"v_lshl_or_b32 {t0}, {t0}, 2, {r}")
    pre(f"v_lshl_add_u32 {t1}, {g}, 3, {r}")
    pre(f"v_lshlrev_b32 {t1}, 8, {t1}")
    pre(f"v_lshl_add_u32 {t1}, {c}, 3, {t1}")
    pre("s_lshl_b32 s3, s20, 1")
    for tt in range(2):
        pre(f"s_add_u32 s48, s3, {tt}")
        pre(f"v_xor_b32 {t2}, s48, {t0}")
        pre(f"v_lshl_add_u32 {wa[tt][0]}, {t2}, 5, {t1}")
        pre(f"v_add_u32 {wa[tt][1]}, 0x10000, {wa[tt][0]}")
        pre(f"v_add_u32 {wa[tt][2]}, 0x20000, {wa[tt][0]}")
    A(pre.text())

    accr = V.get(40, 4)
    acc = [[accr.sub((tt * 5 + t) * 4, 4) for t in range(5)] for tt in range(2)]
    bB = V.get(40, 4)
    bufB = [[bB.sub((p * 5 + t) * 4, 4) for t in range(5)] for p in range(2)]
    bA = V.get(16, 4)
    bufA = [[bA.sub((p * 2 + tt) * 4, 4) for tt in range(2)] for p in range(2)]

    def readsA(st, i, dst):
        out = []
        for tt in range(2):
            for hf in range(2):
                rg, off = lds_ref(wa[tt], (st % 3) * SLOT + 20480 + i * 8192 + hf * 1024)
                out.append(f"ds_read_b64_tr_b16 {dst[tt].sub(2 * hf, 2)}, {rg} offset:{off}")
        return out

    def readsB(st, i, dst):
        out = []
        for t in range(5):
            rg, off = lds_ref(xa[i], (st % 3) * SLOT + t * 4096)
            out.append(f"ds_read_b128 {dst[t]}, {rg} offset:{off}")
        return out

    gemm_loop(A, acc, bufA, bufB, readsA, readsB, dma_stage, tail)

    ka = [V.get() for _ in range(8)]
    va = [V.get() for _ in range(8)]
    l16, qown = V.get(), V.get()
    A(f"v_lshlrev_b32 {l16}, 4, {lane}")
    A(f"v_lshrrev_b32 {t0}, 1, {g}")
    A(f"v_xor_b32 {t0}, {t0}, {q}")
    A(f"v_lshlrev_b32 {t0}, 4, {t0}")
    A(f"v_lshl_add_u32 {t0}, {q}, 8, {t0}")
    A(f"v_and_b32 {t1}, 1, {g}")
    A(f"v_lshl_add_u32 {t0}, {t1}, 3, {t0}")
    A(f"v_add_u32 {ka[0]}, {KBASE}, {t0}")
    for i in range(1, 8):
        A(f"v_xor_b32 {ka[i]}, {32 * i}, {ka[0]}")
    A(f"v_lshl_add_u32 {t0}, {g}, 2, {r}")
    A(f"v_and_b32 {t1}, 7, {t0}")
    A(f"v_lshlrev_b32 {t1}, 5, {t1}")
    A(f"v_lshl_add_u32 {t0}, {t0}, 8, {t1}")
    A(f"v_lshl_add_u32 {t0}, {c}, 3, {t0}")
    A(f"v_add_u32 {t0}, {VBASE}, {t0}")
    for i in range(8):
        A(f"s_lshl_b32 s3, s20, 1")
        A(f"s_add_u32 s3, s3, {i}")
        A(f"s_and_b32 s3, s3, 7")
        A(f"s_lshl_b32 s3, s3, 5")
        A(f"v_xor_b32 {va[i]}, s3, {t0}")
    A(f"v_add_u32 {t2}, s49, {l16}")
    A("s_lshl_b32 s3, s20, 12")
    A(f"v_add_u32 {qown}, s3, {l16}")
    qb = bB
    for t in range(5):
        for tt in range(2):
            for hf in range(2):
                A(f"v_cvt_pk_bf16_f32 {qb[t * 4 + tt * 2 + hf]}, {acc[tt][t][2 * hf]}, {acc[tt][t][2 * hf + 1]}")
        A(f"ds_write_b128 {t2}, {qb.sub(t * 4, 4)} offset:{t * 4096}")
    A("s_waitcnt vmcnt(0) lgkmcnt(0)")
    A("s_barrier")
    Qf = [[bB.sub((T * 4 + u) * 4, 4) for u in range(4)] for T in range(2)]
    AG = Alloc("a", 0, 256)
    Kf = AG.get(80, 4)
    Vf = AG.get(80, 4)
    for u in range(4):
        A(f"ds_read_b128 {Qf[0][u]}, {qown} offset:{u * 1024}")
        for kt in range(5):
            for hf in range(2):
                A(f"ds_read_b64 {Kf.sub((kt * 4 + u) * 4 + 2 * hf, 2)}, {ka[2 * u + hf]} offset:{kt * 4096}")
        A("s_waitcnt lgkmcnt(0)")
    for u in range(4):
        A(f"ds_read_b128 {Qf[1][u]}, {l16} offset:{16384 + u * 1024}")
    sr = V.get(40, 4)
    sacc = [[sr.sub((T * 5 + kt) * 4, 4) for kt in range(5)] for T in range(2)]
    for T in range(2):
        if T == 1:
            A("s_waitcnt lgkmcnt(0)")
        for u in range(4):
            for kt in range(5):
                cc = "0" if u == 0 else sacc[T][kt]
                A(f"{MF} {sacc[T][kt]}, {Kf.sub((kt * 4 + u) * 4, 4)}, {Qf[T][u]}, {cc}")
    for i in range(8):
        for kt in range(5):
            A(f"ds_read_b64_tr_b16 {Vf.sub(i * 10 + kt * 2, 2)}, {va[i]} offset:{kt * 4096}")
        if i % 2 == 1:
            A("s_waitcnt lgkmcnt(0)")
    A(f"s_mov_b32 s48, {f32bits(math.log2(math.e) / math.sqrt(128.0)):#x}")
    Pr = V.get(20, 4)
    P = [Pr.sub(0, 10), Pr.sub(10, 10)]
    tmp = V.get(4)
    oacc = [accr.sub(i * 4, 4) for i in range(10)]
    for T in range(2):
        A("\n".join(flat(softmax(sacc[T], P[T], tmp, "s48"))))
    A("s_nop 1")
    for ks in range(2):
        for i in range(8):
            cc = "0" if ks == 0 else oacc[i]
            A(f"{MF} {oacc[i]}, {Vf.sub(i * 10 + ks * 4, 4)}, {P[0].sub(ks * 4, 4)}, {cc}")
        for i in range(2):
            cc = "0" if ks == 0 else oacc[8 + i]
            A(f"{MF} {oacc[8 + i]}, {Vf.sub(i * 10 + ks * 4, 4)}, {P[1].sub(ks * 4, 4)}, {cc}")
    for i in range(8):
        A(f"{MF16} {oacc[i]}, {Vf.sub(i * 10 + 8, 2)}, {P[0].sub(8, 2)}, {oacc[i]}")
    for i in range(2):
        A(f"{MF16} {oacc[8 + i]}, {Vf.sub(i * 10 + 8, 2)}, {P[1].sub(8, 2)}, {oacc[8 + i]}")
    for p in range(5):
        if p < 4:
            A(f"s_add_u32 s3, s20, {p}")
            A("s_and_b32 s3, s3, 3")
            A("s_mul_i32 s3, s3, 5")
            A("s_add_u32 s3, s3, s20")
        else:
            A("s_mul_i32 s3, s20, 5")
            A("s_add_u32 s3, s3, 4")
            A("s_nop 4")
        A("s_lshl_b32 s3, s3, 10")
        ob = bB.sub(p * 4, 4)
        for hh in range(2):
            for hf in range(2):
                o = oacc[2 * p + hh]
                A(f"v_cvt_pk_bf16_f32 {ob[hh * 2 + hf]}, {o[2 * hf]}, {o[2 * hf + 1]}")
        A(f"buffer_store_dwordx4 {ob}, {l16}, s[40:43], s3 offen")
    A.label(f"{name}_end")
    A("s_endpgm")
    check(A.lines, name)
    return A.text(), descriptor(name, V.hi, AG.hi, 64)


def kernel2():
    A = Asm()
    name = "mha_oproj_kernel"
    prologue(A, name, 256)
    V = Alloc("v", 1, 256)
    lane, q, g, r, c, r4 = lane_setup(A, V)
    t0, t1, t2 = V.get(), V.get(), V.get()
    A("s_lshr_b32 s21, s2, 5")
    A("s_bfe_u32 s22, s2, 0x20001")
    A("s_bfe_u32 s3, s2, 0x20003")
    A("s_and_b32 s23, s2, 1")
    A("s_lshl_b32 s23, s23, 2")
    A("s_add_u32 s23, s23, s3")
    A("s_lshl_b32 s3, s21, 5")
    A("s_lshl_b32 s48, s22, 3")
    A("s_add_u32 s3, s3, s48")
    A("s_mul_i32 s50, s3, 20480")
    A("s_lshl_b32 s51, s22, 21")
    A("s_lshl_b32 s3, s23, 8")
    A("s_add_u32 s51, s51, s3")
    A("s_lshl_b32 s3, s21, 3")
    A("s_add_u32 s3, s3, s23")
    A("s_lshl_b32 s3, s3, 2")
    A("s_add_u32 s3, s3, s22")
    A("s_lshl_b32 s3, s3, 2")
    A("s_add_u32 s3, s3, s20")
    A("s_mul_i32 s52, s3, 10240")
    A(f"s_add_u32 s52, s52, {POFF}")
    vo = [V.get() for _ in range(5)]
    vw = [V.get() for _ in range(8)]
    l16 = V.get()
    A(f"v_lshlrev_b32 {l16}, 4, {lane}")
    A(f"v_lshlrev_b32 {vo[0]}, 4, v0")
    for j in range(1, 5):
        A(f"v_add_u32 {vo[j]}, {j * 4096}, {vo[0]}")
    A(f"v_and_b32 {t1}, 7, {r4}")
    A(f"v_lshlrev_b32 {t1}, 1, {t1}")
    A(f"v_xor_b32 {t1}, {q}, {t1}")
    A(f"v_lshlrev_b32 {t1}, 4, {t1}")
    A(f"v_lshl_add_u32 {vw[0]}, {r4}, 11, {t1}")
    for j in range(1, 8):
        A(f"v_add_u32 {vw[j]}, {j * 16 * 2048}, {vw[0]}")
    A("s_waitcnt lgkmcnt(0)")
    srd(A, 24, 18, 19, 50, 8 * 20480)
    srd(A, 28, 12, 13, 51, 1024 * 2048 - 1792)
    srd(A, 40, 18, 19, 52, 10240)

    def dma_stage(st):
        slot = (st % 3) * SLOT
        pre = [f"s_mov_b32 s54, {st * 20480}", f"s_mov_b32 s55, {st << 18}"]
        gx = dma_groups("s[24:27]", vo, "s54", slot, 0, "s49")
        gq = dma_groups("s[28:31]", vw, "s55", slot, 5, "s49")
        gx[0] = pre + gx[0]
        return gx + gq

    oa = [V.get() for _ in range(3)]
    wa = [[V.get() for _ in range(3)] for _ in range(2)]
    for k in range(3):
        A(f"v_add_u32 {oa[k]}, {k * 65536}, {l16}")
    A(f"v_lshl_add_u32 {t1}, {g}, 2, {r}")
    A(f"v_and_b32 {t0}, 7, {t1}")
    A(f"v_lshlrev_b32 {t1}, 8, {t1}")
    A(f"v_lshl_add_u32 {t1}, {c}, 3, {t1}")
    A("s_lshl_b32 s3, s20, 1")
    for tt in range(2):
        A(f"s_add_u32 s48, s3, {tt}")
        A(f"v_xor_b32 {t2}, s48, {t0}")
        A(f"v_lshl_add_u32 {wa[tt][0]}, {t2}, 5, {t1}")
        A(f"v_add_u32 {wa[tt][1]}, 0x10000, {wa[tt][0]}")
        A(f"v_add_u32 {wa[tt][2]}, 0x20000, {wa[tt][0]}")
    accr = V.get(40, 4)
    acc = [[accr.sub((tt * 5 + t) * 4, 4) for t in range(5)] for tt in range(2)]
    bB = V.get(40, 4)
    bufB = [[bB.sub((p * 5 + t) * 4, 4) for t in range(5)] for p in range(2)]
    bA = V.get(16, 4)
    bufA = [[bA.sub((p * 2 + tt) * 4, 4) for tt in range(2)] for p in range(2)]

    def readsA(st, i, dst):
        out = []
        for tt in range(2):
            for hf in range(2):
                rg, off = lds_ref(wa[tt], (st % 3) * SLOT + 20480 + i * 8192 + hf * 4096)
                out.append(f"ds_read_b64_tr_b16 {dst[tt].sub(2 * hf, 2)}, {rg} offset:{off}")
        return out

    def readsB(st, i, dst):
        out = []
        for t in range(5):
            rg, off = lds_ref(oa, (st % 3) * SLOT + (i * 5 + t) * 1024)
            out.append(f"ds_read_b128 {dst[t]}, {rg} offset:{off}")
        return out

    gemm_loop(A, acc, bufA, bufB, readsA, readsB, dma_stage, [])
    for j in range(10):
        A(f"s_mov_b32 s{56 + j}, {j * 1024}")
    order = [(tt, t) for t in range(5) for tt in range(2)]
    for tt, t in order:
        A(f"buffer_store_dwordx4 {acc[tt][t]}, {l16}, s[40:43], s{56 + tt * 5 + t} offen")
    A.label(f"{name}_end")
    A("s_endpgm")
    check(A.lines, name)
    return A.text(), descriptor(name, V.hi, 0, 72)


def kernel3():
    A = Asm()
    name = "mha_reduce_kernel"
    prologue(A, name, 256)
    V = Alloc("v", 1, 256)
    l16, q, g, oa = V.get(), V.get(), V.get(), V.get()
    A(f"v_lshlrev_b32 {l16}, 4, v0")
    A(f"v_and_b32 {q}, 15, v0")
    A(f"v_lshrrev_b32 {g}, 4, v0")
    A("s_and_b32 s20, s2, 3")
    A("s_lshr_b32 s3, s2, 2")
    A("s_mul_i32 s50, s3, 163840")
    A("s_mul_i32 s48, s20, 10240")
    A("s_add_u32 s50, s50, s48")
    A(f"s_add_u32 s50, s50, {POFF}")
    A("s_lshr_b32 s21, s2, 5")
    A("s_mul_i32 s51, s21, 163840")
    A("s_and_b32 s3, s2, 31")
    A("s_lshl_b32 s3, s3, 6")
    A("s_add_u32 s51, s51, s3")
    A(f"v_lshlrev_b32 {oa}, 11, {q}")
    A(f"v_lshl_add_u32 {oa}, {g}, 3, {oa}")
    A("s_waitcnt lgkmcnt(0)")
    srd(A, 24, 18, 19, 50, 163840)
    srd(A, 28, 14, 15, 51, 163840 - 1984)
    P = [V.get(40, 4) for _ in range(4)]
    for k in range(4):
        for j in range(10):
            A(f"s_mov_b32 s3, {k * 40960 + j * 1024}")
            A(f"buffer_load_dwordx4 {P[k].sub(j * 4, 4)}, {l16}, s[24:27], s3 offen")
    A("s_waitcnt vmcnt(20)")
    for i in range(40):
        A(f"v_add_f32 {P[0][i]}, {P[0][i]}, {P[1][i]}")
    A("s_waitcnt vmcnt(0)")
    for i in range(40):
        A(f"v_add_f32 {P[2][i]}, {P[2][i]}, {P[3][i]}")
    for i in range(40):
        A(f"v_add_f32 {P[0][i]}, {P[0][i]}, {P[2][i]}")
    for tt in range(2):
        for t in range(5):
            j = tt * 5 + t
            o = P[1].sub(j * 2, 2)
            A(f"v_cvt_pk_bf16_f32 {o[0]}, {P[0][j * 4]}, {P[0][j * 4 + 1]}")
            A(f"v_cvt_pk_bf16_f32 {o[1]}, {P[0][j * 4 + 2]}, {P[0][j * 4 + 3]}")
            A(f"s_mov_b32 s3, {t * 32768}")
            A(f"buffer_store_dwordx2 {o}, {oa}, s[28:31], s3 offen offset:{tt * 32}")
    A.label(f"{name}_end")
    A("s_endpgm")
    check(A.lines, name)
    return A.text(), descriptor(name, V.hi, 0, 64)


def main():
    ks = [kernel1(), kernel2(), kernel3()]
    out = HEADER
    out += "; @launch kernel=mha_attn_kernel grid=(256,1,1) block=(256,1,1) lds=159744\n"
    out += "; @launch kernel=mha_oproj_kernel grid=(256,1,1) block=(256,1,1) lds=159744\n"
    out += "; @launch kernel=mha_reduce_kernel grid=(256,1,1) block=(64,1,1) lds=0\n"
    out += '.amdgcn_target "amdgcn-amd-amdhsa--gfx950"\n.text\n'
    for code, _ in ks:
        out += code
    for _, d in ks:
        out += d
    open(sys.argv[1], "w").write(out)


main()
```

```python
import math
import struct
import sys

from asmlib import *

SLOT = 53248
KBASE = 2 * SLOT
VBASE = KBASE + 20480
POFF = 8 << 20
MF = "v_mfma_f32_16x16x32_bf16"
MF16 = "v_mfma_f32_16x16x16_bf16"
OPT = dict(kv.split("=") for kv in sys.argv[2:])
ROT = int(OPT.get("rot", 1))
STAMPS = int(OPT.get("stamps", 0))
NT = OPT.get("nt", "")


def stamp(A, i):
    if STAMPS:
        A(f"s_memrealtime s[{64 + 2 * i}:{65 + 2 * i}]")


def stamp_out(A, kidx, n):
    if not STAMPS:
        return
    A("s_waitcnt vmcnt(0)")
    stamp(A, n - 1)
    A("s_waitcnt lgkmcnt(0)")
    A(f"s_add_u32 s3, s2, {kidx * 256}")
    A("s_lshl_b32 s3, s3, 7")
    A(f"s_add_u32 s3, s3, {64 << 20}")
    srd(A, 44, 18, 19, 3, 128)
    A("v_mov_b32 v1, 0")
    A("v_cmp_eq_u32 vcc, 0, v0")
    A("s_and_saveexec_b64 s[62:63], vcc")
    A(f"s_cbranch_execz stamp_skip_{kidx}")
    for i in range(n):
        A(f"v_mov_b32 v2, s{64 + 2 * i}")
        A(f"v_mov_b32 v3, s{65 + 2 * i}")
        A(f"buffer_store_dwordx2 v[2:3], v1, s[44:47], 0 offen offset:{8 * i}")
    A.label(f"stamp_skip_{kidx}")


def f32bits(x):
    return struct.unpack("<I", struct.pack("<f", x))[0]


def srd(A, d, lo, hi, off_sgpr, size):
    if off_sgpr is None:
        A(f"s_mov_b32 s{d}, s{lo}")
        A(f"s_and_b32 s{d + 1}, s{hi}, 0xffff")
    else:
        A(f"s_add_u32 s{d}, s{lo}, s{off_sgpr}")
        A(f"s_addc_u32 s{d + 1}, s{hi}, 0")
        A(f"s_and_b32 s{d + 1}, s{d + 1}, 0xffff")
    A(f"s_mov_b32 s{d + 2}, {size}")
    A(f"s_mov_b32 s{d + 3}, 0x20000")


def lds_ref(regsets, const):
    k = const // 65536
    return regsets[k], const - k * 65536


def prologue(A, name, nwg):
    A(f".globl {name}")
    A(".p2align 8")
    A(f".type {name},@function")
    A.label(name)
    A(f"s_cmp_ge_u32 s2, {nwg}")
    A(f"s_cbranch_scc1 {name}_end")
    A("s_load_dwordx16 s[4:19], s[0:1], 0")
    stamp(A, 0)


def gemm_loop(A, acc, bufA, bufB, readsA, readsB, dma_stage, tail_dma):
    def mfmas(buf, first):
        out = []
        for t in range(5):
            for tt in range(2):
                c = "0" if first else acc[tt][t]
                out.append(f"{MF} {acc[tt][t]}, {bufA[buf][tt]}, {bufB[buf][t]}, {c}")
        return out

    def reads(st, i):
        ra, rb = readsA(st, i, bufA[i & 1]), readsB(st, i, bufB[i & 1])
        return ra[:2] + rb[:1] + ra[2:] + rb[1:]

    for g in dma_stage(0) + dma_stage(1):
        A("\n".join(g))
    for st in range(8):
        A.comment(f"stage {st}")
        pend = 13 if st < 7 else len(tail_dma)
        A(f"s_waitcnt vmcnt({pend}) lgkmcnt(0)")
        A("s_barrier")
        stamp(A, 1 + st)
        dm = dma_stage(st + 2) if st + 2 < 8 else (tail_dma if st == 6 else [])
        parts = [dm[0:3], dm[3:6], dm[6:10], dm[10:13]]
        for i in range(4):
            rd = reads(st, i)
            if st == 0 and i == 0:
                seq = rd + parts[0]
            else:
                m = mfmas((i + 1) & 1, st == 0 and i == 1)
                seq = interleave(m, rd, start=0, per=1)
                seq = spread(seq, parts[i], lo=2)
            A("\n".join(flat(seq)))
            if i < 3:
                A("s_waitcnt lgkmcnt(0)")
    A("s_waitcnt lgkmcnt(0)")
    A("\n".join(mfmas(1, False)))


def dma_groups(srd_regs, vregs, soff, slot_base, first_index, wreg, mod=""):
    out = []
    for j, vr in enumerate(vregs):
        so = soff[j] if isinstance(soff, list) else soff
        out.append([f"s_add_u32 m0, {wreg}, {slot_base + (first_index + j) * 4096}", "s_nop 0",
                    f"buffer_load_dwordx4 {vr}, {srd_regs}, {so} offen {mod} lds"])
    return out


def softmax(sacc, P, tmp, cs):
    vals = [sacc[kt][r] for kt in range(5) for r in range(4)]
    m, t, nm = tmp[0], tmp[1], tmp[2]
    o = [f"v_max3_f32 {m}, {vals[0]}, {vals[1]}, {vals[2]}"]
    for i in range(3, 19, 2):
        o.append(f"v_max3_f32 {m}, {m}, {vals[i]}, {vals[i + 1]}")
    o.append(f"v_max_f32 {m}, {m}, {vals[19]}")
    for sw in ("v_permlane32_swap_b32", "v_permlane16_swap_b32"):
        o += [[f"v_mov_b32 {t}, {m}", "s_nop 1", f"{sw} {m}, {t}"], f"v_max_f32 {m}, {m}, {t}"]
    o.append(f"v_mul_f32 {nm}, {cs}, {m}")
    for x in vals:
        o.append(f"v_fma_f32 {x}, {x}, {cs}, -{nm}")
    for x in vals:
        o.append(f"v_exp_f32 {x}, {x}")
    o.append(f"v_add_f32 {m}, {vals[0]}, {vals[1]}")
    o.append(f"v_add_f32 {t}, {vals[2]}, {vals[3]}")
    for i in range(4, 20, 2):
        o.append(f"v_add_f32 {m}, {m}, {vals[i]}")
        o.append(f"v_add_f32 {t}, {t}, {vals[i + 1]}")
    o.append(f"v_add_f32 {m}, {m}, {t}")
    for sw in ("v_permlane32_swap_b32", "v_permlane16_swap_b32"):
        o += [[f"v_mov_b32 {t}, {m}", "s_nop 1", f"{sw} {m}, {t}"], f"v_add_f32 {m}, {m}, {t}"]
    o.append([f"v_rcp_f32 {m}, {m}", "s_nop 0"])
    for x in vals:
        o.append(f"v_mul_f32 {x}, {x}, {m}")
    for i in range(10):
        o.append(f"v_cvt_pk_bf16_f32 {P[i]}, {vals[2 * i]}, {vals[2 * i + 1]}")
    return o


def lane_setup(A, V):
    lane, q, g, r, c, r4 = (V.get() for _ in range(6))
    A(f"v_lshrrev_b32 {r4}, 6, v0")
    A(f"v_and_b32 {lane}, 63, v0")
    A(f"v_readfirstlane_b32 s20, {r4}")
    A(f"v_and_b32 {q}, 15, v0")
    A(f"v_lshrrev_b32 {g}, 4, {lane}")
    A(f"v_bfe_u32 {r}, v0, 2, 2")
    A(f"v_and_b32 {c}, 3, v0")
    A(f"v_lshrrev_b32 {r4}, 4, v0")
    A("s_lshl_b32 s49, s20, 10")
    return lane, q, g, r, c, r4


def kernel1():
    A = Asm()
    name = "mha_attn_kernel"
    prologue(A, name, 256)
    V = Alloc("v", 1, 256)
    lane, q, g, r, c, r4 = lane_setup(A, V)
    t0, t1, t2 = V.get(), V.get(), V.get()
    A("s_and_b32 s23, s2, 7")
    A("s_lshr_b32 s21, s2, 5")
    A("s_bfe_u32 s22, s2, 0x20003")
    A("s_lshl_b32 s3, s23, 2")
    A("s_add_u32 s22, s22, s3")
    if not ROT:
        A("s_mov_b32 s23, 0")
    A("s_lshl_b32 s3, s21, 5")
    A("s_add_u32 s3, s3, s22")
    A("s_mul_i32 s50, s3, 20480")
    A("s_mul_i32 s51, s21, 163840")
    A("s_lshl_b32 s52, s22, 8")
    for j in range(5):
        A(f"s_mov_b32 s{56 + j}, {j * 4096}")
    vx = [V.get() for _ in range(5)]
    vq = [V.get() for _ in range(8)]
    vk, vv = V.get(), V.get()
    A(f"v_xor_b32 {t0}, {q}, {r4}")
    A(f"v_lshlrev_b32 {t0}, 4, {t0}")
    A(f"v_lshl_add_u32 {vx[0]}, {r4}, 11, {t0}")
    A(f"v_lshl_add_u32 {vk}, {r4}, 8, {t0}")
    for j in range(1, 5):
        A(f"v_add_u32 {vx[j]}, {j * 32768}, {vx[0]}")
    A(f"v_lshrrev_b32 {t1}, 3, {r4}")
    A(f"v_lshl_or_b32 {t1}, {t1}, 2, {g}")
    A(f"v_lshlrev_b32 {t1}, 1, {t1}")
    A(f"v_xor_b32 {t1}, {q}, {t1}")
    A(f"v_lshlrev_b32 {t1}, 4, {t1}")
    A(f"v_lshl_add_u32 {vq[0]}, {r4}, 13, {t1}")
    for j in range(1, 8):
        A(f"v_add_u32 {vq[j]}, {j * 16 * 8192}, {vq[0]}")
    A(f"v_and_b32 {t1}, 7, {r4}")
    A(f"v_lshlrev_b32 {t1}, 1, {t1}")
    A(f"v_xor_b32 {t1}, {q}, {t1}")
    A(f"v_lshlrev_b32 {t1}, 4, {t1}")
    A(f"v_lshl_add_u32 {vv}, {r4}, 8, {t1}")
    A("s_waitcnt lgkmcnt(0)")
    srd(A, 24, 4, 5, 51, 163840)
    srd(A, 28, 10, 11, 52, 8388608 - 7936)
    srd(A, 32, 6, 7, 50, 20480)
    srd(A, 36, 8, 9, 50, 20480)
    srd(A, 40, 18, 19, 50, 20480)

    def dma_stage(st):
        slot = (st % 3) * SLOT
        pre = [f"s_add_u32 s53, s23, {st}", "s_and_b32 s53, s53, 7", "s_lshl_b32 s54, s53, 8", "s_lshl_b32 s55, s53, 20"]
        gx = dma_groups("s[24:27]", vx, "s54", slot, 0, "s49", "nt" if "x" in NT else "")
        gq = dma_groups("s[28:31]", vq, "s55", slot, 5, "s49", "nt" if "q" in NT else "")
        gx[0] = pre + gx[0]
        return gx + gq

    so5 = [f"s{56 + j}" for j in range(5)]
    kvm = "nt" if "k" in NT else ""
    tail = dma_groups("s[32:35]", [vk] * 5, so5, KBASE, 0, "s49", kvm) + dma_groups("s[36:39]", [vv] * 5, so5, KBASE, 5, "s49", kvm)

    xa = [[V.get() for _ in range(3)] for _ in range(4)]
    wa = [[V.get() for _ in range(3)] for _ in range(2)]
    pre = Asm()
    for s4 in range(4):
        pre(f"v_or_b32 {t0}, {4 * s4}, {g}")
        pre(f"v_xor_b32 {t0}, {t0}, {q}")
        pre(f"v_lshlrev_b32 {t0}, 4, {t0}")
        pre(f"v_lshl_add_u32 {xa[s4][0]}, {q}, 8, {t0}")
        pre(f"v_add_u32 {xa[s4][1]}, 0x10000, {xa[s4][0]}")
        pre(f"v_add_u32 {xa[s4][2]}, 0x20000, {xa[s4][0]}")
    pre(f"v_and_b32 {t0}, 1, {g}")
    pre(f"v_lshl_or_b32 {t0}, {t0}, 2, {r}")
    pre(f"v_lshl_add_u32 {t1}, {g}, 3, {r}")
    pre(f"v_lshlrev_b32 {t1}, 8, {t1}")
    pre(f"v_lshl_add_u32 {t1}, {c}, 3, {t1}")
    pre("s_lshl_b32 s3, s20, 1")
    for tt in range(2):
        pre(f"s_add_u32 s48, s3, {tt}")
        pre(f"v_xor_b32 {t2}, s48, {t0}")
        pre(f"v_lshl_add_u32 {wa[tt][0]}, {t2}, 5, {t1}")
        pre(f"v_add_u32 {wa[tt][1]}, 0x10000, {wa[tt][0]}")
        pre(f"v_add_u32 {wa[tt][2]}, 0x20000, {wa[tt][0]}")
    A(pre.text())

    accr = V.get(40, 4)
    acc = [[accr.sub((tt * 5 + t) * 4, 4) for t in range(5)] for tt in range(2)]
    bB = V.get(40, 4)
    bufB = [[bB.sub((p * 5 + t) * 4, 4) for t in range(5)] for p in range(2)]
    bA = V.get(16, 4)
    bufA = [[bA.sub((p * 2 + tt) * 4, 4) for tt in range(2)] for p in range(2)]

    def readsA(st, i, dst):
        out = []
        for tt in range(2):
            for hf in range(2):
                rg, off = lds_ref(wa[tt], (st % 3) * SLOT + 20480 + i * 8192 + hf * 1024)
                out.append(f"ds_read_b64_tr_b16 {dst[tt].sub(2 * hf, 2)}, {rg} offset:{off}")
        return out

    def readsB(st, i, dst):
        out = []
        for t in range(5):
            rg, off = lds_ref(xa[i], (st % 3) * SLOT + t * 4096)
            out.append(f"ds_read_b128 {dst[t]}, {rg} offset:{off}")
        return out

    gemm_loop(A, acc, bufA, bufB, readsA, readsB, dma_stage, tail)

    ka = [V.get() for _ in range(8)]
    va = [V.get() for _ in range(8)]
    l16, qown = V.get(), V.get()
    A(f"v_lshlrev_b32 {l16}, 4, {lane}")
    A(f"v_lshrrev_b32 {t0}, 1, {g}")
    A(f"v_xor_b32 {t0}, {t0}, {q}")
    A(f"v_lshlrev_b32 {t0}, 4, {t0}")
    A(f"v_lshl_add_u32 {t0}, {q}, 8, {t0}")
    A(f"v_and_b32 {t1}, 1, {g}")
    A(f"v_lshl_add_u32 {t0}, {t1}, 3, {t0}")
    A(f"v_add_u32 {ka[0]}, {KBASE}, {t0}")
    for i in range(1, 8):
        A(f"v_xor_b32 {ka[i]}, {32 * i}, {ka[0]}")
    A(f"v_lshl_add_u32 {t0}, {g}, 2, {r}")
    A(f"v_and_b32 {t1}, 7, {t0}")
    A(f"v_lshlrev_b32 {t1}, 5, {t1}")
    A(f"v_lshl_add_u32 {t0}, {t0}, 8, {t1}")
    A(f"v_lshl_add_u32 {t0}, {c}, 3, {t0}")
    A(f"v_add_u32 {t0}, {VBASE}, {t0}")
    for i in range(8):
        A(f"s_lshl_b32 s3, s20, 1")
        A(f"s_add_u32 s3, s3, {i}")
        A(f"s_and_b32 s3, s3, 7")
        A(f"s_lshl_b32 s3, s3, 5")
        A(f"v_xor_b32 {va[i]}, s3, {t0}")
    A(f"v_add_u32 {t2}, s49, {l16}")
    A("s_lshl_b32 s3, s20, 12")
    A(f"v_add_u32 {qown}, s3, {l16}")
    qb = bB
    for t in range(5):
        for tt in range(2):
            for hf in range(2):
                A(f"v_cvt_pk_bf16_f32 {qb[t * 4 + tt * 2 + hf]}, {acc[tt][t][2 * hf]}, {acc[tt][t][2 * hf + 1]}")
        A(f"ds_write_b128 {t2}, {qb.sub(t * 4, 4)} offset:{t * 4096}")
    stamp(A, 9)
    A("s_waitcnt vmcnt(0) lgkmcnt(0)")
    A("s_barrier")
    stamp(A, 10)
    Qf = [[bB.sub((T * 4 + u) * 4, 4) for u in range(4)] for T in range(2)]
    AG = Alloc("a", 0, 256)
    Kf = AG.get(80, 4)
    Vf = AG.get(80, 4)
    for u in range(4):
        A(f"ds_read_b128 {Qf[0][u]}, {qown} offset:{u * 1024}")
        for kt in range(5):
            for hf in range(2):
                A(f"ds_read_b64 {Kf.sub((kt * 4 + u) * 4 + 2 * hf, 2)}, {ka[2 * u + hf]} offset:{kt * 4096}")
        A("s_waitcnt lgkmcnt(0)")
    for u in range(4):
        A(f"ds_read_b128 {Qf[1][u]}, {l16} offset:{16384 + u * 1024}")
    sr = V.get(40, 4)
    sacc = [[sr.sub((T * 5 + kt) * 4, 4) for kt in range(5)] for T in range(2)]
    for T in range(2):
        if T == 1:
            A("s_waitcnt lgkmcnt(0)")
        for u in range(4):
            for kt in range(5):
                cc = "0" if u == 0 else sacc[T][kt]
                A(f"{MF} {sacc[T][kt]}, {Kf.sub((kt * 4 + u) * 4, 4)}, {Qf[T][u]}, {cc}")
    for i in range(8):
        for kt in range(5):
            A(f"ds_read_b64_tr_b16 {Vf.sub(i * 10 + kt * 2, 2)}, {va[i]} offset:{kt * 4096}")
        if i % 2 == 1:
            A("s_waitcnt lgkmcnt(0)")
    A(f"s_mov_b32 s48, {f32bits(math.log2(math.e) / math.sqrt(128.0)):#x}")
    Pr = V.get(20, 4)
    P = [Pr.sub(0, 10), Pr.sub(10, 10)]
    tmp = V.get(4)
    oacc = [accr.sub(i * 4, 4) for i in range(10)]
    for T in range(2):
        A("\n".join(flat(softmax(sacc[T], P[T], tmp, "s48"))))
    stamp(A, 11)
    A("s_nop 1")
    for ks in range(2):
        for i in range(8):
            cc = "0" if ks == 0 else oacc[i]
            A(f"{MF} {oacc[i]}, {Vf.sub(i * 10 + ks * 4, 4)}, {P[0].sub(ks * 4, 4)}, {cc}")
        for i in range(2):
            cc = "0" if ks == 0 else oacc[8 + i]
            A(f"{MF} {oacc[8 + i]}, {Vf.sub(i * 10 + ks * 4, 4)}, {P[1].sub(ks * 4, 4)}, {cc}")
    for i in range(8):
        A(f"{MF16} {oacc[i]}, {Vf.sub(i * 10 + 8, 2)}, {P[0].sub(8, 2)}, {oacc[i]}")
    for i in range(2):
        A(f"{MF16} {oacc[8 + i]}, {Vf.sub(i * 10 + 8, 2)}, {P[1].sub(8, 2)}, {oacc[8 + i]}")
    for p in range(5):
        if p < 4:
            A(f"s_add_u32 s3, s20, {p}")
            A("s_and_b32 s3, s3, 3")
            A("s_mul_i32 s3, s3, 5")
            A("s_add_u32 s3, s3, s20")
        else:
            A("s_mul_i32 s3, s20, 5")
            A("s_add_u32 s3, s3, 4")
            A("s_nop 4")
        A("s_lshl_b32 s3, s3, 10")
        ob = bB.sub(p * 4, 4)
        for hh in range(2):
            for hf in range(2):
                o = oacc[2 * p + hh]
                A(f"v_cvt_pk_bf16_f32 {ob[hh * 2 + hf]}, {o[2 * hf]}, {o[2 * hf + 1]}")
        A(f"buffer_store_dwordx4 {ob}, {l16}, s[40:43], s3 offen {'nt' if 'O' in NT else ''}")
    stamp(A, 12)
    stamp_out(A, 0, 14)
    A.label(f"{name}_end")
    A("s_endpgm")
    check(A.lines, name)
    return A.text(), descriptor(name, V.hi, AG.hi, 100)


def kernel2():
    A = Asm()
    name = "mha_oproj_kernel"
    prologue(A, name, 256)
    V = Alloc("v", 1, 256)
    lane, q, g, r, c, r4 = lane_setup(A, V)
    t0, t1, t2 = V.get(), V.get(), V.get()
    A("s_lshr_b32 s21, s2, 5")
    A("s_bfe_u32 s22, s2, 0x20001")
    A("s_bfe_u32 s3, s2, 0x20003")
    A("s_and_b32 s23, s2, 1")
    A("s_lshl_b32 s23, s23, 2")
    A("s_add_u32 s23, s23, s3")
    A("s_lshl_b32 s3, s21, 5")
    A("s_lshl_b32 s48, s22, 3")
    A("s_add_u32 s3, s3, s48")
    A("s_mul_i32 s50, s3, 20480")
    A("s_lshl_b32 s51, s22, 21")
    A("s_lshl_b32 s3, s23, 8")
    A("s_add_u32 s51, s51, s3")
    A("s_lshl_b32 s3, s21, 3")
    A("s_add_u32 s3, s3, s23")
    A("s_lshl_b32 s3, s3, 2")
    A("s_add_u32 s3, s3, s22")
    A("s_lshl_b32 s3, s3, 2")
    A("s_add_u32 s3, s3, s20")
    A("s_mul_i32 s52, s3, 10240")
    A(f"s_add_u32 s52, s52, {POFF}")
    vo = [V.get() for _ in range(5)]
    vw = [V.get() for _ in range(8)]
    l16 = V.get()
    A(f"v_lshlrev_b32 {l16}, 4, {lane}")
    A(f"v_lshlrev_b32 {vo[0]}, 4, v0")
    for j in range(1, 5):
        A(f"v_add_u32 {vo[j]}, {j * 4096}, {vo[0]}")
    A(f"v_and_b32 {t1}, 7, {r4}")
    A(f"v_lshlrev_b32 {t1}, 1, {t1}")
    A(f"v_xor_b32 {t1}, {q}, {t1}")
    A(f"v_lshlrev_b32 {t1}, 4, {t1}")
    A(f"v_lshl_add_u32 {vw[0]}, {r4}, 11, {t1}")
    for j in range(1, 8):
        A(f"v_add_u32 {vw[j]}, {j * 16 * 2048}, {vw[0]}")
    A("s_waitcnt lgkmcnt(0)")
    srd(A, 24, 18, 19, 50, 8 * 20480)
    srd(A, 28, 12, 13, 51, 1024 * 2048 - 1792)
    srd(A, 40, 18, 19, 52, 10240)

    def dma_stage(st):
        slot = (st % 3) * SLOT
        pre = [f"s_mov_b32 s54, {st * 20480}", f"s_mov_b32 s55, {st << 18}"]
        gx = dma_groups("s[24:27]", vo, "s54", slot, 0, "s49")
        gq = dma_groups("s[28:31]", vw, "s55", slot, 5, "s49", "nt" if "o" in NT else "")
        gx[0] = pre + gx[0]
        return gx + gq

    oa = [V.get() for _ in range(3)]
    wa = [[V.get() for _ in range(3)] for _ in range(2)]
    for k in range(3):
        A(f"v_add_u32 {oa[k]}, {k * 65536}, {l16}")
    A(f"v_lshl_add_u32 {t1}, {g}, 2, {r}")
    A(f"v_and_b32 {t0}, 7, {t1}")
    A(f"v_lshlrev_b32 {t1}, 8, {t1}")
    A(f"v_lshl_add_u32 {t1}, {c}, 3, {t1}")
    A("s_lshl_b32 s3, s20, 1")
    for tt in range(2):
        A(f"s_add_u32 s48, s3, {tt}")
        A(f"v_xor_b32 {t2}, s48, {t0}")
        A(f"v_lshl_add_u32 {wa[tt][0]}, {t2}, 5, {t1}")
        A(f"v_add_u32 {wa[tt][1]}, 0x10000, {wa[tt][0]}")
        A(f"v_add_u32 {wa[tt][2]}, 0x20000, {wa[tt][0]}")
    accr = V.get(40, 4)
    acc = [[accr.sub((tt * 5 + t) * 4, 4) for t in range(5)] for tt in range(2)]
    bB = V.get(40, 4)
    bufB = [[bB.sub((p * 5 + t) * 4, 4) for t in range(5)] for p in range(2)]
    bA = V.get(16, 4)
    bufA = [[bA.sub((p * 2 + tt) * 4, 4) for tt in range(2)] for p in range(2)]

    def readsA(st, i, dst):
        out = []
        for tt in range(2):
            for hf in range(2):
                rg, off = lds_ref(wa[tt], (st % 3) * SLOT + 20480 + i * 8192 + hf * 4096)
                out.append(f"ds_read_b64_tr_b16 {dst[tt].sub(2 * hf, 2)}, {rg} offset:{off}")
        return out

    def readsB(st, i, dst):
        out = []
        for t in range(5):
            rg, off = lds_ref(oa, (st % 3) * SLOT + (i * 5 + t) * 1024)
            out.append(f"ds_read_b128 {dst[t]}, {rg} offset:{off}")
        return out

    gemm_loop(A, acc, bufA, bufB, readsA, readsB, dma_stage, [])
    stamp(A, 9)
    for j in range(10):
        A(f"s_mov_b32 s{50 + j}, {j * 1024}")
    order = [(tt, t) for t in range(5) for tt in range(2)]
    for tt, t in order:
        A(f"buffer_store_dwordx4 {acc[tt][t]}, {l16}, s[40:43], s{50 + tt * 5 + t} offen {'nt' if 'P' in NT else ''}")
    stamp(A, 10)
    stamp_out(A, 1, 12)
    A.label(f"{name}_end")
    A("s_endpgm")
    check(A.lines, name)
    return A.text(), descriptor(name, V.hi, 0, 100)


def kernel3():
    A = Asm()
    name = "mha_reduce_kernel"
    prologue(A, name, 256)
    V = Alloc("v", 1, 256)
    l16, q, g, oa = V.get(), V.get(), V.get(), V.get()
    A(f"v_lshlrev_b32 {l16}, 4, v0")
    A(f"v_and_b32 {q}, 15, v0")
    A(f"v_lshrrev_b32 {g}, 4, v0")
    A("s_and_b32 s20, s2, 3")
    A("s_lshr_b32 s3, s2, 2")
    A("s_mul_i32 s50, s3, 163840")
    A("s_mul_i32 s48, s20, 10240")
    A("s_add_u32 s50, s50, s48")
    A(f"s_add_u32 s50, s50, {POFF}")
    A("s_lshr_b32 s21, s2, 5")
    A("s_mul_i32 s51, s21, 163840")
    A("s_and_b32 s3, s2, 31")
    A("s_lshl_b32 s3, s3, 6")
    A("s_add_u32 s51, s51, s3")
    A(f"v_lshlrev_b32 {oa}, 11, {q}")
    A(f"v_lshl_add_u32 {oa}, {g}, 3, {oa}")
    A("s_waitcnt lgkmcnt(0)")
    srd(A, 24, 18, 19, 50, 163840)
    srd(A, 28, 14, 15, 51, 163840 - 1984)
    P = [V.get(40, 4) for _ in range(4)]
    for k in range(4):
        for j in range(10):
            A(f"s_mov_b32 s3, {k * 40960 + j * 1024}")
            A(f"buffer_load_dwordx4 {P[k].sub(j * 4, 4)}, {l16}, s[24:27], s3 offen")
    A("s_waitcnt vmcnt(20)")
    for i in range(40):
        A(f"v_add_f32 {P[0][i]}, {P[0][i]}, {P[1][i]}")
    A("s_waitcnt vmcnt(0)")
    stamp(A, 1)
    for i in range(40):
        A(f"v_add_f32 {P[2][i]}, {P[2][i]}, {P[3][i]}")
    for i in range(40):
        A(f"v_add_f32 {P[0][i]}, {P[0][i]}, {P[2][i]}")
    for tt in range(2):
        for t in range(5):
            j = tt * 5 + t
            o = P[1].sub(j * 2, 2)
            A(f"v_cvt_pk_bf16_f32 {o[0]}, {P[0][j * 4]}, {P[0][j * 4 + 1]}")
            A(f"v_cvt_pk_bf16_f32 {o[1]}, {P[0][j * 4 + 2]}, {P[0][j * 4 + 3]}")
            A(f"s_mov_b32 s3, {t * 32768}")
            A(f"buffer_store_dwordx2 {o}, {oa}, s[28:31], s3 offen offset:{tt * 32}")
    stamp_out(A, 2, 3)
    A.label(f"{name}_end")
    A("s_endpgm")
    check(A.lines, name)
    return A.text(), descriptor(name, V.hi, 0, 100)


def main():
    ks = [kernel1(), kernel2(), kernel3()]
    out = HEADER
    out += "; @launch kernel=mha_attn_kernel grid=(256,1,1) block=(256,1,1) lds=159744\n"
    out += "; @launch kernel=mha_oproj_kernel grid=(256,1,1) block=(256,1,1) lds=159744\n"
    out += "; @launch kernel=mha_reduce_kernel grid=(256,1,1) block=(64,1,1) lds=0\n"
    out += '.amdgcn_target "amdgcn-amd-amdhsa--gfx950"\n.text\n'
    for code, _ in ks:
        out += code
    for _, d in ks:
        out += d
    open(sys.argv[1], "w").write(out)


main()
```

```python
import math
import struct
import sys

from asmlib import *

SLOT = 53248
KBASE = 2 * SLOT
VBASE = KBASE + 20480
POFF = 8 << 20
MF = "v_mfma_f32_16x16x32_bf16"
MF16 = "v_mfma_f32_16x16x16_bf16"
OPT = dict(kv.split("=") for kv in sys.argv[2:])
ROT = int(OPT.get("rot", 1))
STAMPS = int(OPT.get("stamps", 0))
NT = OPT.get("nt", "")


def stamp(A, i):
    if STAMPS:
        A(f"s_memrealtime s[{64 + 2 * i}:{65 + 2 * i}]")


def stamp_out(A, kidx, n):
    if not STAMPS:
        return
    A("s_waitcnt vmcnt(0)")
    stamp(A, n - 1)
    A("s_waitcnt lgkmcnt(0)")
    A(f"s_add_u32 s3, s2, {kidx * 256}")
    A("s_lshl_b32 s3, s3, 7")
    A(f"s_add_u32 s3, s3, {64 << 20}")
    srd(A, 44, 18, 19, 3, 128)
    A("v_mov_b32 v1, 0")
    A("v_cmp_eq_u32 vcc, 0, v0")
    A("s_and_saveexec_b64 s[62:63], vcc")
    A(f"s_cbranch_execz stamp_skip_{kidx}")
    for i in range(n):
        A(f"v_mov_b32 v2, s{64 + 2 * i}")
        A(f"v_mov_b32 v3, s{65 + 2 * i}")
        A(f"buffer_store_dwordx2 v[2:3], v1, s[44:47], 0 offen offset:{8 * i}")
    A.label(f"stamp_skip_{kidx}")


def f32bits(x):
    return struct.unpack("<I", struct.pack("<f", x))[0]


def srd(A, d, lo, hi, off_sgpr, size):
    if off_sgpr is None:
        A(f"s_mov_b32 s{d}, s{lo}")
        A(f"s_and_b32 s{d + 1}, s{hi}, 0xffff")
    else:
        A(f"s_add_u32 s{d}, s{lo}, s{off_sgpr}")
        A(f"s_addc_u32 s{d + 1}, s{hi}, 0")
        A(f"s_and_b32 s{d + 1}, s{d + 1}, 0xffff")
    A(f"s_mov_b32 s{d + 2}, {size}")
    A(f"s_mov_b32 s{d + 3}, 0x20000")


def lds_ref(regsets, const):
    k = const // 65536
    return regsets[k], const - k * 65536


def prologue(A, name, nwg):
    A(f".globl {name}")
    A(".p2align 8")
    A(f".type {name},@function")
    A.label(name)
    A(f"s_cmp_ge_u32 s2, {nwg}")
    A(f"s_cbranch_scc1 {name}_end")
    A("s_load_dwordx16 s[4:19], s[0:1], 0")
    stamp(A, 0)


def gemm_loop(A, acc, bufA, bufB, readsA, readsB, dma_stage, tail_dma):
    def mfmas(buf, first):
        out = []
        for t in range(5):
            for tt in range(2):
                c = "0" if first else acc[tt][t]
                out.append(f"{MF} {acc[tt][t]}, {bufA[buf][tt]}, {bufB[buf][t]}, {c}")
        return out

    def reads(st, i):
        ra, rb = readsA(st, i, bufA[i & 1]), readsB(st, i, bufB[i & 1])
        return ra[:2] + rb[:1] + ra[2:] + rb[1:]

    for g in dma_stage(0) + dma_stage(1):
        A("\n".join(g))
    for st in range(8):
        A.comment(f"stage {st}")
        pend = 13 if st < 7 else len(tail_dma)
        A(f"s_waitcnt vmcnt({pend}) lgkmcnt(0)")
        A("s_barrier")
        stamp(A, 1 + st)
        dm = dma_stage(st + 2) if st + 2 < 8 else (tail_dma if st == 6 else [])
        parts = [dm[0:3], dm[3:6], dm[6:10], dm[10:13]]
        for i in range(4):
            rd = reads(st, i)
            if st == 0 and i == 0:
                seq = rd + parts[0]
            else:
                m = mfmas((i + 1) & 1, st == 0 and i == 1)
                seq = interleave(m, rd, start=0, per=1)
                seq = spread(seq, parts[i], lo=2)
            A("\n".join(flat(seq)))
            if i < 3:
                A("s_waitcnt lgkmcnt(0)")
    A("s_waitcnt lgkmcnt(0)")
    A("\n".join(mfmas(1, False)))


def dma_groups(srd_regs, vregs, soff, slot_base, first_index, wreg, mod=""):
    out = []
    for j, vr in enumerate(vregs):
        so = soff[j] if isinstance(soff, list) else soff
        out.append([f"s_add_u32 m0, {wreg}, {slot_base + (first_index + j) * 4096}", "s_nop 0",
                    f"buffer_load_dwordx4 {vr}, {srd_regs}, {so} offen {mod} lds"])
    return out


def softmax(sacc, P, tmp, cs):
    vals = [sacc[kt][r] for kt in range(5) for r in range(4)]
    m, t, nm = tmp[0], tmp[1], tmp[2]
    o = [f"v_max3_f32 {m}, {vals[0]}, {vals[1]}, {vals[2]}"]
    for i in range(3, 19, 2):
        o.append(f"v_max3_f32 {m}, {m}, {vals[i]}, {vals[i + 1]}")
    o.append(f"v_max_f32 {m}, {m}, {vals[19]}")
    for sw in ("v_permlane32_swap_b32", "v_permlane16_swap_b32"):
        o += [[f"v_mov_b32 {t}, {m}", "s_nop 1", f"{sw} {m}, {t}"], f"v_max_f32 {m}, {m}, {t}"]
    o.append(f"v_mul_f32 {nm}, {cs}, {m}")
    for x in vals:
        o.append(f"v_fma_f32 {x}, {x}, {cs}, -{nm}")
    for x in vals:
        o.append(f"v_exp_f32 {x}, {x}")
    o.append(f"v_add_f32 {m}, {vals[0]}, {vals[1]}")
    o.append(f"v_add_f32 {t}, {vals[2]}, {vals[3]}")
    for i in range(4, 20, 2):
        o.append(f"v_add_f32 {m}, {m}, {vals[i]}")
        o.append(f"v_add_f32 {t}, {t}, {vals[i + 1]}")
    o.append(f"v_add_f32 {m}, {m}, {t}")
    for sw in ("v_permlane32_swap_b32", "v_permlane16_swap_b32"):
        o += [[f"v_mov_b32 {t}, {m}", "s_nop 1", f"{sw} {m}, {t}"], f"v_add_f32 {m}, {m}, {t}"]
    o.append([f"v_rcp_f32 {m}, {m}", "s_nop 0"])
    for x in vals:
        o.append(f"v_mul_f32 {x}, {x}, {m}")
    for i in range(10):
        o.append(f"v_cvt_pk_bf16_f32 {P[i]}, {vals[2 * i]}, {vals[2 * i + 1]}")
    return o


def lane_setup(A, V):
    lane, q, g, r, c, r4 = (V.get() for _ in range(6))
    A(f"v_lshrrev_b32 {r4}, 6, v0")
    A(f"v_and_b32 {lane}, 63, v0")
    A(f"v_readfirstlane_b32 s20, {r4}")
    A(f"v_and_b32 {q}, 15, v0")
    A(f"v_lshrrev_b32 {g}, 4, {lane}")
    A(f"v_bfe_u32 {r}, v0, 2, 2")
    A(f"v_and_b32 {c}, 3, v0")
    A(f"v_lshrrev_b32 {r4}, 4, v0")
    A("s_lshl_b32 s49, s20, 10")
    return lane, q, g, r, c, r4


def kernel1():
    A = Asm()
    name = "mha_attn_kernel"
    prologue(A, name, 256)
    V = Alloc("v", 1, 256)
    lane, q, g, r, c, r4 = lane_setup(A, V)
    t0, t1, t2 = V.get(), V.get(), V.get()
    A("s_and_b32 s23, s2, 7")
    A("s_lshr_b32 s21, s2, 5")
    A("s_bfe_u32 s22, s2, 0x20003")
    A("s_lshl_b32 s3, s23, 2")
    A("s_add_u32 s22, s22, s3")
    if ROT == 0:
        A("s_mov_b32 s23, 0")
    if ROT == 2:
        A("s_bfe_u32 s23, s2, 0x20003")
        A("s_lshl_b32 s23, s23, 1")
        A("s_add_u32 s23, s23, s21")
    A("s_lshl_b32 s3, s21, 5")
    A("s_add_u32 s3, s3, s22")
    A("s_mul_i32 s50, s3, 20480")
    A("s_mul_i32 s51, s21, 163840")
    A("s_lshl_b32 s52, s22, 8")
    for j in range(5):
        A(f"s_mov_b32 s{56 + j}, {j * 4096}")
    vx = [V.get() for _ in range(5)]
    vq = [V.get() for _ in range(8)]
    vk, vv = V.get(), V.get()
    A(f"v_xor_b32 {t0}, {q}, {r4}")
    A(f"v_lshlrev_b32 {t0}, 4, {t0}")
    A(f"v_lshl_add_u32 {vx[0]}, {r4}, 11, {t0}")
    A(f"v_lshl_add_u32 {vk}, {r4}, 8, {t0}")
    for j in range(1, 5):
        A(f"v_add_u32 {vx[j]}, {j * 32768}, {vx[0]}")
    A(f"v_lshrrev_b32 {t1}, 3, {r4}")
    A(f"v_lshl_or_b32 {t1}, {t1}, 2, {g}")
    A(f"v_lshlrev_b32 {t1}, 1, {t1}")
    A(f"v_xor_b32 {t1}, {q}, {t1}")
    A(f"v_lshlrev_b32 {t1}, 4, {t1}")
    A(f"v_lshl_add_u32 {vq[0]}, {r4}, 13, {t1}")
    for j in range(1, 8):
        A(f"v_add_u32 {vq[j]}, {j * 16 * 8192}, {vq[0]}")
    A(f"v_and_b32 {t1}, 7, {r4}")
    A(f"v_lshlrev_b32 {t1}, 1, {t1}")
    A(f"v_xor_b32 {t1}, {q}, {t1}")
    A(f"v_lshlrev_b32 {t1}, 4, {t1}")
    A(f"v_lshl_add_u32 {vv}, {r4}, 8, {t1}")
    A("s_waitcnt lgkmcnt(0)")
    srd(A, 24, 4, 5, 51, 163840)
    srd(A, 28, 10, 11, 52, 8388608 - 7936)
    srd(A, 32, 6, 7, 50, 20480)
    srd(A, 36, 8, 9, 50, 20480)
    srd(A, 40, 18, 19, 50, 20480)

    def dma_stage(st):
        slot = (st % 3) * SLOT
        pre = [f"s_add_u32 s53, s23, {st}", "s_and_b32 s53, s53, 7", "s_lshl_b32 s54, s53, 8", "s_lshl_b32 s55, s53, 20"]
        gx = dma_groups("s[24:27]", vx, "s54", slot, 0, "s49", "nt" if "x" in NT else "")
        gq = dma_groups("s[28:31]", vq, "s55", slot, 5, "s49", "nt" if "q" in NT else "")
        gx[0] = pre + gx[0]
        return gx + gq

    so5 = [f"s{56 + j}" for j in range(5)]
    kvm = "nt" if "k" in NT else ""
    tail = dma_groups("s[32:35]", [vk] * 5, so5, KBASE, 0, "s49", kvm) + dma_groups("s[36:39]", [vv] * 5, so5, KBASE, 5, "s49", kvm)

    xa = [[V.get() for _ in range(3)] for _ in range(4)]
    wa = [[V.get() for _ in range(3)] for _ in range(2)]
    pre = Asm()
    for s4 in range(4):
        pre(f"v_or_b32 {t0}, {4 * s4}, {g}")
        pre(f"v_xor_b32 {t0}, {t0}, {q}")
        pre(f"v_lshlrev_b32 {t0}, 4, {t0}")
        pre(f"v_lshl_add_u32 {xa[s4][0]}, {q}, 8, {t0}")
        pre(f"v_add_u32 {xa[s4][1]}, 0x10000, {xa[s4][0]}")
        pre(f"v_add_u32 {xa[s4][2]}, 0x20000, {xa[s4][0]}")
    pre(f"v_and_b32 {t0}, 1, {g}")
    pre(f"v_lshl_or_b32 {t0}, {t0}, 2, {r}")
    pre(f"v_lshl_add_u32 {t1}, {g}, 3, {r}")
    pre(f"v_lshlrev_b32 {t1}, 8, {t1}")
    pre(f"v_lshl_add_u32 {t1}, {c}, 3, {t1}")
    pre("s_lshl_b32 s3, s20, 1")
    for tt in range(2):
        pre(f"s_add_u32 s48, s3, {tt}")
        pre(f"v_xor_b32 {t2}, s48, {t0}")
        pre(f"v_lshl_add_u32 {wa[tt][0]}, {t2}, 5, {t1}")
        pre(f"v_add_u32 {wa[tt][1]}, 0x10000, {wa[tt][0]}")
        pre(f"v_add_u32 {wa[tt][2]}, 0x20000, {wa[tt][0]}")
    A(pre.text())

    accr = V.get(40, 4)
    acc = [[accr.sub((tt * 5 + t) * 4, 4) for t in range(5)] for tt in range(2)]
    bB = V.get(40, 4)
    bufB = [[bB.sub((p * 5 + t) * 4, 4) for t in range(5)] for p in range(2)]
    bA = V.get(16, 4)
    bufA = [[bA.sub((p * 2 + tt) * 4, 4) for tt in range(2)] for p in range(2)]

    def readsA(st, i, dst):
        out = []
        for tt in range(2):
            for hf in range(2):
                rg, off = lds_ref(wa[tt], (st % 3) * SLOT + 20480 + i * 8192 + hf * 1024)
                out.append(f"ds_read_b64_tr_b16 {dst[tt].sub(2 * hf, 2)}, {rg} offset:{off}")
        return out

    def readsB(st, i, dst):
        out = []
        for t in range(5):
            rg, off = lds_ref(xa[i], (st % 3) * SLOT + t * 4096)
            out.append(f"ds_read_b128 {dst[t]}, {rg} offset:{off}")
        return out

    gemm_loop(A, acc, bufA, bufB, readsA, readsB, dma_stage, tail)

    ka = [V.get() for _ in range(8)]
    va = [V.get() for _ in range(8)]
    l16, qown = V.get(), V.get()
    A(f"v_lshlrev_b32 {l16}, 4, {lane}")
    A(f"v_lshrrev_b32 {t0}, 1, {g}")
    A(f"v_xor_b32 {t0}, {t0}, {q}")
    A(f"v_lshlrev_b32 {t0}, 4, {t0}")
    A(f"v_lshl_add_u32 {t0}, {q}, 8, {t0}")
    A(f"v_and_b32 {t1}, 1, {g}")
    A(f"v_lshl_add_u32 {t0}, {t1}, 3, {t0}")
    A(f"v_add_u32 {ka[0]}, {KBASE}, {t0}")
    for i in range(1, 8):
        A(f"v_xor_b32 {ka[i]}, {32 * i}, {ka[0]}")
    A(f"v_lshl_add_u32 {t0}, {g}, 2, {r}")
    A(f"v_and_b32 {t1}, 7, {t0}")
    A(f"v_lshlrev_b32 {t1}, 5, {t1}")
    A(f"v_lshl_add_u32 {t0}, {t0}, 8, {t1}")
    A(f"v_lshl_add_u32 {t0}, {c}, 3, {t0}")
    A(f"v_add_u32 {t0}, {VBASE}, {t0}")
    for i in range(8):
        A(f"s_lshl_b32 s3, s20, 1")
        A(f"s_add_u32 s3, s3, {i}")
        A(f"s_and_b32 s3, s3, 7")
        A(f"s_lshl_b32 s3, s3, 5")
        A(f"v_xor_b32 {va[i]}, s3, {t0}")
    A(f"v_add_u32 {t2}, s49, {l16}")
    A("s_lshl_b32 s3, s20, 12")
    A(f"v_add_u32 {qown}, s3, {l16}")
    qb = bB
    for t in range(5):
        for tt in range(2):
            for hf in range(2):
                A(f"v_cvt_pk_bf16_f32 {qb[t * 4 + tt * 2 + hf]}, {acc[tt][t][2 * hf]}, {acc[tt][t][2 * hf + 1]}")
        A(f"ds_write_b128 {t2}, {qb.sub(t * 4, 4)} offset:{t * 4096}")
    stamp(A, 9)
    A("s_waitcnt vmcnt(0) lgkmcnt(0)")
    A("s_barrier")
    stamp(A, 10)
    Qf = [[bB.sub((T * 4 + u) * 4, 4) for u in range(4)] for T in range(2)]
    AG = Alloc("a", 0, 256)
    Kf = AG.get(80, 4)
    Vf = AG.get(80, 4)
    for u in range(4):
        A(f"ds_read_b128 {Qf[0][u]}, {qown} offset:{u * 1024}")
        for kt in range(5):
            for hf in range(2):
                A(f"ds_read_b64 {Kf.sub((kt * 4 + u) * 4 + 2 * hf, 2)}, {ka[2 * u + hf]} offset:{kt * 4096}")
        A("s_waitcnt lgkmcnt(0)")
    for u in range(4):
        A(f"ds_read_b128 {Qf[1][u]}, {l16} offset:{16384 + u * 1024}")
    sr = V.get(40, 4)
    sacc = [[sr.sub((T * 5 + kt) * 4, 4) for kt in range(5)] for T in range(2)]
    for T in range(2):
        if T == 1:
            A("s_waitcnt lgkmcnt(0)")
        for u in range(4):
            for kt in range(5):
                cc = "0" if u == 0 else sacc[T][kt]
                A(f"{MF} {sacc[T][kt]}, {Kf.sub((kt * 4 + u) * 4, 4)}, {Qf[T][u]}, {cc}")
    for i in range(8):
        for kt in range(5):
            A(f"ds_read_b64_tr_b16 {Vf.sub(i * 10 + kt * 2, 2)}, {va[i]} offset:{kt * 4096}")
        if i % 2 == 1:
            A("s_waitcnt lgkmcnt(0)")
    A(f"s_mov_b32 s48, {f32bits(math.log2(math.e) / math.sqrt(128.0)):#x}")
    Pr = V.get(20, 4)
    P = [Pr.sub(0, 10), Pr.sub(10, 10)]
    tmp = V.get(4)
    oacc = [accr.sub(i * 4, 4) for i in range(10)]
    for T in range(2):
        A("\n".join(flat(softmax(sacc[T], P[T], tmp, "s48"))))
    stamp(A, 11)
    A("s_nop 1")
    for ks in range(2):
        for i in range(8):
            cc = "0" if ks == 0 else oacc[i]
            A(f"{MF} {oacc[i]}, {Vf.sub(i * 10 + ks * 4, 4)}, {P[0].sub(ks * 4, 4)}, {cc}")
        for i in range(2):
            cc = "0" if ks == 0 else oacc[8 + i]
            A(f"{MF} {oacc[8 + i]}, {Vf.sub(i * 10 + ks * 4, 4)}, {P[1].sub(ks * 4, 4)}, {cc}")
    for i in range(8):
        A(f"{MF16} {oacc[i]}, {Vf.sub(i * 10 + 8, 2)}, {P[0].sub(8, 2)}, {oacc[i]}")
    for i in range(2):
        A(f"{MF16} {oacc[8 + i]}, {Vf.sub(i * 10 + 8, 2)}, {P[1].sub(8, 2)}, {oacc[8 + i]}")
    for p in range(5):
        if p < 4:
            A(f"s_add_u32 s3, s20, {p}")
            A("s_and_b32 s3, s3, 3")
            A("s_mul_i32 s3, s3, 5")
            A("s_add_u32 s3, s3, s20")
        else:
            A("s_mul_i32 s3, s20, 5")
            A("s_add_u32 s3, s3, 4")
            A("s_nop 4")
        A("s_lshl_b32 s3, s3, 10")
        ob = bB.sub(p * 4, 4)
        for hh in range(2):
            for hf in range(2):
                o = oacc[2 * p + hh]
                A(f"v_cvt_pk_bf16_f32 {ob[hh * 2 + hf]}, {o[2 * hf]}, {o[2 * hf + 1]}")
        A(f"buffer_store_dwordx4 {ob}, {l16}, s[40:43], s3 offen {'nt' if 'O' in NT else ''}")
    stamp(A, 12)
    stamp_out(A, 0, 14)
    A.label(f"{name}_end")
    A("s_endpgm")
    check(A.lines, name)
    return A.text(), descriptor(name, V.hi, AG.hi, 100)


def kernel2():
    A = Asm()
    name = "mha_oproj_kernel"
    prologue(A, name, 256)
    V = Alloc("v", 1, 256)
    lane, q, g, r, c, r4 = lane_setup(A, V)
    t0, t1, t2 = V.get(), V.get(), V.get()
    A("s_lshr_b32 s21, s2, 5")
    A("s_bfe_u32 s22, s2, 0x20001")
    A("s_bfe_u32 s3, s2, 0x20003")
    A("s_and_b32 s23, s2, 1")
    A("s_lshl_b32 s23, s23, 2")
    A("s_add_u32 s23, s23, s3")
    A("s_lshl_b32 s3, s21, 5")
    A("s_lshl_b32 s48, s22, 3")
    A("s_add_u32 s3, s3, s48")
    A("s_mul_i32 s50, s3, 20480")
    A("s_lshl_b32 s51, s22, 21")
    A("s_lshl_b32 s3, s23, 8")
    A("s_add_u32 s51, s51, s3")
    A("s_lshl_b32 s3, s21, 3")
    A("s_add_u32 s3, s3, s23")
    A("s_lshl_b32 s3, s3, 2")
    A("s_add_u32 s3, s3, s22")
    A("s_lshl_b32 s3, s3, 2")
    A("s_add_u32 s3, s3, s20")
    A("s_mul_i32 s52, s3, 10240")
    A(f"s_add_u32 s52, s52, {POFF}")
    A("s_mov_b32 s61, 0")
    if ROT == 2:
        A("s_bfe_u32 s61, s2, 0x20003")
        A("s_lshl_b32 s61, s61, 1")
        A("s_add_u32 s61, s61, s21")
    vo = [V.get() for _ in range(5)]
    vw = [V.get() for _ in range(8)]
    l16 = V.get()
    A(f"v_lshlrev_b32 {l16}, 4, {lane}")
    A(f"v_lshlrev_b32 {vo[0]}, 4, v0")
    for j in range(1, 5):
        A(f"v_add_u32 {vo[j]}, {j * 4096}, {vo[0]}")
    A(f"v_and_b32 {t1}, 7, {r4}")
    A(f"v_lshlrev_b32 {t1}, 1, {t1}")
    A(f"v_xor_b32 {t1}, {q}, {t1}")
    A(f"v_lshlrev_b32 {t1}, 4, {t1}")
    A(f"v_lshl_add_u32 {vw[0]}, {r4}, 11, {t1}")
    for j in range(1, 8):
        A(f"v_add_u32 {vw[j]}, {j * 16 * 2048}, {vw[0]}")
    A("s_waitcnt lgkmcnt(0)")
    srd(A, 24, 18, 19, 50, 8 * 20480)
    srd(A, 28, 12, 13, 51, 1024 * 2048 - 1792)
    srd(A, 40, 18, 19, 52, 10240)

    def dma_stage(st):
        slot = (st % 3) * SLOT
        pre = [f"s_add_u32 s53, s61, {st}", "s_and_b32 s53, s53, 7", "s_mul_i32 s54, s53, 20480", "s_lshl_b32 s55, s53, 18"]
        gx = dma_groups("s[24:27]", vo, "s54", slot, 0, "s49")
        gq = dma_groups("s[28:31]", vw, "s55", slot, 5, "s49", "nt" if "o" in NT else "")
        gx[0] = pre + gx[0]
        return gx + gq

    oa = [V.get() for _ in range(3)]
    wa = [[V.get() for _ in range(3)] for _ in range(2)]
    for k in range(3):
        A(f"v_add_u32 {oa[k]}, {k * 65536}, {l16}")
    A(f"v_lshl_add_u32 {t1}, {g}, 2, {r}")
    A(f"v_and_b32 {t0}, 7, {t1}")
    A(f"v_lshlrev_b32 {t1}, 8, {t1}")
    A(f"v_lshl_add_u32 {t1}, {c}, 3, {t1}")
    A("s_lshl_b32 s3, s20, 1")
    for tt in range(2):
        A(f"s_add_u32 s48, s3, {tt}")
        A(f"v_xor_b32 {t2}, s48, {t0}")
        A(f"v_lshl_add_u32 {wa[tt][0]}, {t2}, 5, {t1}")
        A(f"v_add_u32 {wa[tt][1]}, 0x10000, {wa[tt][0]}")
        A(f"v_add_u32 {wa[tt][2]}, 0x20000, {wa[tt][0]}")
    accr = V.get(40, 4)
    acc = [[accr.sub((tt * 5 + t) * 4, 4) for t in range(5)] for tt in range(2)]
    bB = V.get(40, 4)
    bufB = [[bB.sub((p * 5 + t) * 4, 4) for t in range(5)] for p in range(2)]
    bA = V.get(16, 4)
    bufA = [[bA.sub((p * 2 + tt) * 4, 4) for tt in range(2)] for p in range(2)]

    def readsA(st, i, dst):
        out = []
        for tt in range(2):
            for hf in range(2):
                rg, off = lds_ref(wa[tt], (st % 3) * SLOT + 20480 + i * 8192 + hf * 4096)
                out.append(f"ds_read_b64_tr_b16 {dst[tt].sub(2 * hf, 2)}, {rg} offset:{off}")
        return out

    def readsB(st, i, dst):
        out = []
        for t in range(5):
            rg, off = lds_ref(oa, (st % 3) * SLOT + (i * 5 + t) * 1024)
            out.append(f"ds_read_b128 {dst[t]}, {rg} offset:{off}")
        return out

    gemm_loop(A, acc, bufA, bufB, readsA, readsB, dma_stage, [])
    stamp(A, 9)
    for j in range(10):
        A(f"s_mov_b32 s{50 + j}, {j * 1024}")
    order = [(tt, t) for t in range(5) for tt in range(2)]
    for tt, t in order:
        A(f"buffer_store_dwordx4 {acc[tt][t]}, {l16}, s[40:43], s{50 + tt * 5 + t} offen {'nt' if 'P' in NT else ''}")
    stamp(A, 10)
    stamp_out(A, 1, 12)
    A.label(f"{name}_end")
    A("s_endpgm")
    check(A.lines, name)
    return A.text(), descriptor(name, V.hi, 0, 100)


def kernel3():
    A = Asm()
    name = "mha_reduce_kernel"
    prologue(A, name, 256)
    V = Alloc("v", 1, 256)
    l16, q, g, oa = V.get(), V.get(), V.get(), V.get()
    A(f"v_lshlrev_b32 {l16}, 4, v0")
    A(f"v_and_b32 {q}, 15, v0")
    A(f"v_lshrrev_b32 {g}, 4, v0")
    A("s_and_b32 s20, s2, 3")
    A("s_lshr_b32 s3, s2, 2")
    A("s_mul_i32 s50, s3, 163840")
    A("s_mul_i32 s48, s20, 10240")
    A("s_add_u32 s50, s50, s48")
    A(f"s_add_u32 s50, s50, {POFF}")
    A("s_lshr_b32 s21, s2, 5")
    A("s_mul_i32 s51, s21, 163840")
    A("s_and_b32 s3, s2, 31")
    A("s_lshl_b32 s3, s3, 6")
    A("s_add_u32 s51, s51, s3")
    A(f"v_lshlrev_b32 {oa}, 11, {q}")
    A(f"v_lshl_add_u32 {oa}, {g}, 3, {oa}")
    A("s_waitcnt lgkmcnt(0)")
    srd(A, 24, 18, 19, 50, 163840)
    srd(A, 28, 14, 15, 51, 163840 - 1984)
    P = [V.get(40, 4) for _ in range(4)]
    for k in range(4):
        for j in range(10):
            A(f"s_mov_b32 s3, {k * 40960 + j * 1024}")
            A(f"buffer_load_dwordx4 {P[k].sub(j * 4, 4)}, {l16}, s[24:27], s3 offen")
    A("s_waitcnt vmcnt(20)")
    for i in range(40):
        A(f"v_add_f32 {P[0][i]}, {P[0][i]}, {P[1][i]}")
    A("s_waitcnt vmcnt(0)")
    stamp(A, 1)
    for i in range(40):
        A(f"v_add_f32 {P[2][i]}, {P[2][i]}, {P[3][i]}")
    for i in range(40):
        A(f"v_add_f32 {P[0][i]}, {P[0][i]}, {P[2][i]}")
    for tt in range(2):
        for t in range(5):
            j = tt * 5 + t
            o = P[1].sub(j * 2, 2)
            A(f"v_cvt_pk_bf16_f32 {o[0]}, {P[0][j * 4]}, {P[0][j * 4 + 1]}")
            A(f"v_cvt_pk_bf16_f32 {o[1]}, {P[0][j * 4 + 2]}, {P[0][j * 4 + 3]}")
            A(f"s_mov_b32 s3, {t * 32768}")
            A(f"buffer_store_dwordx2 {o}, {oa}, s[28:31], s3 offen offset:{tt * 32}")
    stamp_out(A, 2, 3)
    A.label(f"{name}_end")
    A("s_endpgm")
    check(A.lines, name)
    return A.text(), descriptor(name, V.hi, 0, 100)


def main():
    ks = [kernel1(), kernel2(), kernel3()]
    out = HEADER
    out += "; @launch kernel=mha_attn_kernel grid=(256,1,1) block=(256,1,1) lds=159744\n"
    out += "; @launch kernel=mha_oproj_kernel grid=(256,1,1) block=(256,1,1) lds=159744\n"
    out += "; @launch kernel=mha_reduce_kernel grid=(256,1,1) block=(64,1,1) lds=0\n"
    out += '.amdgcn_target "amdgcn-amd-amdhsa--gfx950"\n.text\n'
    for code, _ in ks:
        out += code
    for _, d in ks:
        out += d
    open(sys.argv[1], "w").write(out)


main()
```

```python
import re


def v(n, cnt=1):
    return f"v{n}" if cnt == 1 else f"v[{n}:{n + cnt - 1}]"


def a(n, cnt=1):
    return f"a{n}" if cnt == 1 else f"a[{n}:{n + cnt - 1}]"


def s(n, cnt=1):
    return f"s{n}" if cnt == 1 else f"s[{n}:{n + cnt - 1}]"


class R:
    def __init__(self, f, n, cnt=1):
        self.f, self.n, self.cnt = f, n, cnt

    def __getitem__(self, i):
        if isinstance(i, slice):
            assert i.stop <= self.cnt
            return R(self.f, self.n + i.start, i.stop - i.start)
        assert 0 <= i < self.cnt, (i, self.cnt)
        return R(self.f, self.n + i, 1)

    def sub(self, off, cnt):
        assert off + cnt <= self.cnt, (off, cnt, self.cnt)
        return R(self.f, self.n + off, cnt)

    def __str__(self):
        return f"{self.f}{self.n}" if self.cnt == 1 else f"{self.f}[{self.n}:{self.n + self.cnt - 1}]"

    __repr__ = __str__


class Alloc:
    def __init__(self, f, start, limit):
        self.f, self.cur, self.limit, self.hi = f, start, limit, start

    def get(self, cnt=1, align=1):
        if cnt >= 2 and align == 1:
            align = 2
        self.cur = (self.cur + align - 1) // align * align
        r = R(self.f, self.cur, cnt)
        self.cur += cnt
        assert self.cur <= self.limit, f"out of {self.f} registers: {self.cur} > {self.limit}"
        self.hi = max(self.hi, self.cur)
        return r


class Op:
    def __init__(self, kind, tag, text=None):
        self.kind, self.tag, self.text = kind, tag, text


def VM(tag, text):
    return Op("vm", tag, text)


def LG(tag, text):
    return Op("lg", tag, text)


def SM(text):
    return Op("sm", "smem", text)


def W(vm=(), lg=()):
    return Op("wait", (tuple(vm) if not isinstance(vm, str) else (vm,), tuple(lg) if not isinstance(lg, str) else (lg,)))


class Asm:
    def __init__(self):
        self.lines = []
        self.vmq, self.lgq = [], []

    def __call__(self, item):
        if isinstance(item, (list, tuple)):
            for it in item:
                self(it)
            return
        if isinstance(item, Op):
            self._op(item)
            return
        for ln in str(item).split("\n"):
            ln = ln.strip()
            if ln:
                self.lines.append(ln)

    @staticmethod
    def _need(q, tags):
        if "*" in tags:
            return 0 if q else None
        last = max((i for i, t in enumerate(q) if t in tags), default=None)
        return None if last is None else len(q) - 1 - last

    def _op(self, o):
        if o.kind == "vm":
            self.vmq.append(o.tag)
            assert len(self.vmq) <= 63, "vmcnt overflow"
            self.lines.append(o.text)
        elif o.kind in ("lg", "sm"):
            load = len(self.lgq) + self.lgq.count("smem")
            if load + (2 if o.kind == "sm" else 1) > 15:
                keep = 0 if "smem" in self.lgq else 12
                self.lines.append(f"s_waitcnt lgkmcnt({keep})")
                self.lgq = self.lgq[len(self.lgq) - keep:] if keep else []
            self.lgq.append(o.tag)
            self.lines.append(o.text)
        else:
            vt, lt = o.tag
            nv, nl = self._need(self.vmq, vt), self._need(self.lgq, lt)
            if nl is not None and "smem" in self.lgq:
                nl = 0
            parts = []
            if nv is not None:
                parts.append(f"vmcnt({nv})")
                self.vmq = self.vmq[len(self.vmq) - nv:] if nv else []
            if nl is not None:
                parts.append(f"lgkmcnt({nl})")
                self.lgq = self.lgq[len(self.lgq) - nl:] if nl else []
            if parts:
                self.lines.append("s_waitcnt " + " ".join(parts))

    def label(self, name):
        self.lines.append(name + ":")

    def comment(self, text):
        self.lines.append("; " + text)

    def text(self):
        out = []
        for ln in self.lines:
            if ln.endswith(":") or ln.startswith(".") or ln.startswith(";"):
                out.append(ln)
            else:
                out.append("    " + ln)
        return "\n".join(out) + "\n"


def interleave(main, fill, start=0, per=1, every=1):
    out = []
    fi = 0
    for i, m in enumerate(main):
        out.append(m)
        if i >= start and (i - start) % every == 0:
            for _ in range(per):
                if fi < len(fill):
                    out.append(fill[fi])
                    fi += 1
    out.extend(fill[fi:])
    return out


def spread(main, fill, lo=0, hi=None):
    hi = len(main) if hi is None else hi
    n = hi - lo
    slots = [[] for _ in main]
    for j, f in enumerate(fill):
        slots[lo + (j * n) // max(len(fill), 1)].append(f)
    out = []
    for m, sl in zip(main, slots):
        out.append(m)
        out.extend(sl)
    return out


def flat(items):
    out = []
    for it in items:
        if isinstance(it, (list, tuple)):
            out.extend(flat(it))
        else:
            out.append(it)
    return out


_REG = re.compile(r"^-?(?:abs\()?([vas])(?:(\d+)|\[(\d+):(\d+)\])\)?$")
TRANS = ("v_exp_f32", "v_log_f32", "v_rcp_f32", "v_rsq_f32", "v_sqrt_f32", "v_sin_f32", "v_cos_f32")


def regs_of(op):
    op = op.strip()
    if op in ("vcc", "exec", "m0", "scc"):
        return {(op, 0)}
    if op in ("vcc_lo", "vcc_hi"):
        return {("vcc", 0)}
    m = _REG.match(op)
    if not m:
        return set()
    f = m.group(1)
    if m.group(2) is not None:
        return {(f, int(m.group(2)))}
    return {(f, i) for i in range(int(m.group(3)), int(m.group(4)) + 1)}


class Ins:
    def __init__(self, text):
        self.text = text
        body = text.split(";")[0].strip()
        parts = body.split(None, 1)
        self.op = parts[0]
        for suf in ("_e32", "_e64", "_dpp", "_sdwa"):
            if self.op.endswith(suf):
                self.op = self.op[: -len(suf)]
        rest = parts[1] if len(parts) > 1 else ""
        ops = [o.strip() for o in rest.split(",")] if rest else []
        mods = ""
        if ops:
            last = ops[-1].split(None, 1)
            ops[-1] = last[0]
            mods = last[1] if len(last) > 1 else ""
        self.ops, self.mods = ops, mods
        op = self.op
        self.is_mfma = op.startswith("v_mfma")
        self.is_valu = op.startswith("v_") and not self.is_mfma
        self.is_salu = op.startswith("s_") and not op.startswith(("s_load", "s_buffer_load", "s_waitcnt", "s_nop", "s_barrier", "s_cbranch", "s_branch", "s_endpgm", "s_memtime", "s_memrealtime", "s_sleep", "s_setprio"))
        self.is_smem = op.startswith(("s_load", "s_buffer_load", "s_memtime", "s_memrealtime"))
        self.is_ds = op.startswith("ds_")
        self.is_vmem = op.startswith(("buffer_", "global_"))
        self.is_dma = self.is_vmem and (" lds" in " " + mods or "_lds_" in op)
        self.is_store = self.is_vmem and "store" in op
        self.is_dpp = "row_" in mods or "quad_perm" in mods
        rs = [regs_of(o) for o in ops]
        w, r = set(), set()
        if self.is_mfma:
            w = rs[0]
            self.A, self.B, self.C = rs[1], rs[2], rs[3]
            r = rs[1] | rs[2] | rs[3]
            self.passes = 8 if "32x32" in op else 4
        elif self.is_dma or self.is_store or op.startswith(("ds_write", "s_cmp", "s_bitcmp", "buffer_inv", "buffer_wbl2")):
            for x in rs:
                r |= x
            if self.is_dma:
                r |= {("m0", 0)}
        elif "atomic" in op:
            for x in rs:
                r |= x
            if "sc0" in mods:
                w = rs[0]
        elif op.startswith("v_permlane") and "swap" in op:
            w = rs[0] | rs[1]
            r = set(w)
        elif op.startswith(("s_waitcnt", "s_nop", "s_barrier", "s_branch", "s_endpgm", "s_sleep", "s_setprio")):
            pass
        elif op.startswith("s_cbranch"):
            if "vcc" in op:
                r = {("vcc", 0)}
        else:
            if rs:
                w = set(rs[0])
                for x in rs[1:]:
                    r |= x
            if op.startswith(("v_add_co", "v_sub_co", "v_addc_co", "v_subb_co")):
                w |= rs[1]
                r = set().union(*rs[2:])
            if op.startswith(("v_fmac", "v_pk_fmac", "s_addk", "s_mulk", "v_writelane", "s_bitset")):
                r |= rs[0]
            if "saveexec" in op:
                w |= {("exec", 0)}
        self.w, self.r = w, r
        self.store_data = rs[0] if (self.is_store and op.startswith("buffer_")) else (rs[1] if self.is_store else set())
        self.wide_store = self.is_store and ("x4" in op or "x3" in op)

    def states(self):
        if self.op == "s_nop":
            return int(self.ops[0], 0) + 1
        return 1


_cache = {}


def _parsed(text):
    if text not in _cache:
        _cache[text] = Ins(text)
    return _cache[text]


def vec(rs):
    return {x for x in rs if x[0] in "va"}


def sca(rs):
    return {x for x in rs if x[0] in ("s", "vcc")}


def autopad(lines):
    added = 0
    while True:
        short = []
        check(lines, verbose=False, short=short)
        if not short:
            return added
        idx, miss = short[0]
        miss = max(m for i, m in short if i == idx)
        lines.insert(idx, f"s_nop {miss - 1}")
        added += 1


def check(lines, name="", verbose=True, short=None):
    where = [k for k, l in enumerate(lines) if l and not l.endswith(":") and not l.startswith((".", ";"))]
    ins = [_parsed(lines[k]) for k in where]
    probs = []
    vm, lg = [], []
    for i, c in enumerate(ins):
        if c.op == "s_waitcnt":
            t = " ".join(c.ops) + " " + c.mods
            m = re.search(r"vmcnt\((\d+)\)", t)
            if m:
                n = int(m.group(1))
                assert n <= 63
                vm = vm[len(vm) - n:] if n < len(vm) and n > 0 else ([] if n == 0 else vm)
            m = re.search(r"lgkmcnt\((\d+)\)", t)
            if m:
                n = int(m.group(1))
                assert n <= 15
                if n > 0 and any(k == "smem" for k, _, _ in lg):
                    probs.append(f"[{i}] counted lgkmcnt with SMEM outstanding: {c.text}")
                lg = lg[len(lg) - n:] if n < len(lg) and n > 0 else ([] if n == 0 else lg)
        touched = c.r | c.w
        for q in (vm, lg):
            for kind, dst, txt in q:
                if dst & touched and not (c.is_ds and kind == "ds" and not (dst & c.r)) and not (c.is_vmem and kind == "vm" and not (dst & c.r)):
                    probs.append(f"[{i}] '{c.text}' touches {sorted(dst & touched)[:2]} with outstanding '{txt}'")
        if c.is_vmem:
            vm.append(("vm", set(c.w), c.text))
            if len(vm) > 63:
                probs.append(f"[{i}] more than 63 vector-memory ops outstanding (issue stalls): {c.text}")
                vm = vm[1:]
        if c.is_ds:
            lg.append(("ds", set(c.w), c.text))
        if c.is_smem:
            lg.append(("smem", set(c.w), c.text))
        if short:
            break
        dist = 0
        for j in range(i - 1, max(i - 14, -1), -1):
            p = ins[j]
            need = 0
            if p.is_valu:
                if c.is_mfma and vec(p.w) & c.r:
                    need = max(need, 2)
                if c.op.startswith("v_permlane") and vec(p.w) & c.r:
                    need = max(need, 2)
                if c.is_dpp and vec(p.w) & c.r:
                    need = max(need, 2)
                if c.op in ("v_readfirstlane_b32", "v_readlane_b32") and vec(p.w) & c.r:
                    need = max(need, 1)
                if p.op in TRANS and c.is_valu and vec(p.w) & (c.r | c.w):
                    need = max(need, 1)
                if sca(p.w) & c.r:
                    if c.is_valu:
                        need = max(need, 2)
                    if c.is_vmem:
                        need = max(need, 5)
                    if c.op.startswith("v_readlane") or c.op.startswith("v_writelane"):
                        need = max(need, 4)
                if ("exec", 0) in p.w and (c.is_valu or c.is_mfma):
                    need = max(need, 5)
            if p.is_mfma:
                full = 8 if p.passes == 4 else 12
                if c.is_mfma:
                    if p.w & (c.A | c.B):
                        need = max(need, full)
                    if p.w & c.C and not (p.w == c.C and p.op == c.op):
                        need = max(need, full - 2)
                    if p.w & c.w and not (p.w & c.C):
                        need = max(need, full - 2)
                elif (c.is_valu or c.is_vmem or c.is_ds) and p.w & (c.r | c.w):
                    need = max(need, full)
                if c.is_valu and p.C & c.w:
                    need = max(need, 3 if p.passes == 4 else 7)
            if p.is_salu and ("m0", 0) in p.w and c.is_dma:
                need = max(need, 1)
            if p.wide_store and p.store_data & c.w:
                need = max(need, 2 if c.is_valu or c.is_mfma else 1)
            if dist < need:
                if short is not None:
                    short.append((where[i], need - dist))
                probs.append(f"[{i}] hazard: '{p.text}' -> '{c.text}' needs {need} wait states, has {dist}")
            dist += p.states()
    if verbose:
        for pr in probs[:40]:
            print(f"CHECK {name}: {pr}")
        print(f"check {name}: {len(ins)} instructions, {len(probs)} problems")
    return probs


def descriptor(name, vgpr, agpr, sgpr):
    acc = (vgpr + 3) // 4 * 4
    nfv = acc + agpr if agpr else vgpr
    return f""".section .rodata,"a"
.p2align 6
.amdhsa_kernel {name}
  .amdhsa_next_free_vgpr {nfv}
  .amdhsa_next_free_sgpr {sgpr}
  .amdhsa_accum_offset {acc}
  .amdhsa_group_segment_fixed_size 0
  .amdhsa_kernarg_size 64
  .amdhsa_user_sgpr_count 2
  .amdhsa_user_sgpr_kernarg_segment_ptr 1
  .amdhsa_system_sgpr_workgroup_id_x 1
  .amdhsa_float_denorm_mode_32 3
.end_amdhsa_kernel
"""


HEADER = """; Kernarg layout for this problem (64 bytes, ptrs only, base s[0:1]):
;   offset  16: d_in[2] v_cache  shape=(8, 32, 80, 128) dtype=bfloat16 strides=(655360, 20480, 256, 2) contiguous=True
"""
```

```python
import math
import struct
import sys

from asmlib import *

OPT = dict(kv.split("=") for kv in sys.argv[2:])
STAMPS = int(OPT.get("stamps", 0))
PK = int(OPT.get("pk", 1))
RPS = int(OPT.get("rps", 1))
SPIN = 1 << 18

NAME = "standalone__mha_block_cached__near_ridge_kernel"
SLOT = 53248
KBASE = 2 * SLOT
VBASE = KBASE + 20480
QS = 32768
U = [i * 32768 for i in range(5)]
F1OFF = 6 << 20
F2REL = 32768
POFF = 8 << 20
STAMP_OFF = 64 << 20
MF = "v_mfma_f32_16x16x32_bf16"
MF16 = "v_mfma_f32_16x16x16_bf16"

sW, sB, sH, sROT1 = "s20", "s21", "s22", "s23"
X, WQ, KS, VS, OW, WO, OR, FL, DBG, PT, OUT = (f"s[{n}:{n + 3}]" for n in range(24, 68, 4))
sW1K, sSO0, sSO1, sKQ, sNT, sC, sSPIN = "s68", "s70", "s71", "s77", "s78", "s80", "s82"
S4K = [f"s{72 + j}" for j in range(5)]


def f32bits(x):
    return struct.unpack("<I", struct.pack("<f", x))[0]


def srd(d, lo, off, size):
    n = int(d[2:d.index(":")])
    o = []
    if off is None:
        o += [f"s_mov_b32 s{n}, s{lo}", f"s_and_b32 s{n + 1}, s{lo + 1}, 0xffff"]
    else:
        o += [f"s_add_u32 s{n}, s{lo}, {off}", f"s_addc_u32 s{n + 1}, s{lo + 1}, 0", f"s_and_b32 s{n + 1}, s{n + 1}, 0xffff"]
    o += [f"s_mov_b32 s{n + 2}, {size}", f"s_mov_b32 s{n + 3}, 0x20000"]
    return o


def lds_ref(regsets, const):
    k = const // 65536
    return regsets[k], const - k * 65536


def dma(tag, srd_regs, vregs, soff, base, mod=""):
    out = []
    for j, vr in enumerate(vregs):
        so = soff[j] if isinstance(soff, list) else soff
        out.append([f"s_add_u32 m0, {sW1K}, {base + j * 4096}", "s_nop 0",
                    VM(tag, f"buffer_load_dwordx4 {vr}, {srd_regs}, {so} offen {mod} lds".replace("  ", " "))])
    return out


class K:
    pass


def build():
    A = Asm()
    V = Alloc("v", 1, 256)
    AG = Alloc("a", 0, 256)
    vstamp = V.get()
    names = []
    st = {"pend": None, "flip": 0}

    def harvest():
        if st["pend"] is not None:
            pair, idx = st["pend"]
            if "smem" in A.lgq:
                A(W(lg="*"))
            A(f"v_writelane_b32 {vstamp}, s{pair}, {idx}")
            st["pend"] = None

    def stamp(nm, cyc=False):
        if not STAMPS:
            return
        harvest()
        pair = 96 + 2 * st["flip"]
        st["flip"] ^= 1
        A(SM(f"{'s_memtime' if cyc else 's_memrealtime'} s[{pair}:{pair + 1}]"))
        st["pend"] = (pair, len(names))
        names.append(nm)

    A(f".globl {NAME}")
    A(".p2align 8")
    A(f".type {NAME},@function")
    A.label(NAME)
    A("s_cmp_ge_u32 s2, 256")
    A("s_cbranch_scc1 L_end")
    A(SM("s_load_dwordx16 s[4:19], s[0:1], 0"))
    if STAMPS:
        A(f"v_mov_b32 {vstamp}, 0")
    stamp("start")

    lane, q, g, r, c, r4, l16 = (V.get() for _ in range(7))
    t0, t1, t2, t3 = (V.get() for _ in range(4))
    A(f"v_lshrrev_b32 {r4}, 6, v0")
    A(f"v_and_b32 {lane}, 63, v0")
    A(f"v_readfirstlane_b32 {sW}, {r4}")
    A(f"v_and_b32 {q}, 15, v0")
    A(f"v_lshrrev_b32 {g}, 4, {lane}")
    A(f"v_lshrrev_b32 {r4}, 4, v0")
    A("s_and_b32 s69, s2, 7")
    A(f"s_lshr_b32 {sB}, s2, 5")
    A("s_bfe_u32 s81, s2, 0x20003")
    A("s_lshl_b32 s3, s69, 2")
    A(f"s_add_u32 {sH}, s81, s3")
    A(f"s_add_u32 {sROT1}, s69, {sB}")
    A(f"s_lshl_b32 {sW1K}, {sW}, 10")
    A(f"s_mul_i32 s84, {sB}, 163840")
    A(f"s_lshl_b32 s85, {sH}, 8")
    vx = [V.get() for _ in range(5)]
    vq = [V.get() for _ in range(8)]
    vk, vv = V.get(), V.get()
    vf1, vf2 = V.get(), V.get()
    A(f"v_xor_b32 {t0}, {q}, {r4}")
    A(f"v_lshlrev_b32 {t0}, 4, {t0}")
    A(f"v_lshl_add_u32 {vx[0]}, {r4}, 11, {t0}")
    A(f"v_lshl_add_u32 {vk}, {r4}, 8, {t0}")
    for j in range(1, 5):
        A(f"v_add_u32 {vx[j]}, {j * 32768}, {vx[0]}")
    A(f"v_lshrrev_b32 {t1}, 3, {r4}")
    A(f"v_lshl_or_b32 {t1}, {t1}, 2, {g}")
    A(f"v_lshlrev_b32 {t1}, 1, {t1}")
    A(f"v_xor_b32 {t1}, {q}, {t1}")
    A(f"v_lshlrev_b32 {t1}, 4, {t1}")
    A(f"v_lshl_add_u32 {vq[0]}, {r4}, 13, {t1}")
    for j in range(1, 8):
        A(f"v_add_u32 {vq[j]}, {j * 16 * 8192}, {vq[0]}")
    A("s_lshl_b32 s3, s2, 7")
    A(f"s_lshl_b32 s83, {sW}, 2")
    A("s_add_u32 s3, s3, s83")
    A(f"v_lshlrev_b32 {vf1}, 20, {lane}")
    A(f"v_add_u32 {vf1}, s3, {vf1}")
    A(f"v_add_u32 {vf2}, {F2REL}, {vf1}")
    A(f"v_mov_b32 {t3}, 0")
    A(W(lg="*"))
    stamp("karg")
    A(srd(X, 4, "s84", 163840))
    A(srd(WQ, 10, "s85", 8388608 - 7936))
    A(srd(FL, 18, F1OFF, 65536))

    def dma_stage(s_):
        slot = (s_ % 3) * SLOT
        pre = [f"s_add_u32 s3, {sROT1}, {s_}", "s_and_b32 s3, s3, 7", f"s_lshl_b32 {sSO0}, s3, 8", f"s_lshl_b32 {sSO1}, s3, 20"]
        gx = dma(f"st{s_}", X, vx, sSO0, slot)
        gq = dma(f"st{s_}", WQ, vq, sSO1, slot + 20480)
        gx[0] = pre + gx[0]
        return gx + gq

    A(dma_stage(0))
    A(VM("clr", f"buffer_store_dword {t3}, {vf1}, {FL}, 0 offen sc1"))
    A(VM("clr", f"buffer_store_dword {t3}, {vf2}, {FL}, 0 offen sc1"))
    A(dma_stage(1))
    stamp("iss01")

    A(f"v_bfe_u32 {r}, v0, 2, 2")
    A(f"v_and_b32 {c}, 3, v0")
    A(f"v_lshlrev_b32 {l16}, 4, {lane}")
    A(f"s_lshr_b32 {sKQ}, s69, 1")
    A("s_and_b32 s3, s69, 1")
    A("s_lshl_b32 s3, s3, 2")
    A(f"s_add_u32 {sNT}, s3, s81")
    A(f"s_lshl_b32 s3, {sB}, 5")
    A(f"s_add_u32 s83, s3, {sH}")
    A("s_mul_i32 s83, s83, 20480")
    A(srd(KS, 6, "s83", 20480))
    A(srd(VS, 8, "s83", 20480))
    A(srd(OW, 18, "s83", 20480))
    A(f"s_lshl_b32 s83, {sKQ}, 3")
    A("s_add_u32 s83, s83, s3")
    A("s_mul_i32 s83, s83, 20480")
    A(srd(OR, 18, "s83", 8 * 20480))
    A(f"s_lshl_b32 s83, {sKQ}, 21")
    A(f"s_lshl_b32 s3, {sNT}, 8")
    A("s_add_u32 s83, s83, s3")
    A(srd(WO, 12, "s83", 1024 * 2048 - 1792))
    A("s_add_u32 s83, s84, s3")
    A(f"s_lshl_b32 s3, {sW}, 6")
    A("s_add_u32 s83, s83, s3")
    A(srd(OUT, 14, "s83", 163840 - 1984))
    A(srd(PT, 18, POFF, 16 << 20))
    A(srd(DBG, 16, None, 256))
    for j in range(5):
        A(f"s_mov_b32 {S4K[j]}, {j * 4096}")
    A(f"s_mov_b32 {sC}, {f32bits(math.log2(math.e) / math.sqrt(128.0)):#x}")
    A(f"s_mov_b32 {sSPIN}, {SPIN}")
    vw = [V.get() for _ in range(8)]
    A(f"v_and_b32 {t1}, 7, {r4}")
    A(f"v_lshlrev_b32 {t1}, 1, {t1}")
    A(f"v_xor_b32 {t1}, {q}, {t1}")
    A(f"v_lshlrev_b32 {t1}, 4, {t1}")
    A(f"v_lshl_add_u32 {vv}, {r4}, 8, {t1}")
    A(f"v_lshl_add_u32 {vw[0]}, {r4}, 11, {t1}")
    for j in range(1, 8):
        A(f"v_add_u32 {vw[j]}, {j * 16 * 2048}, {vw[0]}")
    xa = [[V.get() for _ in range(3)] for _ in range(4)]
    wa = [[V.get() for _ in range(3)] for _ in range(2)]
    for s4 in range(4):
        A(f"v_or_b32 {t0}, {4 * s4}, {g}")
        A(f"v_xor_b32 {t0}, {t0}, {q}")
        A(f"v_lshlrev_b32 {t0}, 4, {t0}")
        A(f"v_lshl_add_u32 {xa[s4][0]}, {q}, 8, {t0}")
        A(f"v_add_u32 {xa[s4][1]}, 0x10000, {xa[s4][0]}")
        A(f"v_add_u32 {xa[s4][2]}, 0x20000, {xa[s4][0]}")
    A(f"v_and_b32 {t0}, 1, {g}")
    A(f"v_lshl_or_b32 {t0}, {t0}, 2, {r}")
    A(f"v_lshl_add_u32 {t1}, {g}, 3, {r}")
    A(f"v_lshlrev_b32 {t1}, 8, {t1}")
    A(f"v_lshl_add_u32 {t1}, {c}, 3, {t1}")
    A(f"s_lshl_b32 s3, {sW}, 1")
    for tt in range(2):
        A(f"s_add_u32 s83, s3, {tt}")
        A(f"v_xor_b32 {t2}, s83, {t0}")
        A(f"v_lshl_add_u32 {wa[tt][0]}, {t2}, 5, {t1}")
        A(f"v_add_u32 {wa[tt][1]}, 0x10000, {wa[tt][0]}")
        A(f"v_add_u32 {wa[tt][2]}, 0x20000, {wa[tt][0]}")
    ka = [V.get() for _ in range(8)]
    va = [V.get() for _ in range(8)]
    qown, qwr = V.get(), V.get()
    A(f"v_lshrrev_b32 {t0}, 1, {g}")
    A(f"v_xor_b32 {t0}, {t0}, {q}")
    A(f"v_lshlrev_b32 {t0}, 4, {t0}")
    A(f"v_lshl_add_u32 {t0}, {q}, 8, {t0}")
    A(f"v_and_b32 {t1}, 1, {g}")
    A(f"v_lshl_add_u32 {t0}, {t1}, 3, {t0}")
    A(f"v_add_u32 {ka[0]}, {KBASE}, {t0}")
    for i in range(1, 8):
        A(f"v_xor_b32 {ka[i]}, {32 * i}, {ka[0]}")
    trb = V.get()
    A(f"v_lshl_add_u32 {t0}, {g}, 2, {r}")
    A(f"v_and_b32 {t1}, 7, {t0}")
    A(f"v_lshlrev_b32 {t1}, 5, {t1}")
    A(f"v_lshl_add_u32 {t0}, {t0}, 8, {t1}")
    A(f"v_lshl_add_u32 {trb}, {c}, 3, {t0}")
    A(f"v_add_u32 {t0}, {VBASE}, {trb}")
    for i in range(8):
        A(f"s_lshl_b32 s3, {sW}, 1")
        A(f"s_add_u32 s3, s3, {i}")
        A("s_and_b32 s3, s3, 7")
        A("s_lshl_b32 s3, s3, 5")
        A(f"v_xor_b32 {va[i]}, s3, {t0}")
    A(f"v_add_u32 {qwr}, {sW1K}, {l16}")
    A(f"s_lshl_b32 s3, {sW}, 12")
    A(f"v_add_u32 {qown}, s3, {l16}")
    vci_a, vci_r, vone, vci = V.get(), V.get(), V.get(), V.get()
    A(f"s_lshl_b32 s3, {sB}, 5")
    A(f"v_mov_b32 {vci_r}, s3")
    A(f"v_lshl_add_u32 {vci_a}, v0, 20, {vci_r}")
    A(f"v_mov_b32 {vone}, 1")
    vp1, vp2, vpf = V.get(), V.get(), V.get()
    A(f"v_bfe_u32 {t0}, v0, 2, 2")
    A(f"v_bfe_u32 {t1}, v0, 4, 1")
    A(f"v_lshl_add_u32 {t0}, {t0}, 3, {t1}")
    A(f"s_lshl_b32 s83, {sKQ}, 1")
    A("s_add_u32 s83, s83, s3")
    A(f"v_add_u32 {t0}, s83, {t0}")
    A(f"v_lshlrev_b32 {t0}, 7, {t0}")
    A(f"v_lshl_add_u32 {vp1}, {c}, 2, {t0}")
    A("s_and_b32 s86, s2, 0xf9")
    A(f"v_lshl_add_u32 {t0}, {c}, 1, s86")
    A(f"v_lshlrev_b32 {t0}, 7, {t0}")
    A(f"s_lshl_b32 s3, {sW}, 2")
    A(f"s_add_u32 s3, s3, {F2REL}")
    A(f"v_add_u32 {vp2}, s3, {t0}")

    accr = V.get(40, 4)
    acc = [[accr.sub((tt * 5 + t) * 4, 4) for t in range(5)] for tt in range(2)]
    bB = V.get(40, 4)
    bufB = [[bB.sub((p * 5 + t) * 4, 4) for t in range(5)] for p in range(2)]
    bA = V.get(20, 4)
    bufA = [[bA.sub((p * 2 + tt) * 4, 4) for tt in range(2)] for p in range(2)]
    Kf, Vf, Wf = AG.get(80, 4), AG.get(80, 4), AG.get(96, 4)

    def wo_dma(j, ubase):
        g_ = dma(f"wo{j}", WO, vw, sSO1, ubase)
        g_[0] = [f"s_add_u32 s3, {sB}, {j}", "s_and_b32 s3, s3, 7", f"s_lshl_b32 {sSO1}, s3, 18"] + g_[0]
        return g_

    def gemm(nst, tops, readsA, readsB, srcA, extra, lab):
        def mfmas(s_, i):
            buf = i & 1
            out = []
            for t in range(5):
                for tt in range(2):
                    cc = "0" if (s_ == 0 and i == 0) else acc[tt][t]
                    pre = [W(lg=[f"A{s_}_{i}_{tt}", f"B{s_}_{i}_{t}"])]
                    out.append(pre + [f"{MF} {acc[tt][t]}, {srcA(s_, i, tt)}, {bufB[buf][t]}, {cc}"])
            return out

        def reads(s_, i):
            ra, rb = readsA(s_, i), readsB(s_, i)
            return ra[:2] + rb[:1] + ra[2:] + rb[1:]

        for s_ in range(nst):
            A.comment(f"{lab} stage {s_}")
            A(W(vm=tops[s_], lg="*"))
            A("s_barrier")
            stamp(f"{lab}{s_}")
            ex = extra[s_]
            n = len(ex)
            parts = [ex[(n * i) // 4:(n * (i + 1)) // 4] for i in range(4)]
            for i in range(4):
                rd = reads(s_, i)
                if s_ == 0 and i == 0:
                    seq = rd + parts[0]
                else:
                    m = mfmas(s_, i - 1) if i else mfmas(s_ - 1, 3)
                    seq = interleave(m, rd, start=0, per=RPS)
                    seq = spread(seq, parts[i], lo=2)
                A(seq)
        return mfmas(nst - 1, 3)

    def rA1(s_, i):
        out = []
        for tt in range(2):
            for hf in range(2):
                rg, off = lds_ref(wa[tt], (s_ % 3) * SLOT + 20480 + i * 8192 + hf * 1024)
                out.append(LG(f"A{s_}_{i}_{tt}", f"ds_read_b64_tr_b16 {bufA[i & 1][tt].sub(2 * hf, 2)}, {rg} offset:{off}"))
        return out

    def rB1(s_, i):
        out = []
        for t in range(5):
            rg, off = lds_ref(xa[i], (s_ % 3) * SLOT + t * 4096)
            out.append(LG(f"B{s_}_{i}_{t}", f"ds_read_b128 {bufB[i & 1][t]}, {rg} offset:{off}"))
        return out

    kvd = dma("kv", KS, [vk] * 5, S4K, KBASE) + dma("kv", VS, [vv] * 5, S4K, VBASE)
    extra1 = [dma_stage(s_ + 2) for s_ in range(6)] + [kvd, wo_dma(0, U[0])]
    extra1[0] = [[VM("ci", f"buffer_atomic_add {vone}, {vci_a}, {DBG}, 0 offen sc1")]] + extra1[0]
    tops1 = [[f"st{s_}"] for s_ in range(8)]
    tops1[0].append("clr")
    last = gemm(8, tops1, rA1, rB1, lambda s_, i, tt: bufA[i & 1][tt], extra1, "s")
    A(last)
    stamp("qdone")

    qb = V.get(20, 4)
    for t in range(5):
        for tt in range(2):
            for hf in range(2):
                A(f"v_cvt_pk_bf16_f32 {qb[t * 4 + tt * 2 + hf]}, {acc[tt][t][2 * hf]}, {acc[tt][t][2 * hf + 1]}")
        A(LG("qw", f"ds_write_b128 {qwr}, {qb.sub(t * 4, 4)} offset:{QS + t * 4096}"))
    A(W(vm="kv", lg="*"))
    A("s_barrier")
    stamp("bq")

    Qf = [[bB.sub((T * 4 + u) * 4, 4) for u in range(4)] for T in range(2)]
    sr = V.get(40, 4)
    sacc = [[sr.sub((T * 5 + kt) * 4, 4) for kt in range(5)] for T in range(2)]
    P = [bA.sub(0, 10), bA.sub(10, 10)]
    sums = [bB.sub(32, 4), bB.sub(36, 4)]
    ones = V.get(4, 4)
    tmpr = V.get(4, 2)
    oacc = [accr.sub(i * 4, 4) for i in range(10)]

    def rQ(T, u):
        if T == 0:
            return LG(f"Q0{u}", f"ds_read_b128 {Qf[0][u]}, {qown} offset:{QS + u * 1024}")
        return LG(f"Q1{u}", f"ds_read_b128 {Qf[1][u]}, {l16} offset:{QS + 16384 + u * 1024}")

    def rK(u):
        return [LG(f"K{kt}{u}", f"ds_read_b64 {Kf.sub((kt * 4 + u) * 4 + 2 * hf, 2)}, {ka[2 * u + hf]} offset:{kt * 4096}")
                for kt in range(5) for hf in range(2)]

    def mS(T, u):
        return [[W(lg=[f"K{kt}{u}", f"Q{T}{u}"]),
                 f"{MF} {sacc[T][kt]}, {Kf.sub((kt * 4 + u) * 4, 4)}, {Qf[T][u]}, {'0' if u == 0 else sacc[T][kt]}"] for kt in range(5)]

    rV = [LG(f"V{i}", f"ds_read_b64_tr_b16 {Vf.sub(i * 10 + kt * 2, 2)}, {va[i]} offset:{kt * 4096}") for i in range(8) for kt in range(5)]

    def softmax(T):
        vals = [sacc[T][kt][r_] for kt in range(5) for r_ in range(4)]
        m, t, nm = tmpr[0], tmpr[1], tmpr[2]
        o = [f"v_max3_f32 {m}, {vals[0]}, {vals[1]}, {vals[2]}", f"v_max3_f32 {t}, {vals[3]}, {vals[4]}, {vals[5]}"]
        for i in range(6, 18, 4):
            o.append(f"v_max3_f32 {m}, {m}, {vals[i]}, {vals[i + 1]}")
            o.append(f"v_max3_f32 {t}, {t}, {vals[i + 2]}, {vals[i + 3]}")
        o.append(f"v_max3_f32 {m}, {m}, {vals[18]}, {vals[19]}")
        o.append(f"v_max_f32 {m}, {m}, {t}")
        for sw in ("v_permlane32_swap_b32", "v_permlane16_swap_b32"):
            o += [f"v_mov_b32 {t}, {m}", f"{sw} {m}, {t}", f"v_max_f32 {m}, {m}, {t}"]
        o.append(f"v_mul_f32 {nm}, {sC}, {m}")
        sc = int(sC[1:])
        for i in range(0, 20, 2):
            if PK:
                pr = R("v", vals[i].n, 2)
                o.append(f"v_pk_fma_f32 {pr}, {pr}, s[{sc}:{sc + 1}], {tmpr.sub(2, 2)} op_sel_hi:[1,0,0] neg_lo:[0,0,1] neg_hi:[0,0,1]")
            else:
                o.append(f"v_fma_f32 {vals[i]}, {vals[i]}, {sC}, -{nm}")
                o.append(f"v_fma_f32 {vals[i + 1]}, {vals[i + 1]}, {sC}, -{nm}")
        e = []
        for i in range(10):
            e += [f"v_exp_f32 {vals[2 * i]}, {vals[2 * i]}", f"v_exp_f32 {vals[2 * i + 1]}, {vals[2 * i + 1]}"]
            if i:
                e.append(f"v_cvt_pk_bf16_f32 {P[T][i - 1]}, {vals[2 * i - 2]}, {vals[2 * i - 1]}")
        e.append(f"v_cvt_pk_bf16_f32 {P[T][9]}, {vals[18]}, {vals[19]}")
        return o + e

    def mPV(T, slots):
        out = []
        for ks in range(3):
            op, n = (MF, 4) if ks < 2 else (MF16, 2)
            out.append(f"{op} {sums[T]}, {ones.sub(0, n)}, {P[T].sub(ks * 4, n)}, {'0' if ks == 0 else sums[T]}")
            for i, o in slots:
                out.append(f"{op} {o}, {Vf.sub(i * 10 + ks * 4, n)}, {P[T].sub(ks * 4, n)}, {'0' if ks == 0 else o}")
        return out

    def finish(T, pairs, stage):
        rc = tmpr.sub(2 * T, 2)
        out = [f"v_rcp_f32 {rc[0]}, {sums[T][0]}"]
        for p, o0, o1 in pairs:
            if T == 0:
                out += [f"s_add_u32 s3, {sW}, {p}", "s_and_b32 s3, s3, 3", "s_mul_i32 s3, s3, 5", f"s_add_u32 s3, s3, {sW}", "s_lshl_b32 s3, s3, 10"]
            else:
                out += [f"s_mul_i32 s3, {sW}, 5", "s_add_u32 s3, s3, 4", "s_lshl_b32 s3, s3, 10"]
            ob = stage.sub(p * 4, 4)
            for o in (o0, o1):
                for hf in range(2):
                    if PK:
                        out.append(f"v_pk_mul_f32 {o.sub(2 * hf, 2)}, {o.sub(2 * hf, 2)}, {rc} op_sel_hi:[1,0]")
                    else:
                        out += [f"v_mul_f32 {o[2 * hf + e]}, {o[2 * hf + e]}, {rc[0]}" for e in range(2)]
            for hh, o in enumerate((o0, o1)):
                for hf in range(2):
                    out.append(f"v_cvt_pk_bf16_f32 {ob[hh * 2 + hf]}, {o[2 * hf]}, {o[2 * hf + 1]}")
            out.append(VM("ost", f"buffer_store_dwordx4 {ob}, {l16}, {OW}, s3 offen sc1"))
        return out

    A([rQ(0, 0)] + rK(0))
    for i in range(4):
        A(f"v_mov_b32 {ones[i]}, 0x3f803f80")
    w1 = wo_dma(1, U[2])
    for u in range(4):
        nxt = ([rQ(0, u + 1)] + rK(u + 1)) if u < 3 else ([rQ(1, k) for k in range(4)] + rV[:5])
        seq = interleave(mS(0, u), nxt, per=2)
        A(seq)
        A(w1[2 * u:2 * u + 2])
    m1 = [x for u in range(4) for x in mS(1, u)]
    sm0 = softmax(0)
    A(m1[:4])
    rest = rV[5:]
    seq = spread(sm0, m1[4:], lo=0, hi=len(sm0) - 12)
    seq2 = []
    ri = 0
    for k, it in enumerate(seq):
        seq2.append(it)
        if ri < len(rest) and k % 2 == 0:
            seq2.append(rest[ri])
            ri += 1
    seq2 += rest[ri:]
    A(seq2)
    A(W(lg="*"))
    A("s_barrier")
    stamp("b2")
    pv0 = mPV(0, [(i, oacc[i]) for i in range(8)])
    sm1 = softmax(1)
    seq = spread(sm1, pv0)
    seq = spread(seq, wo_dma(2, U[1]), lo=4)
    A(seq)
    pv1 = mPV(1, [(0, oacc[8]), (1, oacc[9])])
    fin0 = finish(0, [(p, oacc[2 * p], oacc[2 * p + 1]) for p in range(4)], qb)
    A(spread(fin0, pv1, lo=0, hi=30))
    A(finish(1, [(4, oacc[8], oacc[9])], qb))
    stamp("ost")
    A(VM("cir", f"buffer_load_dword {vci}, {vci_r}, {DBG}, 0 offen sc1"))
    A(wo_dma(3, U[3]))
    A(wo_dma(4, U[4]))

    vo = vx
    ob = [xa[i][0] for i in range(4)] + [xa[0][1]]
    wa2 = wa
    A(f"v_lshlrev_b32 {vo[0]}, 4, v0")
    for j in range(1, 5):
        A(f"v_add_u32 {vo[j]}, {j * 4096}, {vo[0]}")
    for i in range(4):
        A(f"s_add_u32 s3, {sKQ}, {i}")
        A("s_and_b32 s3, s3, 3")
        A("s_lshl_b32 s3, s3, 10")
        A(f"v_add_u32 {ob[i]}, s3, {l16}")
    A(f"v_add_u32 {ob[4]}, 4096, {l16}")
    for tt in range(2):
        A(f"s_lshl_b32 s3, {sW}, 6")
        A(f"s_add_u32 s3, s3, {32 * tt}")
        A(f"v_xor_b32 {wa2[tt][0]}, s3, {trb}")
        A(f"v_add_u32 {wa2[tt][1]}, 0x10000, {wa2[tt][0]}")
        A(f"v_add_u32 {wa2[tt][2]}, 0x20000, {wa2[tt][0]}")

    A(W(vm=["wo0", "wo1", "wo2"]))
    A("s_barrier")
    stamp("b3")
    n = 0
    for j, ub in ((0, U[0]), (1, U[2]), (2, U[1])):
        for u in range(4):
            for tt in range(2):
                for hf in range(2):
                    rg, off = lds_ref(wa2[tt], ub + u * 8192 + hf * 4096)
                    A(LG(f"W{n}", f"ds_read_b64_tr_b16 {Wf.sub(((j * 4 + u) * 2 + tt) * 4 + 2 * hf, 2)}, {rg} offset:{off}"))
                    n += 1
    A(W(vm="ost"))
    A(VM("f1", f"buffer_store_dword {vone}, {vf1}, {FL}, 0 offen sc1"))
    stamp("f1set")
    A(W(vm="cir", lg="*"))
    A("s_barrier")

    def spin_tail(loop, done):
        A(f"s_sub_u32 {sSPIN}, {sSPIN}, 1")
        A(f"s_cmp_eq_u32 {sSPIN}, 0")
        A(f"s_cbranch_scc0 {loop}")
        A(f"s_mov_b32 {sSPIN}, 1")
        A.label(done)

    A.label("L_ci")
    A(f"v_readfirstlane_b32 s3, {vci}")
    A("s_cmp_ge_u32 s3, 32")
    A("s_cbranch_scc1 L_ci_done")
    A(f"buffer_load_dword {vci}, {vci_r}, {DBG}, 0 offen sc1")
    A("s_waitcnt vmcnt(0)")
    spin_tail("L_ci", "L_ci_done")

    def poll(lab, addr):
        A.label(lab)
        A(VM("poll", f"buffer_load_dword {vpf}, {addr}, {FL}, 0 offen sc1"))
        A(W(vm="*"))
        A(f"v_cmp_ne_u32 vcc, 1, {vpf}")
        A("s_nop 1")
        A(f"s_cbranch_vccz {lab}_done")
        spin_tail(lab, lab + "_done")

    poll("L_p1", vp1)
    stamp("f1ok")

    order = [3, 4, 0, 1, 2, 5, 6, 7]
    home = {3: U[3], 4: U[4], 5: U[2], 6: U[3], 7: U[4]}

    def o_dma(p):
        g_ = dma(f"o{p}", OR, vo, sSO0, (p % 3) * 20480, "sc1")
        g_[0] = [f"s_add_u32 s3, {sB}, {order[p]}", "s_and_b32 s3, s3, 7", f"s_mul_i32 {sSO0}, s3, 20480"] + g_[0]
        return g_

    A(o_dma(0))
    A(o_dma(1))
    A(wo_dma(5, U[2]))

    def rA2(p, i):
        j = order[p]
        if j not in home:
            return []
        out = []
        for tt in range(2):
            for hf in range(2):
                rg, off = lds_ref(wa2[tt], home[j] + i * 8192 + hf * 4096)
                out.append(LG(f"A{p}_{i}_{tt}", f"ds_read_b64_tr_b16 {bufA[i & 1][tt].sub(2 * hf, 2)}, {rg} offset:{off}"))
        return out

    def rB2(p, i):
        return [LG(f"B{p}_{i}_{t}", f"ds_read_b128 {bufB[i & 1][t]}, {ob[t]} offset:{(p % 3) * 20480 + i * 5120}") for t in range(5)]

    def sA2(p, i, tt):
        j = order[p]
        return bufA[i & 1][tt] if j in home else Wf.sub(((j * 4 + i) * 2 + tt) * 4, 4)

    extra2 = [o_dma(p + 2) if p < 6 else [] for p in range(8)]
    extra2[1] = extra2[1] + wo_dma(6, U[3])
    extra2[2] = extra2[2] + wo_dma(7, U[4])
    tops2 = [[f"o{p}", f"wo{order[p]}"] for p in range(8)]
    last = gemm(8, tops2, rA2, rB2, sA2, extra2, "p")
    last = last[2:] + last[:2]
    A(f"s_lshl_b32 s87, {sKQ}, 2")
    A(f"s_add_u32 s87, s87, {sW}")
    for i in range(1, 5):
        A(f"s_add_u32 s3, {sKQ}, {i}" if i < 4 else f"s_mov_b32 s3, {sW}")
        A("s_and_b32 s3, s3, 3")
        A("s_lshl_b32 s3, s3, 1")
        A("s_add_u32 s3, s3, s86")
        A("s_lshl_b32 s3, s3, 4")
        A("s_add_u32 s3, s3, s87")
        A(f"s_lshl_b32 s{87 + i}, s3, 12")
    A(last)
    stamp("pdone")
    for i in range(1, 5):
        for tt in range(2):
            A(VM("pst", f"buffer_store_dwordx4 {acc[tt][i]}, {l16}, {PT}, s{87 + i} offen offset:{(tt + (2 if i == 4 else 0)) * 1024} sc1"))
    for i in range(1, 4):
        A(f"s_add_u32 s3, {sKQ}, {i}")
        A("s_and_b32 s3, s3, 3")
        A("s_lshl_b32 s83, s2, 2")
        A("s_add_u32 s3, s3, s83")
        A("s_lshl_b32 s3, s3, 2")
        A(f"s_add_u32 s3, s3, {sW}")
        A(f"s_lshl_b32 s{91 + i}, s3, 12")
    oa = t2
    A(f"v_lshlrev_b32 {oa}, 11, {q}")
    A(f"v_lshl_add_u32 {oa}, {g}, 4, {oa}")
    A(f"s_lshl_b32 s85, {sKQ}, 15")
    A(W(vm="pst"))
    A(VM("f2", f"buffer_store_dword {vone}, {vf2}, {FL}, 0 offen sc1"))
    stamp("f2set")
    poll("L_p2", vp2)
    stamp("f2ok")

    def gather(bufs, t, tile0, soff, tagp):
        for i in range(1, 4):
            for tt in range(2):
                A(VM(f"{tagp}{i}", f"buffer_load_dwordx4 {bufs.sub(((i - 1) * 2 + tt) * 4, 4)}, {l16}, {PT}, s{91 + i} offen offset:{(tile0 + tt) * 1024} sc1"))

    def combine(bufs, t, soff, tagp, stg):
        for i in range(1, 4):
            A(W(vm=f"{tagp}{i}"))
            for tt in range(2):
                for hf in range(2):
                    d = acc[tt][t].sub(2 * hf, 2)
                    A(f"v_pk_add_f32 {d}, {d}, {bufs.sub(((i - 1) * 2 + tt) * 4 + 2 * hf, 2)}")
        for tt in range(2):
            for hf in range(2):
                A(f"v_cvt_pk_bf16_f32 {stg[tt * 2 + hf]}, {acc[tt][t][2 * hf]}, {acc[tt][t][2 * hf + 1]}")
        for hf in range(2):
            A(f"v_permlane32_swap_b32 {stg[hf]}, {stg[2 + hf]}")
        for hf in range(2):
            A(f"v_permlane16_swap_b32 {stg[hf]}, {stg[2 + hf]}")
        A(VM("out", f"buffer_store_dwordx4 {stg}, {oa}, {OUT}, {soff} offen"))

    A(f"s_cmp_eq_u32 {sW}, {sKQ}")
    A("s_cbranch_scc1 L_own4")
    save = list(A.vmq)
    gather(sr, 0, 0, None, "ga")
    combine(sr, 0, "s85", "ga", qb.sub(0, 4))
    A("s_branch L_fin")
    A.label("L_own4")
    A.vmq = save
    gather(sr, 0, 0, None, "ga")
    gather(bB, 4, 2, None, "gb")
    A("s_mov_b32 s84, 0x20000")
    combine(sr, 0, "s85", "ga", qb.sub(0, 4))
    combine(bB, 4, "s84", "gb", qb.sub(4, 4))
    A.label("L_fin")
    if STAMPS:
        A("s_waitcnt vmcnt(0)")
        stamp("end")
        A(W(lg="*"))
        harvest()
        A("s_lshl_b32 s3, s2, 8")
        A(f"s_add_u32 s3, s3, {STAMP_OFF}")
        A(srd(X, 18, "s3", 256))
        A(f"v_lshlrev_b32 {t0}, 2, v0")
        A(f"buffer_store_dword {vstamp}, {t0}, {X}, 0 offen")
    A.label("L_end")
    A("s_endpgm")
    n = autopad(A.lines)
    print("autopad inserted", n, "nops; vgpr", V.hi, "agpr", AG.hi)
    check(A.lines, NAME)
    if STAMPS:
        print("names", ",".join(names))
    return A.text(), descriptor(NAME, V.hi, AG.hi, 100), names


def main():
    code, desc, names = build()
    out = HEADER
    out += "; @launch grid=(256,1,1) block=(256,1,1) lds=163840\n"
    if names:
        out += "; stamps: " + ",".join(names) + "\n"
    out += '.amdgcn_target "amdgcn-amd-amdhsa--gfx950"\n.text\n' + code + desc
    open(sys.argv[1], "w").write(out)


main()
```

```python
import math
import struct
import sys

from asmlib import *

OPT = dict(kv.split("=") for kv in sys.argv[2:])
STAMPS = int(OPT.get("stamps", 0))
PK = int(OPT.get("pk", 1))
RPS = int(OPT.get("rps", 1))
P1 = int(OPT.get("p1", 3))
P2 = int(OPT.get("p2", 3))
DEPTH = int(OPT.get("depth", 8))
G2AT = int(OPT.get("g2", 16))
G3AT = int(OPT.get("g3", 28))
PFWO = int(OPT.get("pfwo", 0))
PFN = int(OPT.get("pfn", 4))
AHEAD = int(OPT.get("ahead", 6))
PW6 = int(OPT.get("pw6", 6))
W7AT = int(OPT.get("w7at", 12))
G1AT = int(OPT.get("g1", 5))
CAN = OPT.get("can", "load")
C1AT = int(OPT.get("c1", 88))
GT1 = int(OPT.get("gt1", 97))
GG1 = int(OPT.get("gg1", 100))
C2AT = int(OPT.get("c2", 148))
TAGMUL = 0x9E3779B1
NTKV = "nt" if int(OPT.get("ntkv", 0)) else ""
NB = int(OPT.get("nb", 5))
SPIN = 1 << 20

NAME = "standalone__mha_block_cached__near_ridge_kernel"
SLOT = 53248
KBASE = 2 * SLOT
VBASE = KBASE + 20480
QS = 32768
U = [i * 32768 for i in range(5)]
F1OFF = 6 << 20
F2REL = 32768
POFF = 8 << 20
PSIZE = 16 << 20
STAMP_OFF = 64 << 20
MF = "v_mfma_f32_16x16x32_bf16"
MF16 = "v_mfma_f32_16x16x16_bf16"

sW, sB, sH, sROT1 = "s20", "s21", "s22", "s23"
X, WQ, KS, VS, OW, WO, OR, FL, DBG, PT, OUT = (f"s[{n}:{n + 3}]" for n in range(24, 68, 4))
sW1K, sXCD, sSO0, sSO1, sKQ, sNT, sC, sHH, sSPIN = "s68", "s69", "s70", "s71", "s77", "s78", "s80", "s81", "s82"
S4K = [f"s{72 + j}" for j in range(5)]
sGRP = "s86"
sSEND = {i: f"s{87 + i}" for i in range(1, 5)}
sRECV = {i: f"s{91 + i}" for i in range(1, 4)}
sRECV4 = {1: "s24", 2: "s25", 3: "s26"}
sROW0, sROW4, sOWN4 = "s27", "s28", "s29"
sSEL = [f"s{32 + i}" for i in range(4)]
sTAG = [f"s{36 + i}" for i in range(4)]
sEFF = {(i, f): f"s{40 + 3 * f + i - 1}" for i in range(1, 4) for f in range(2)}
sTAGB = "s46"


def f32bits(x):
    return struct.unpack("<I", struct.pack("<f", x))[0]


def srd(d, lo, off, size):
    n = int(d[2:d.index(":")])
    if off is None:
        o = [f"s_mov_b32 s{n}, s{lo}", f"s_and_b32 s{n + 1}, s{lo + 1}, 0xffff"]
    else:
        o = [f"s_add_u32 s{n}, s{lo}, {off}", f"s_addc_u32 s{n + 1}, s{lo + 1}, 0", f"s_and_b32 s{n + 1}, s{n + 1}, 0xffff"]
    return o + [f"s_mov_b32 s{n + 2}, {size}", f"s_mov_b32 s{n + 3}, 0x20000"]


def lds_ref(regsets, const):
    k = const // 65536
    return regsets[k], const - k * 65536


def dma(tag, srd_regs, vregs, soff, base, mod=""):
    out = []
    for j, vr in enumerate(vregs):
        so = soff[j] if isinstance(soff, list) else soff
        out.append([f"s_add_u32 m0, {sW1K}, {base + j * 4096}", "s_nop 0",
                    VM(tag, f"buffer_load_dwordx4 {vr}, {srd_regs}, {so} offen {mod} lds".replace("  ", " "))])
    return out


def build():
    A = Asm()
    V = Alloc("v", 1, 256)
    AG = Alloc("a", 0, 256)
    vstamp = V.get()
    names = []
    st = {"pend": None, "flip": 0}

    def harvest():
        if st["pend"] is not None:
            pair, idx = st["pend"]
            if "smem" in A.lgq:
                A(W(lg="*"))
            A(f"v_writelane_b32 {vstamp}, s{pair}, {idx}")
            st["pend"] = None

    def stamp(nm):
        if not STAMPS:
            return
        harvest()
        pair = 96 + 2 * st["flip"]
        st["flip"] ^= 1
        A(SM(f"s_memrealtime s[{pair}:{pair + 1}]"))
        st["pend"] = (pair, len(names))
        names.append(nm)

    def spin_tail(loop, done):
        A(f"s_sub_u32 {sSPIN}, {sSPIN}, 1")
        A(f"s_cmp_eq_u32 {sSPIN}, 0")
        A(f"s_cbranch_scc0 {loop}")
        A(f"s_mov_b32 {sSPIN}, 1")
        A.label(done)

    A(f".globl {NAME}")
    A(".p2align 8")
    A(f".type {NAME},@function")
    A.label(NAME)
    A("s_cmp_ge_u32 s2, 256")
    A("s_cbranch_scc1 L_end")
    A(SM("s_load_dwordx16 s[4:19], s[0:1], 0"))
    if STAMPS:
        A(f"v_mov_b32 {vstamp}, 0")
    stamp("start")

    lane, q, g, r, c, r4, l16 = (V.get() for _ in range(7))
    t0, t1, t2, t3 = (V.get() for _ in range(4))
    A(f"v_lshrrev_b32 {r4}, 6, v0")
    A(f"v_and_b32 {lane}, 63, v0")
    A(f"v_readfirstlane_b32 {sW}, {r4}")
    A(f"v_and_b32 {q}, 15, v0")
    A(f"v_lshrrev_b32 {g}, 4, {lane}")
    A(f"v_lshrrev_b32 {r4}, 4, v0")
    A(f"s_and_b32 {sXCD}, s2, 7")
    A(f"s_lshr_b32 {sB}, s2, 5")
    A(f"s_bfe_u32 {sHH}, s2, 0x20003")
    A(f"s_lshl_b32 s3, {sXCD}, 2")
    A(f"s_add_u32 {sH}, {sHH}, s3")
    A(f"s_add_u32 {sROT1}, {sXCD}, {sB}")
    A(f"s_lshl_b32 {sW1K}, {sW}, 10")
    A(f"s_mul_i32 s84, {sB}, 163840")
    A(f"s_lshl_b32 s85, {sH}, 8")
    vx = [V.get() for _ in range(5)]
    vq = [V.get() for _ in range(8)]
    vk, vv = V.get(), V.get()
    vf1, vep, vtag = V.get(), V.get(), V.get()
    A(f"v_xor_b32 {t0}, {q}, {r4}")
    A(f"v_lshlrev_b32 {t0}, 4, {t0}")
    A(f"v_lshl_add_u32 {vx[0]}, {r4}, 11, {t0}")
    A(f"v_lshl_add_u32 {vk}, {r4}, 8, {t0}")
    for j in range(1, 5):
        A(f"v_add_u32 {vx[j]}, {j * 32768}, {vx[0]}")
    A(f"v_lshrrev_b32 {t1}, 3, {r4}")
    A(f"v_lshl_or_b32 {t1}, {t1}, 2, {g}")
    A(f"v_lshlrev_b32 {t1}, 1, {t1}")
    A(f"v_xor_b32 {t1}, {q}, {t1}")
    A(f"v_lshlrev_b32 {t1}, 4, {t1}")
    A(f"v_lshl_add_u32 {vq[0]}, {r4}, 13, {t1}")
    for j in range(1, 8):
        A(f"v_add_u32 {vq[j]}, {j * 16 * 8192}, {vq[0]}")
    A(W(lg="*"))
    stamp("karg")
    A(srd(X, 4, "s84", 163840))
    A(srd(WQ, 10, "s85", 8388608 - 7936))

    def dma_stage(s_):
        slot = (s_ % 3) * SLOT
        pre = [f"s_add_u32 s3, {sROT1}, {s_}", "s_and_b32 s3, s3, 7", f"s_lshl_b32 {sSO0}, s3, 8", f"s_lshl_b32 {sSO1}, s3, 20"]
        gx = dma(f"st{s_}", X, vx, sSO0, slot)
        gq = dma(f"st{s_}", WQ, vq, sSO1, slot + 20480)
        gx[0] = pre + gx[0]
        return gx + gq

    first = dma_stage(0)
    A(first[:10])

    A(srd(FL, 18, F1OFF, 65536))
    A("s_lshl_b32 s3, s2, 7")
    A(f"s_lshl_b32 s83, {sW}, 2")
    A("s_add_u32 s3, s3, s83")
    A(f"v_lshlrev_b32 {vf1}, 20, {lane}")
    A(f"v_add_u32 {vf1}, s3, {vf1}")
    A(f"s_lshl_b32 s3, {sB}, 7")
    A(f"s_add_u32 s3, s3, {F2REL}")
    A(f"v_mov_b32 {vep}, s3")
    A(f"v_bfe_u32 {r}, v0, 2, 2")
    A(f"v_and_b32 {c}, 3, v0")
    A(f"v_lshlrev_b32 {l16}, 4, {lane}")
    A(f"s_lshr_b32 {sKQ}, {sXCD}, 1")
    A(f"s_and_b32 s3, {sXCD}, 1")
    A("s_lshl_b32 s3, s3, 2")
    A(f"s_add_u32 {sNT}, s3, {sHH}")
    A(f"s_lshl_b32 s3, {sB}, 5")
    A(f"s_add_u32 s83, s3, {sH}")
    A("s_mul_i32 s83, s83, 20480")
    A(srd(KS, 6, "s83", 20480))
    A(srd(VS, 8, "s83", 20480))
    A(srd(OW, 18, "s83", 20480))
    A(f"s_lshl_b32 s83, {sKQ}, 3")
    A("s_add_u32 s83, s83, s3")
    A("s_mul_i32 s83, s83, 20480")
    A(srd(OR, 18, "s83", 8 * 20480))
    A(f"s_lshl_b32 s83, {sKQ}, 21")
    A(f"s_lshl_b32 s3, {sNT}, 8")
    A("s_add_u32 s83, s83, s3")
    A(srd(WO, 12, "s83", 1024 * 2048 - 1792))
    A("s_add_u32 s83, s84, s3")
    A(f"s_lshl_b32 s3, {sW}, 6")
    A("s_add_u32 s83, s83, s3")
    A(srd(OUT, 14, "s83", 163840 - 1984))
    A(srd(PT, 18, POFF, PSIZE))
    A(srd(DBG, 16, None, 256))
    for j in range(5):
        A(f"s_mov_b32 {S4K[j]}, {j * 4096}")
    A(f"s_mov_b32 {sC}, {f32bits(math.log2(math.e) / math.sqrt(128.0)):#x}")
    A(f"s_mov_b32 {sSPIN}, {SPIN}")
    vw = [V.get() for _ in range(8)]
    A(f"v_and_b32 {t1}, 7, {r4}")
    A(f"v_lshlrev_b32 {t1}, 1, {t1}")
    A(f"v_xor_b32 {t1}, {q}, {t1}")
    A(f"v_lshlrev_b32 {t1}, 4, {t1}")
    A(f"v_lshl_add_u32 {vv}, {r4}, 8, {t1}")
    A(f"v_lshl_add_u32 {vw[0]}, {r4}, 11, {t1}")
    for j in range(1, 8):
        A(f"v_add_u32 {vw[j]}, {j * 16 * 2048}, {vw[0]}")
    xa = [[V.get() for _ in range(3)] for _ in range(4)]
    wa = [[V.get() for _ in range(3)] for _ in range(2)]
    for s4 in range(4):
        A(f"v_or_b32 {t0}, {4 * s4}, {g}")
        A(f"v_xor_b32 {t0}, {t0}, {q}")
        A(f"v_lshlrev_b32 {t0}, 4, {t0}")
        A(f"v_lshl_add_u32 {xa[s4][0]}, {q}, 8, {t0}")
        A(f"v_add_u32 {xa[s4][1]}, 0x10000, {xa[s4][0]}")
        A(f"v_add_u32 {xa[s4][2]}, 0x20000, {xa[s4][0]}")
    A(f"v_and_b32 {t0}, 1, {g}")
    A(f"v_lshl_or_b32 {t0}, {t0}, 2, {r}")
    A(f"v_lshl_add_u32 {t1}, {g}, 3, {r}")
    A(f"v_lshlrev_b32 {t1}, 8, {t1}")
    A(f"v_lshl_add_u32 {t1}, {c}, 3, {t1}")
    A(f"s_lshl_b32 s3, {sW}, 1")
    for tt in range(2):
        A(f"s_add_u32 s83, s3, {tt}")
        A(f"v_xor_b32 {t2}, s83, {t0}")
        A(f"v_lshl_add_u32 {wa[tt][0]}, {t2}, 5, {t1}")
        A(f"v_add_u32 {wa[tt][1]}, 0x10000, {wa[tt][0]}")
        A(f"v_add_u32 {wa[tt][2]}, 0x20000, {wa[tt][0]}")
    ka = [V.get() for _ in range(8)]
    va = [V.get() for _ in range(8)]
    qown, qwr = V.get(), V.get()
    A(f"v_lshrrev_b32 {t0}, 1, {g}")
    A(f"v_xor_b32 {t0}, {t0}, {q}")
    A(f"v_lshlrev_b32 {t0}, 4, {t0}")
    A(f"v_lshl_add_u32 {t0}, {q}, 8, {t0}")
    A(f"v_and_b32 {t1}, 1, {g}")
    A(f"v_lshl_add_u32 {t0}, {t1}, 3, {t0}")
    A(f"v_add_u32 {ka[0]}, {KBASE}, {t0}")
    for i in range(1, 8):
        A(f"v_xor_b32 {ka[i]}, {32 * i}, {ka[0]}")
    trb = V.get()
    A(f"v_lshl_add_u32 {t0}, {g}, 2, {r}")
    A(f"v_and_b32 {t1}, 7, {t0}")
    A(f"v_lshlrev_b32 {t1}, 5, {t1}")
    A(f"v_lshl_add_u32 {t0}, {t0}, 8, {t1}")
    A(f"v_lshl_add_u32 {trb}, {c}, 3, {t0}")
    A(f"v_add_u32 {t0}, {VBASE}, {trb}")
    for i in range(8):
        A(f"s_lshl_b32 s3, {sW}, 1")
        A(f"s_add_u32 s3, s3, {i}")
        A("s_and_b32 s3, s3, 7")
        A("s_lshl_b32 s3, s3, 5")
        A(f"v_xor_b32 {va[i]}, s3, {t0}")
    A(f"v_add_u32 {qwr}, {sW1K}, {l16}")
    A(f"s_lshl_b32 s3, {sW}, 12")
    A(f"v_add_u32 {qown}, s3, {l16}")
    vci_a, vci_r, vone, vci = V.get(), V.get(), V.get(), V.get()
    A(f"s_lshl_b32 s3, {sB}, 5")
    A(f"v_mov_b32 {vci_r}, s3")
    A(f"v_lshl_add_u32 {vci_a}, v0, 20, {vci_r}")
    A(f"v_mov_b32 {vone}, 1")
    vp1, vpf = V.get(), V.get()
    A(f"v_bfe_u32 {t1}, v0, 4, 1")
    A(f"v_lshl_add_u32 {t0}, {r}, 3, {t1}")
    A(f"s_lshl_b32 s83, {sKQ}, 1")
    A("s_add_u32 s83, s83, s3")
    A(f"v_add_u32 {t0}, s83, {t0}")
    A(f"v_lshlrev_b32 {t0}, 7, {t0}")
    A(f"v_lshl_add_u32 {vp1}, {c}, 2, {t0}")
    A(f"s_and_b32 {sGRP}, s2, 0xf9")
    A(f"s_lshl_b32 s87, {sKQ}, 2")
    A(f"s_add_u32 s87, s87, {sW}")
    for i in range(1, 5):
        A(f"s_add_u32 s3, {sKQ}, {i}" if i < 4 else f"s_mov_b32 s3, {sW}")
        A("s_and_b32 s3, s3, 3")
        A("s_lshl_b32 s3, s3, 1")
        A(f"s_add_u32 s3, s3, {sGRP}")
        A("s_lshl_b32 s3, s3, 4")
        A("s_add_u32 s3, s3, s87")
        A(f"s_lshl_b32 {sSEND[i]}, s3, 12")
    for i in range(1, 4):
        A(f"s_add_u32 s3, {sKQ}, {i}")
        A("s_and_b32 s3, s3, 3")
        A("s_lshl_b32 s83, s2, 2")
        A("s_add_u32 s3, s3, s83")
        A("s_lshl_b32 s3, s3, 2")
        A(f"s_add_u32 s3, s3, {sW}")
        A(f"s_lshl_b32 {sRECV[i]}, s3, 12")
    vpw, vdump = V.get(), V.get()
    if PFWO:
        A(f"v_lshrrev_b32 {vpw}, 1, v0")
        A(f"v_lshlrev_b32 {vpw}, 11, {vpw}")
        A(f"v_and_b32 {t0}, 1, v0")
        A(f"v_lshl_add_u32 {vpw}, {t0}, 7, {vpw}")
        A(f"s_and_b32 s79, {sB}, {PFN - 1}")
    stamp("setup")
    A(first[10:])

    A(VM("ep", f"buffer_load_dword {vtag}, {vep}, {FL}, 0 offen sc1"))
    A(dma_stage(1))
    stamp("iss1")

    accr = V.get(40, 4)
    acc = [[accr.sub((tt * 5 + t) * 4, 4) for t in range(5)] for tt in range(2)]
    bB = V.get(40, 4)
    bufB = [[bB.sub((p * 5 + t) * 4, 4) for t in range(5)] for p in range(2)]
    bA = V.get(20, 4)
    bufA = [[bA.sub((p * 2 + tt) * 4, 4) for tt in range(2)] for p in range(2)]
    Wf = AG.get(256, 4)
    Kf, Vf = Wf.sub(96, 80), Wf.sub(176, 80)
    sWO = "s95"

    def wo_dma(j, ubase):
        pre = [f"s_add_u32 s3, {sB}, {j}", "s_and_b32 s3, s3, 7", f"s_lshl_b32 {sWO}, s3, 18"]
        g_ = dma(f"wo{j}", WO, vw, sWO, ubase)
        g_[0] = pre + g_[0]
        return g_

    def mfmas1(s_, i):
        buf = i & 1
        out = []
        for t in range(5):
            for tt in range(2):
                cc = "0" if (s_ == 0 and i == 0) else acc[tt][t]
                out.append([W(lg=[f"A{s_}_{i}_{tt}", f"B{s_}_{i}_{t}"]), f"{MF} {acc[tt][t]}, {bufA[buf][tt]}, {bufB[buf][t]}, {cc}"])
        return out

    def reads1(s_, i):
        ra, rb = [], []
        for tt in range(2):
            for hf in range(2):
                rg, off = lds_ref(wa[tt], (s_ % 3) * SLOT + 20480 + i * 8192 + hf * 1024)
                ra.append(LG(f"A{s_}_{i}_{tt}", f"ds_read_b64_tr_b16 {bufA[i & 1][tt].sub(2 * hf, 2)}, {rg} offset:{off}"))
        for t in range(5):
            rg, off = lds_ref(xa[i], (s_ % 3) * SLOT + t * 4096)
            rb.append(LG(f"B{s_}_{i}_{t}", f"ds_read_b128 {bufB[i & 1][t]}, {rg} offset:{off}"))
        return ra[:2] + rb[:1] + ra[2:] + rb[1:]

    extra1 = [dma_stage(s_ + 2) for s_ in range(6)] + [dma("k", KS, [vk] * 5, S4K, KBASE, NTKV), dma("v", VS, [vv] * 5, S4K, VBASE, NTKV)]
    if PFWO:
        for n_ in range(PFN):
            grp = [f"s_lshl_b32 s3, {sB}, 18", f"s_cmp_eq_u32 s79, {n_}", "s_cselect_b32 s83, s3, 0x400000",
                   VM("pf", f"buffer_load_dword {vdump}, {vpw}, {WO}, s83 offen")]
            extra1[PFWO + n_] = extra1[PFWO + n_] + [grp]
    extra1[1] = [[VM("ci", f"buffer_atomic_add {vone}, {vci_a}, {DBG}, 0 offen sc1")]] + extra1[1]
    for s_ in range(8):
        A.comment(f"q-projection stage {s_}")
        A(W(vm=f"st{s_}", lg="*"))
        A("s_barrier")
        stamp(f"s{s_}")
        ex = extra1[s_]
        n = len(ex)
        parts = [ex[(n * i) // 4:(n * (i + 1)) // 4] for i in range(4)]
        if s_ == 6:
            parts = [ex[:3], ex[3:], [], []]
        for i in range(4):
            rd = reads1(s_, i)
            if s_ == 0 and i == 0:
                seq = rd + parts[0]
            else:
                m = mfmas1(s_, i - 1) if i else mfmas1(s_ - 1, 3)
                seq = spread(interleave(m, rd, start=0, per=RPS), parts[i], lo=2)
            A(seq)
    A(mfmas1(7, 3))
    stamp("qdone")

    vnew = vk
    A(f"v_add_u32 {vnew}, 1, {vtag}")
    A(f"s_mov_b32 s3, {TAGMUL:#x}")
    A(f"v_mul_lo_u32 {vtag}, {vnew}, s3")
    qb = V.get(20, 4)
    for t in range(5):
        for tt in range(2):
            for hf in range(2):
                A(f"v_cvt_pk_bf16_f32 {qb[t * 4 + tt * 2 + hf]}, {acc[tt][t][2 * hf]}, {acc[tt][t][2 * hf + 1]}")
        A(LG("qw", f"ds_write_b128 {qwr}, {qb.sub(t * 4, 4)} offset:{QS + t * 4096}"))
    A(W(vm="k", lg="*"))
    A("s_barrier")
    stamp("bq")

    Qf = [[bB.sub((T * 4 + u) * 4, 4) for u in range(4)] for T in range(2)]
    sr = V.get(40, 4)
    sacc = [[sr.sub((T * 5 + kt) * 4, 4) for kt in range(5)] for T in range(2)]
    P = [bA.sub(0, 10), bA.sub(10, 10)]
    sums = [bB.sub(32, 4), bB.sub(36, 4)]
    ones = qb.sub(16, 4)
    tmpr = V.get(4, 2)
    oacc = [accr.sub(i * 4, 4) for i in range(10)]

    def rQ(T, u):
        if T == 0:
            return LG(f"Q0{u}", f"ds_read_b128 {Qf[0][u]}, {qown} offset:{QS + u * 1024}")
        return LG(f"Q1{u}", f"ds_read_b128 {Qf[1][u]}, {l16} offset:{QS + 16384 + u * 1024}")

    def rK(u):
        return [LG(f"K{kt}{u}", f"ds_read_b64 {Kf.sub((kt * 4 + u) * 4 + 2 * hf, 2)}, {ka[2 * u + hf]} offset:{kt * 4096}")
                for kt in range(5) for hf in range(2)]

    def mS(T, u):
        return [[W(lg=[f"K{kt}{u}", f"Q{T}{u}"]),
                 f"{MF} {sacc[T][kt]}, {Kf.sub((kt * 4 + u) * 4, 4)}, {Qf[T][u]}, {'0' if u == 0 else sacc[T][kt]}"] for kt in range(5)]

    rV = [LG(f"V{i}{ks}", f"ds_read_b64_tr_b16 {Vf.sub(i * 10 + kt * 2, 2)}, {va[i]} offset:{kt * 4096}")
          for ks in range(3) for i in range(8) for kt in range(2 * ks, min(2 * ks + 2, 5))]

    def softmax(T):
        vals = [sacc[T][kt][r_] for kt in range(5) for r_ in range(4)]
        m, t, nm = tmpr[0], tmpr[1], tmpr[2]
        o = [f"v_max3_f32 {m}, {vals[0]}, {vals[1]}, {vals[2]}", f"v_max3_f32 {t}, {vals[3]}, {vals[4]}, {vals[5]}"]
        for i in range(6, 18, 4):
            o.append(f"v_max3_f32 {m}, {m}, {vals[i]}, {vals[i + 1]}")
            o.append(f"v_max3_f32 {t}, {t}, {vals[i + 2]}, {vals[i + 3]}")
        o.append(f"v_max3_f32 {m}, {m}, {vals[18]}, {vals[19]}")
        o.append(f"v_max_f32 {m}, {m}, {t}")
        for sw in ("v_permlane32_swap_b32", "v_permlane16_swap_b32"):
            o += [f"v_mov_b32 {t}, {m}", f"{sw} {m}, {t}", f"v_max_f32 {m}, {m}, {t}"]
        o.append(f"v_mul_f32 {nm}, {sC}, {m}")
        sc = int(sC[1:])
        for i in range(0, 20, 2):
            if PK:
                pr = R("v", vals[i].n, 2)
                o.append(f"v_pk_fma_f32 {pr}, {pr}, s[{sc}:{sc + 1}], {tmpr.sub(2, 2)} op_sel_hi:[1,0,0] neg_lo:[0,0,1] neg_hi:[0,0,1]")
            else:
                o.append(f"v_fma_f32 {vals[i]}, {vals[i]}, {sC}, -{nm}")
                o.append(f"v_fma_f32 {vals[i + 1]}, {vals[i + 1]}, {sC}, -{nm}")
        for i in range(10):
            o += [f"v_exp_f32 {vals[2 * i]}, {vals[2 * i]}", f"v_exp_f32 {vals[2 * i + 1]}, {vals[2 * i + 1]}"]
            if i:
                o.append(f"v_cvt_pk_bf16_f32 {P[T][i - 1]}, {vals[2 * i - 2]}, {vals[2 * i - 1]}")
        o.append(f"v_cvt_pk_bf16_f32 {P[T][9]}, {vals[18]}, {vals[19]}")
        return o

    def mPV(T, slots):
        out = []
        for ks in range(3):
            op, n = (MF, 4) if ks < 2 else (MF16, 2)
            out.append(f"{op} {sums[T]}, {ones.sub(0, n)}, {P[T].sub(ks * 4, n)}, {'0' if ks == 0 else sums[T]}")
            for i, o in slots:
                out.append([W(lg=f"V{i}{ks}"), f"{op} {o}, {Vf.sub(i * 10 + ks * 4, n)}, {P[T].sub(ks * 4, n)}, {'0' if ks == 0 else o}"])
        return out

    def finish(T, pairs, stage):
        rc = tmpr.sub(2 * T, 2)
        out = [f"v_rcp_f32 {rc[0]}, {sums[T][0]}"]
        for p, o0, o1 in pairs:
            if T == 0:
                out += [f"s_add_u32 s3, {sW}, {p}", "s_and_b32 s3, s3, 3", "s_mul_i32 s3, s3, 5", f"s_add_u32 s3, s3, {sW}", "s_lshl_b32 s3, s3, 10"]
            else:
                out += [f"s_mul_i32 s3, {sW}, 5", "s_add_u32 s3, s3, 4", "s_lshl_b32 s3, s3, 10"]
            ob = stage.sub(p * 4, 4)
            for o in (o0, o1):
                for hf in range(2):
                    if PK:
                        out.append(f"v_pk_mul_f32 {o.sub(2 * hf, 2)}, {o.sub(2 * hf, 2)}, {rc} op_sel_hi:[1,0]")
                    else:
                        out += [f"v_mul_f32 {o[2 * hf + e]}, {o[2 * hf + e]}, {rc[0]}" for e in range(2)]
            for hh, o in enumerate((o0, o1)):
                for hf in range(2):
                    out.append(f"v_cvt_pk_bf16_f32 {ob[hh * 2 + hf]}, {o[2 * hf]}, {o[2 * hf + 1]}")
            out.append(VM("ost", f"buffer_store_dwordx4 {ob}, {l16}, {OW}, s3 offen sc1"))
        return out

    wstream = wo_dma(0, U[0]) + wo_dma(1, U[2]) + wo_dma(2, U[1]) + wo_dma(3, U[3]) + wo_dma(4, U[4])
    assert P1 + P2 <= 16
    A([rQ(0, 0)] + rK(0))
    for i in range(4):
        A(f"v_mov_b32 {ones[i]}, 0x3f803f80")
    for u in range(4):
        nxt = ([rQ(0, u + 1)] + rK(u + 1)) if u < 3 else [rQ(1, k) for k in range(4)]
        A(interleave(mS(0, u), nxt, per=2))
    m1 = [x for u in range(4) for x in mS(1, u)]
    sm0 = softmax(0)
    A(m1[:4])
    A(spread(spread(sm0, m1[4:], lo=0, hi=len(sm0) - 12), wstream[:P1], lo=4))
    A(W(vm="v", lg="*"))
    A("s_barrier")
    stamp("bv")
    pv0 = mPV(0, [(i, oacc[i]) for i in range(8)])
    sm1 = softmax(1)
    A(rV[:8])
    seq = spread(sm1, pv0, lo=4)
    seq = interleave(seq, rV[8:], start=0, per=1)
    seq = spread(seq, wstream[P1:P1 + P2], lo=50)
    A(seq)
    A(W(lg="*"))
    A("s_barrier")
    stamp("b2")
    pv1 = mPV(1, [(0, oacc[8]), (1, oacc[9])])
    fin0 = finish(0, [(p, oacc[2 * p], oacc[2 * p + 1]) for p in range(4)], qb)
    A(spread(fin0, pv1, lo=0, hi=30))
    A(finish(1, [(4, oacc[8], oacc[9])], qb))
    stamp("ost")
    A(VM("cir", f"buffer_load_dword {vci}, {vci_r}, {DBG}, 0 offen sc1"))

    vo = vq
    ob = xa[0]
    wa2 = wa
    A(f"s_mul_i32 s83, {sW}, 5120")
    for j in range(8):
        A(f"s_add_u32 s3, {sB}, {j}")
        A("s_and_b32 s3, s3, 7")
        A("s_mul_i32 s3, s3, 20480")
        A("s_add_u32 s3, s3, s83")
        A(f"v_add_u32 {vo[j]}, s3, {l16}")
    for k in range(3):
        A(f"v_add_u32 {ob[k]}, {k * 65536}, {l16}")
    for tt in range(2):
        A(f"s_lshl_b32 s3, {sW}, 6")
        A(f"s_add_u32 s3, s3, {32 * tt}")
        A(f"v_xor_b32 {wa2[tt][0]}, s3, {trb}")
        A(f"v_add_u32 {wa2[tt][1]}, 0x10000, {wa2[tt][0]}")
        A(f"v_add_u32 {wa2[tt][2]}, 0x20000, {wa2[tt][0]}")
    A(f"s_cmp_eq_u32 {sW}, {sKQ}")
    for i in range(1, 4):
        A(f"s_cselect_b32 {sRECV4[i]}, {sRECV[i]}, {PSIZE}")
    A(f"s_cselect_b32 {sOWN4}, 0xff, 0")
    A(f"s_mov_b32 {sROW4}, 0x40000")
    A(f"s_cselect_b32 {sROW4}, 0x20000, {sROW4}")
    A(f"s_lshl_b32 {sROW0}, {sKQ}, 15")
    oa = vx[0]
    A(f"v_readfirstlane_b32 {sTAG[0]}, {vtag}")
    for i in range(4):
        A(f"s_mov_b32 {sSEL[i]}, {0x07060500 + i:#x}")
    for i in range(1, 4):
        A(f"s_lshr_b32 {sTAG[i]}, {sTAG[0]}, {8 * i}")
    A(f"v_lshlrev_b32 {oa}, 11, {q}")
    A(f"v_lshl_add_u32 {oa}, {g}, 4, {oa}")

    def wo_reads(j, ub):
        out = []
        for u in range(4):
            for tt in range(2):
                for hf in range(2):
                    rg, off = lds_ref(wa2[tt], ub + u * 8192 + hf * 4096)
                    out.append(LG(f"W{j * 4 + u}", f"ds_read_b64_tr_b16 {Wf.sub(((j * 4 + u) * 2 + tt) * 4 + 2 * hf, 2)}, {rg} offset:{off}"))
        return out

    rest = wstream[P1 + P2:]
    nb = NB
    A(rest[:nb])
    A(W(vm="ost"))
    A(VM("f1", f"buffer_store_dword {vtag}, {vf1}, {FL}, 0 offen sc1"))
    stamp("f1set")
    slots = [4, 1, 2, 3, 0]
    ohome = [U[1], U[4], U[0], U[2], U[3]]

    def o_dma(p):
        sl = slots[p]
        pre = [f"s_add_u32 s3, {sKQ}, {sl}", "s_and_b32 s3, s3, 3", f"s_lshl_b32 {sSO0}, s3, 10"] if sl < 4 else [f"s_mov_b32 {sSO0}, 4096"]
        g_ = dma(f"o{p}", OR, vo, sSO0, ohome[p], "sc1")
        g_[0] = pre + g_[0]
        return g_

    done = P1 + P2 + nb
    cut = max(done, 16 + AHEAD)
    A(wstream[done:cut])
    A(W(vm=["wo0", "wo1"]))
    A("s_barrier")
    stamp("b3")
    A(interleave(wstream[cut:], wo_reads(0, U[0]) + wo_reads(1, U[2]), per=2))
    A(W(vm=["wo2", "wo3"], lg="*"))
    A("s_barrier")
    stamp("b4")
    pollop = VM("poll", f"buffer_load_dword {vpf}, {vp1}, {FL}, 0 offen sc1")
    A(interleave(wo_dma(5, U[0]) + [pollop] + wo_dma(6, U[2])[:PW6], wo_reads(2, U[1]) + wo_reads(3, U[3]), per=4))
    A(W(vm=["wo4", "poll"], lg="*"))
    A("s_barrier")
    A.label("L_p1")
    A(f"v_cmp_ne_u32 vcc, {vtag}, {vpf}")
    A("s_nop 1")
    A("s_cbranch_vccz L_p1_done")
    A(pollop.text)
    A("s_waitcnt vmcnt(0)")
    spin_tail("L_p1", "L_p1_done")
    stamp("f1ok")
    A(interleave(wo_dma(6, U[2])[PW6:] + o_dma(0), wo_reads(4, U[4]) + wo_reads(5, U[0]), per=3))
    A(wo_dma(7, U[3])[:AHEAD])
    A(W(vm="wo6", lg="*"))
    A("s_barrier")
    stamp("b5")
    A(interleave(wo_dma(7, U[3])[AHEAD:], wo_reads(6, U[2]), per=4))
    late = o_dma(1)

    quads = [sr.sub(i * 4, 4) for i in range(10)] + [bA.sub(i * 4, 4) for i in range(2)]
    gA = {i: quads[2 * (i - 1):2 * i] for i in range(1, 4)}
    gB = {i: quads[6 + 2 * (i - 1):6 + 2 * i] for i in range(1, 4)}
    xacc = {0: tmpr[0], 1: tmpr[1]}

    groups = [[(3, 0), (1, 1), (2, 1), (3, 1)], [(2, 0), (1, 0)]]
    vcan = vx[1]
    vcan_g = vx[2:4]
    for gi, keys in enumerate(groups):
        A(f"v_mov_b32 {vcan_g[gi]}, {PSIZE}")
        for i, four in keys:
            A(f"s_add_u32 s3, {sRECV4[i] if four else sRECV[i]}, {4080 if four else 2032}")
            A(f"v_writelane_b32 {vcan_g[gi]}, s3, {i - 1 + 4 * four}")
    A(f"s_and_b32 {sTAGB}, {sTAG[0]}, 0xff")

    def canary(tag, gi):
        vcan_a = vcan_g[gi]
        if CAN == "atomic":
            return [f"v_mov_b32 {vcan}, 0", VM(tag, f"buffer_atomic_add {vcan}, {vcan_a}, {PT}, 0 offen sc0 sc1")]
        return [VM(tag, f"buffer_load_dword {vcan}, {vcan_a}, {PT}, 0 offen sc1")]

    def judge():
        return [f"v_and_b32 {vcan}, 0xff, {vcan}", f"v_cmp_eq_u32 vcc, {sTAGB}, {vcan}", "s_nop 3"]

    def gate(tag, keys):
        out = [W(vm=tag)] + judge()
        for i, four in keys:
            out += [f"s_bitcmp1_b32 vcc_lo, {i - 1 + 4 * four}", f"s_cselect_b32 {sEFF[(i, four)]}, {sRECV4[i] if four else sRECV[i]}, {PSIZE}"]
        return out

    def gather(i, four, gated=False):
        so, bufs = (sRECV4[i], gB[i]) if four else (sRECV[i], gA[i])
        if gated and CAN != "off":
            so = sEFF[(i, int(four))]
        return [VM(f"g{i}{int(four)}", f"buffer_load_dwordx4 {bufs[tt]}, {l16}, {PT}, {so} offen offset:{(tt + 2 * four) * 1024} sc1") for tt in range(2)]

    def verify(i, four):
        x = xacc[int(four)]
        return [W(vm=f"g{i}{int(four)}")] + [f"v_bitop3_b32 {x}, {x}, {qd[e]}, {sTAG[e]} bitop3:0xf6" for qd in (gB if four else gA)[i] for e in range(4)]

    def send(sl):
        out = []
        for tt in range(2):
            d = acc[tt][sl]
            out.append([f"v_perm_b32 {d[e]}, {d[e]}, {vtag}, {sSEL[e]}" for e in range(4)]
                       + [VM("snd", f"buffer_store_dwordx4 {d}, {l16}, {PT}, {sSEND[sl]} offen offset:{(tt + (2 if sl == 4 else 0)) * 1024} sc1")])
        return out

    frag = [bB.sub(i * 4, 4) for i in range(DEPTH)]
    after = {k: [] for k in range(160)}

    def place(items, lo, hi):
        for n_, it in enumerate(items):
            after[lo + (n_ * (hi - lo)) // len(items)].append(it)

    place(late, 0, 10)
    after[W7AT].append([W(vm="wo7"), "s_barrier"])
    place(wo_reads(7, U[3]), W7AT + 1, W7AT + 9)
    place(o_dma(2), 12, 30)
    place(o_dma(3), 44, 62)
    place(o_dma(4), 76, 94)
    for p in range(4):
        place(send(slots[p]), 32 * p + 34, 32 * p + 36)
    after[C1AT].append(canary("c1", 0))
    after[GT1].append(gate("c1", groups[0]))
    place([x for i, f in groups[0] for x in gather(i, f, True)], GG1, GG1 + 8)
    after[C2AT].append(canary("c2", 1))

    def rd2(k):
        p, kk = divmod(k, 32)
        rg, off = lds_ref(ob, ohome[p] + kk * 1024)
        if kk == 0:
            A(W(vm=f"o{p}", lg="*" if p == 0 else ()))
            A("s_barrier")
            stamp(f"p{p}")
        A(LG(f"F{k}", f"ds_read_b128 {frag[k % DEPTH]}, {rg} offset:{off}"))

    for k in range(DEPTH - 1):
        rd2(k)
    for k in range(160):
        p, kk = divmod(k, 32)
        sl = slots[p]
        A(W(lg=[f"F{k}", f"W{kk}"]))
        A(f"{MF} {acc[0][sl]}, {Wf.sub(kk * 8, 4)}, {frag[k % DEPTH]}, {'0' if kk == 0 else acc[0][sl]}")
        if k + DEPTH - 1 < 160:
            rd2(k + DEPTH - 1)
        A(f"{MF} {acc[1][sl]}, {Wf.sub(kk * 8 + 4, 4)}, {frag[k % DEPTH]}, {'0' if kk == 0 else acc[1][sl]}")
        A(after[k])
    stamp("pdone")

    def await_canaries(lab, gi, first_tag=None):
        mask = sum(1 << (i - 1 + 4 * four) for i, four in groups[gi])
        A(f"s_or_b32 s83, {sOWN4}, 15")
        A(f"s_and_b32 s83, s83, {mask}")
        if first_tag:
            A(W(vm=first_tag))
            A(f"s_branch {lab}_j")
        A.label(lab + "_w")
        A([o.text if isinstance(o, Op) else o for o in canary("cw", gi)])
        A("s_waitcnt vmcnt(0)")
        A.label(lab + "_j")
        A(judge())
        A("s_and_b32 s3, vcc_lo, s83")
        A("s_cmp_eq_u32 s3, s83")
        A(f"s_cbranch_scc1 {lab}_go")
        spin_tail(lab + "_w", lab + "_go")

    await_canaries("L_a", 1, "c2")
    stamp("cok")
    A([gather(i, f) for i, f in groups[1]])
    for gi, keys in enumerate(groups):
        lab = f"L_c{gi}"
        A.label(lab)
        A([f"v_mov_b32 {xacc[0]}, 0", f"v_mov_b32 {xacc[1]}, 0"][:2 if gi == 0 else 1])
        for i, four in keys:
            A(verify(i, four))
        A(f"v_and_b32 {xacc[0]}, 0xff, {xacc[0]}")
        if gi == 0:
            A(f"v_and_or_b32 {xacc[0]}, {xacc[1]}, {sOWN4}, {xacc[0]}")
        A(f"v_cmp_ne_u32 vcc, 0, {xacc[0]}")
        A("s_nop 1")
        A(f"s_cbranch_vccz {lab}_done")
        await_canaries(lab, gi)
        for i, four in keys:
            A([o.text for o in gather(i, four)])
        A("s_waitcnt vmcnt(0)")
        spin_tail(lab, lab + "_done")
    stamp("gok")

    for t, gg, soff, stg in ((0, gA, sROW0, qb.sub(0, 4)), (4, gB, sROW4, qb.sub(4, 4))):
        for i in (3, 2, 1):
            for tt in range(2):
                for hf in range(2):
                    d = acc[tt][t].sub(2 * hf, 2)
                    A(f"v_pk_add_f32 {d}, {d}, {gg[i][tt].sub(2 * hf, 2)}")
        for tt in range(2):
            for hf in range(2):
                A(f"v_cvt_pk_bf16_f32 {stg[tt * 2 + hf]}, {acc[tt][t][2 * hf]}, {acc[tt][t][2 * hf + 1]}")
        for hf in range(2):
            A(f"v_permlane32_swap_b32 {stg[hf]}, {stg[2 + hf]}")
        for hf in range(2):
            A(f"v_permlane16_swap_b32 {stg[hf]}, {stg[2 + hf]}")
        A(VM("out", f"buffer_store_dwordx4 {stg}, {oa}, {OUT}, {soff} offen"))
    A("s_and_b32 s3, s2, 31")
    A(f"s_or_b32 s3, s3, {sW}")
    A("s_cmp_lg_u32 s3, 0")
    A("s_cbranch_scc1 L_noep")
    A.label("L_ci")
    A(f"v_readfirstlane_b32 s3, {vci}")
    A("s_cmp_ge_u32 s3, 32")
    A("s_cbranch_scc1 L_ci_done")
    A(f"buffer_load_dword {vci}, {vci_r}, {DBG}, 0 offen sc1")
    A("s_waitcnt vmcnt(0)")
    spin_tail("L_ci", "L_ci_done")
    A(f"v_lshl_add_u32 {vep}, {lane}, 20, {vep}")
    A(f"buffer_store_dword {vnew}, {vep}, {FL}, 0 offen sc1")
    A.label("L_noep")
    if STAMPS:
        A("s_waitcnt vmcnt(0)")
        stamp("end")
        A(W(lg="*"))
        harvest()
        A("s_lshl_b32 s3, s2, 8")
        A(f"s_add_u32 s3, s3, {STAMP_OFF}")
        A(srd(KS, 18, "s3", 256))
        A(f"v_lshlrev_b32 {t0}, 2, v0")
        A(f"buffer_store_dword {vstamp}, {t0}, {KS}, 0 offen")
    A.label("L_end")
    A("s_endpgm")
    n = autopad(A.lines)
    print("autopad inserted", n, "nops; vgpr", V.hi, "agpr", AG.hi)
    check(A.lines, NAME)
    return A.text(), descriptor(NAME, V.hi, AG.hi, 100), names


def main():
    code, desc, names = build()
    out = HEADER
    out += "; @launch grid=(256,1,1) block=(256,1,1) lds=163840\n"
    if names:
        out += "; stamps: " + ",".join(names) + "\n"
    out += '.amdgcn_target "amdgcn-amd-amdhsa--gfx950"\n.text\n' + code + desc
    open(sys.argv[1], "w").write(out)


main()
```

```python
import math
import struct
import sys

from asmlib import *

OPT = dict(kv.split("=") for kv in sys.argv[2:])
STAMPS = int(OPT.get("stamps", 0))
PK = int(OPT.get("pk", 1))
RPS = int(OPT.get("rps", 1))
P1 = int(OPT.get("p1", 3))
P2 = int(OPT.get("p2", 3))
DEPTH = int(OPT.get("depth", 8))
G2AT = int(OPT.get("g2", 16))
G3AT = int(OPT.get("g3", 28))
PFWO = int(OPT.get("pfwo", 0))
PFN = int(OPT.get("pfn", 4))
AHEAD = int(OPT.get("ahead", 6))
PW6 = int(OPT.get("pw6", 6))
W7AT = int(OPT.get("w7at", 12))
G1AT = int(OPT.get("g1", 5))
CAN = OPT.get("can", "load")
C1AT = int(OPT.get("c1", 88))
GT1 = int(OPT.get("gt1", 97))
GG1 = int(OPT.get("gg1", 100))
C2AT = int(OPT.get("c2", 148))
CPF = int(OPT.get("cpf", 1))
TAGMUL = 0x9E3779B1
NTKV = "nt" if int(OPT.get("ntkv", 0)) else ""
NB = int(OPT.get("nb", 5))
SPIN = 1 << 20

NAME = "standalone__mha_block_cached__near_ridge_kernel"
SLOT = 53248
KBASE = 2 * SLOT
VBASE = KBASE + 20480
QS = 32768
U = [i * 32768 for i in range(5)]
F1OFF = 6 << 20
F2REL = 32768
POFF = 8 << 20
PSIZE = 16 << 20
STAMP_OFF = 64 << 20
MF = "v_mfma_f32_16x16x32_bf16"
MF16 = "v_mfma_f32_16x16x16_bf16"

sW, sB, sH, sROT1 = "s20", "s21", "s22", "s23"
X, WQ, KS, VS, OW, WO, OR, FL, DBG, PT, OUT = (f"s[{n}:{n + 3}]" for n in range(24, 68, 4))
sW1K, sXCD, sSO0, sSO1, sKQ, sNT, sC, sHH, sSPIN = "s68", "s69", "s70", "s71", "s77", "s78", "s80", "s81", "s82"
S4K = [f"s{72 + j}" for j in range(5)]
sGRP = "s86"
sSEND = {i: f"s{87 + i}" for i in range(1, 5)}
sRECV = {i: f"s{91 + i}" for i in range(1, 4)}
sRECV4 = {1: "s24", 2: "s25", 3: "s26"}
sROW0, sROW4, sOWN4 = "s27", "s28", "s29"
sSEL = [f"s{32 + i}" for i in range(4)]
sTAG = [f"s{36 + i}" for i in range(4)]
sEFF = {(i, f): f"s{40 + 3 * f + i - 1}" for i in range(1, 4) for f in range(2)}
sTAGB = "s46"


def f32bits(x):
    return struct.unpack("<I", struct.pack("<f", x))[0]


def srd(d, lo, off, size):
    n = int(d[2:d.index(":")])
    if off is None:
        o = [f"s_mov_b32 s{n}, s{lo}", f"s_and_b32 s{n + 1}, s{lo + 1}, 0xffff"]
    else:
        o = [f"s_add_u32 s{n}, s{lo}, {off}", f"s_addc_u32 s{n + 1}, s{lo + 1}, 0", f"s_and_b32 s{n + 1}, s{n + 1}, 0xffff"]
    return o + [f"s_mov_b32 s{n + 2}, {size}", f"s_mov_b32 s{n + 3}, 0x20000"]


def lds_ref(regsets, const):
    k = const // 65536
    return regsets[k], const - k * 65536


def dma(tag, srd_regs, vregs, soff, base, mod=""):
    out = []
    for j, vr in enumerate(vregs):
        so = soff[j] if isinstance(soff, list) else soff
        out.append([f"s_add_u32 m0, {sW1K}, {base + j * 4096}", "s_nop 0",
                    VM(tag, f"buffer_load_dwordx4 {vr}, {srd_regs}, {so} offen {mod} lds".replace("  ", " "))])
    return out


def build():
    A = Asm()
    V = Alloc("v", 1, 256)
    AG = Alloc("a", 0, 256)
    vstamp = V.get()
    names = []
    st = {"pend": None, "flip": 0}

    def harvest():
        if st["pend"] is not None:
            pair, idx = st["pend"]
            if "smem" in A.lgq:
                A(W(lg="*"))
            A(f"v_writelane_b32 {vstamp}, s{pair}, {idx}")
            st["pend"] = None

    def stamp(nm):
        if not STAMPS:
            return
        harvest()
        pair = 96 + 2 * st["flip"]
        st["flip"] ^= 1
        A(SM(f"s_memrealtime s[{pair}:{pair + 1}]"))
        st["pend"] = (pair, len(names))
        names.append(nm)

    def spin_tail(loop, done):
        A(f"s_sub_u32 {sSPIN}, {sSPIN}, 1")
        A(f"s_cmp_eq_u32 {sSPIN}, 0")
        A(f"s_cbranch_scc0 {loop}")
        A(f"s_mov_b32 {sSPIN}, 1")
        A.label(done)

    A(f".globl {NAME}")
    A(".p2align 8")
    A(f".type {NAME},@function")
    A.label(NAME)
    A("s_cmp_ge_u32 s2, 256")
    A("s_cbranch_scc1 L_end")
    A(SM("s_load_dwordx16 s[4:19], s[0:1], 0"))
    if STAMPS:
        A(f"v_mov_b32 {vstamp}, 0")
    stamp("start")

    lane, q, g, r, c, r4, l16 = (V.get() for _ in range(7))
    tq = V.get(4, 2)
    t0, t1, t2, t3 = (tq[i] for i in range(4))
    vcp = V.get()
    if CPF:
        A.comment("the workgroups of one die together touch every 128-byte line of this kernel's code once")
        A("s_getpc_b64 s[84:85]")
        A.label("L_pc")
        A("s_lshr_b32 s3, s2, 3")
        if CPF == 1:
            A(f"v_lshrrev_b32 {t2}, 5, v0")
            A(f"v_lshl_add_u32 {t2}, s3, 3, {t2}")
        else:
            A(f"v_mov_b32 {t2}, v0")
        A(f"v_lshlrev_b32 {t2}, 7, {t2}")
        A(f"v_min_u32 {t2}, L_end-L_pc, {t2}")
        A(f"v_mov_b32 {t1}, s85")
        A(f"v_add_co_u32 {t0}, vcc, s84, {t2}")
        A(f"v_addc_co_u32 {t1}, vcc, 0, {t1}, vcc")
        A(VM("cpf", f"global_load_dword {vcp}, {tq.sub(0, 2)}, off"))
    A(f"v_lshrrev_b32 {r4}, 6, v0")
    A(f"v_and_b32 {lane}, 63, v0")
    A(f"v_readfirstlane_b32 {sW}, {r4}")
    A(f"v_and_b32 {q}, 15, v0")
    A(f"v_lshrrev_b32 {g}, 4, {lane}")
    A(f"v_lshrrev_b32 {r4}, 4, v0")
    A(f"s_and_b32 {sXCD}, s2, 7")
    A(f"s_lshr_b32 {sB}, s2, 5")
    A(f"s_bfe_u32 {sHH}, s2, 0x20003")
    A(f"s_lshl_b32 s3, {sXCD}, 2")
    A(f"s_add_u32 {sH}, {sHH}, s3")
    A(f"s_add_u32 {sROT1}, {sXCD}, {sB}")
    A(f"s_lshl_b32 {sW1K}, {sW}, 10")
    A(f"s_mul_i32 s84, {sB}, 163840")
    A(f"s_lshl_b32 s85, {sH}, 8")
    vx = [V.get() for _ in range(5)]
    vq = [V.get() for _ in range(8)]
    vk, vv = V.get(), V.get()
    vf1, vep, vtag = V.get(), V.get(), V.get()
    A(f"v_xor_b32 {t0}, {q}, {r4}")
    A(f"v_lshlrev_b32 {t0}, 4, {t0}")
    A(f"v_lshl_add_u32 {vx[0]}, {r4}, 11, {t0}")
    A(f"v_lshl_add_u32 {vk}, {r4}, 8, {t0}")
    for j in range(1, 5):
        A(f"v_add_u32 {vx[j]}, {j * 32768}, {vx[0]}")
    A(f"v_lshrrev_b32 {t1}, 3, {r4}")
    A(f"v_lshl_or_b32 {t1}, {t1}, 2, {g}")
    A(f"v_lshlrev_b32 {t1}, 1, {t1}")
    A(f"v_xor_b32 {t1}, {q}, {t1}")
    A(f"v_lshlrev_b32 {t1}, 4, {t1}")
    A(f"v_lshl_add_u32 {vq[0]}, {r4}, 13, {t1}")
    for j in range(1, 8):
        A(f"v_add_u32 {vq[j]}, {j * 16 * 8192}, {vq[0]}")
    A(W(lg="*"))
    stamp("karg")
    A(srd(X, 4, "s84", 163840))
    A(srd(WQ, 10, "s85", 8388608 - 7936))

    def dma_stage(s_):
        slot = (s_ % 3) * SLOT
        pre = [f"s_add_u32 s3, {sROT1}, {s_}", "s_and_b32 s3, s3, 7", f"s_lshl_b32 {sSO0}, s3, 8", f"s_lshl_b32 {sSO1}, s3, 20"]
        gx = dma(f"st{s_}", X, vx, sSO0, slot)
        gq = dma(f"st{s_}", WQ, vq, sSO1, slot + 20480)
        gx[0] = pre + gx[0]
        return gx + gq

    first = dma_stage(0)
    A(first[:10])

    A(srd(FL, 18, F1OFF, 65536))
    A("s_lshl_b32 s3, s2, 7")
    A(f"s_lshl_b32 s83, {sW}, 2")
    A("s_add_u32 s3, s3, s83")
    A(f"v_lshlrev_b32 {vf1}, 20, {lane}")
    A(f"v_add_u32 {vf1}, s3, {vf1}")
    A(f"s_lshl_b32 s3, {sB}, 7")
    A(f"s_add_u32 s3, s3, {F2REL}")
    A(f"v_mov_b32 {vep}, s3")
    A(f"v_bfe_u32 {r}, v0, 2, 2")
    A(f"v_and_b32 {c}, 3, v0")
    A(f"v_lshlrev_b32 {l16}, 4, {lane}")
    A(f"s_lshr_b32 {sKQ}, {sXCD}, 1")
    A(f"s_and_b32 s3, {sXCD}, 1")
    A("s_lshl_b32 s3, s3, 2")
    A(f"s_add_u32 {sNT}, s3, {sHH}")
    A(f"s_lshl_b32 s3, {sB}, 5")
    A(f"s_add_u32 s83, s3, {sH}")
    A("s_mul_i32 s83, s83, 20480")
    A(srd(KS, 6, "s83", 20480))
    A(srd(VS, 8, "s83", 20480))
    A(srd(OW, 18, "s83", 20480))
    A(f"s_lshl_b32 s83, {sKQ}, 3")
    A("s_add_u32 s83, s83, s3")
    A("s_mul_i32 s83, s83, 20480")
    A(srd(OR, 18, "s83", 8 * 20480))
    A(f"s_lshl_b32 s83, {sKQ}, 21")
    A(f"s_lshl_b32 s3, {sNT}, 8")
    A("s_add_u32 s83, s83, s3")
    A(srd(WO, 12, "s83", 1024 * 2048 - 1792))
    A("s_add_u32 s83, s84, s3")
    A(f"s_lshl_b32 s3, {sW}, 6")
    A("s_add_u32 s83, s83, s3")
    A(srd(OUT, 14, "s83", 163840 - 1984))
    A(srd(PT, 18, POFF, PSIZE))
    A(srd(DBG, 16, None, 256))
    for j in range(5):
        A(f"s_mov_b32 {S4K[j]}, {j * 4096}")
    A(f"s_mov_b32 {sC}, {f32bits(math.log2(math.e) / math.sqrt(128.0)):#x}")
    A(f"s_mov_b32 {sSPIN}, {SPIN}")
    vw = [V.get() for _ in range(8)]
    A(f"v_and_b32 {t1}, 7, {r4}")
    A(f"v_lshlrev_b32 {t1}, 1, {t1}")
    A(f"v_xor_b32 {t1}, {q}, {t1}")
    A(f"v_lshlrev_b32 {t1}, 4, {t1}")
    A(f"v_lshl_add_u32 {vv}, {r4}, 8, {t1}")
    A(f"v_lshl_add_u32 {vw[0]}, {r4}, 11, {t1}")
    for j in range(1, 8):
        A(f"v_add_u32 {vw[j]}, {j * 16 * 2048}, {vw[0]}")
    xa = [[V.get() for _ in range(3)] for _ in range(4)]
    wa = [[V.get() for _ in range(3)] for _ in range(2)]
    for s4 in range(4):
        A(f"v_or_b32 {t0}, {4 * s4}, {g}")
        A(f"v_xor_b32 {t0}, {t0}, {q}")
        A(f"v_lshlrev_b32 {t0}, 4, {t0}")
        A(f"v_lshl_add_u32 {xa[s4][0]}, {q}, 8, {t0}")
        A(f"v_add_u32 {xa[s4][1]}, 0x10000, {xa[s4][0]}")
        A(f"v_add_u32 {xa[s4][2]}, 0x20000, {xa[s4][0]}")
    A(f"v_and_b32 {t0}, 1, {g}")
    A(f"v_lshl_or_b32 {t0}, {t0}, 2, {r}")
    A(f"v_lshl_add_u32 {t1}, {g}, 3, {r}")
    A(f"v_lshlrev_b32 {t1}, 8, {t1}")
    A(f"v_lshl_add_u32 {t1}, {c}, 3, {t1}")
    A(f"s_lshl_b32 s3, {sW}, 1")
    for tt in range(2):
        A(f"s_add_u32 s83, s3, {tt}")
        A(f"v_xor_b32 {t2}, s83, {t0}")
        A(f"v_lshl_add_u32 {wa[tt][0]}, {t2}, 5, {t1}")
        A(f"v_add_u32 {wa[tt][1]}, 0x10000, {wa[tt][0]}")
        A(f"v_add_u32 {wa[tt][2]}, 0x20000, {wa[tt][0]}")
    ka = [V.get() for _ in range(8)]
    va = [V.get() for _ in range(8)]
    qown, qwr = V.get(), V.get()
    A(f"v_lshrrev_b32 {t0}, 1, {g}")
    A(f"v_xor_b32 {t0}, {t0}, {q}")
    A(f"v_lshlrev_b32 {t0}, 4, {t0}")
    A(f"v_lshl_add_u32 {t0}, {q}, 8, {t0}")
    A(f"v_and_b32 {t1}, 1, {g}")
    A(f"v_lshl_add_u32 {t0}, {t1}, 3, {t0}")
    A(f"v_add_u32 {ka[0]}, {KBASE}, {t0}")
    for i in range(1, 8):
        A(f"v_xor_b32 {ka[i]}, {32 * i}, {ka[0]}")
    trb = V.get()
    A(f"v_lshl_add_u32 {t0}, {g}, 2, {r}")
    A(f"v_and_b32 {t1}, 7, {t0}")
    A(f"v_lshlrev_b32 {t1}, 5, {t1}")
    A(f"v_lshl_add_u32 {t0}, {t0}, 8, {t1}")
    A(f"v_lshl_add_u32 {trb}, {c}, 3, {t0}")
    A(f"v_add_u32 {t0}, {VBASE}, {trb}")
    for i in range(8):
        A(f"s_lshl_b32 s3, {sW}, 1")
        A(f"s_add_u32 s3, s3, {i}")
        A("s_and_b32 s3, s3, 7")
        A("s_lshl_b32 s3, s3, 5")
        A(f"v_xor_b32 {va[i]}, s3, {t0}")
    A(f"v_add_u32 {qwr}, {sW1K}, {l16}")
    A(f"s_lshl_b32 s3, {sW}, 12")
    A(f"v_add_u32 {qown}, s3, {l16}")
    vci_a, vci_r, vone, vci = V.get(), V.get(), V.get(), V.get()
    A(f"s_lshl_b32 s3, {sB}, 5")
    A(f"v_mov_b32 {vci_r}, s3")
    A(f"v_lshl_add_u32 {vci_a}, v0, 20, {vci_r}")
    A(f"v_mov_b32 {vone}, 1")
    vp1, vpf = V.get(), V.get()
    A(f"v_bfe_u32 {t1}, v0, 4, 1")
    A(f"v_lshl_add_u32 {t0}, {r}, 3, {t1}")
    A(f"s_lshl_b32 s83, {sKQ}, 1")
    A("s_add_u32 s83, s83, s3")
    A(f"v_add_u32 {t0}, s83, {t0}")
    A(f"v_lshlrev_b32 {t0}, 7, {t0}")
    A(f"v_lshl_add_u32 {vp1}, {c}, 2, {t0}")
    A(f"s_and_b32 {sGRP}, s2, 0xf9")
    A(f"s_lshl_b32 s87, {sKQ}, 2")
    A(f"s_add_u32 s87, s87, {sW}")
    for i in range(1, 5):
        A(f"s_add_u32 s3, {sKQ}, {i}" if i < 4 else f"s_mov_b32 s3, {sW}")
        A("s_and_b32 s3, s3, 3")
        A("s_lshl_b32 s3, s3, 1")
        A(f"s_add_u32 s3, s3, {sGRP}")
        A("s_lshl_b32 s3, s3, 4")
        A("s_add_u32 s3, s3, s87")
        A(f"s_lshl_b32 {sSEND[i]}, s3, 12")
    for i in range(1, 4):
        A(f"s_add_u32 s3, {sKQ}, {i}")
        A("s_and_b32 s3, s3, 3")
        A("s_lshl_b32 s83, s2, 2")
        A("s_add_u32 s3, s3, s83")
        A("s_lshl_b32 s3, s3, 2")
        A(f"s_add_u32 s3, s3, {sW}")
        A(f"s_lshl_b32 {sRECV[i]}, s3, 12")
    vpw, vdump = V.get(), V.get()
    if PFWO:
        A(f"v_lshrrev_b32 {vpw}, 1, v0")
        A(f"v_lshlrev_b32 {vpw}, 11, {vpw}")
        A(f"v_and_b32 {t0}, 1, v0")
        A(f"v_lshl_add_u32 {vpw}, {t0}, 7, {vpw}")
        A(f"s_and_b32 s79, {sB}, {PFN - 1}")
    stamp("setup")
    A(first[10:])

    A(VM("ep", f"buffer_load_dword {vtag}, {vep}, {FL}, 0 offen sc1"))
    A(dma_stage(1))
    stamp("iss1")

    accr = V.get(40, 4)
    acc = [[accr.sub((tt * 5 + t) * 4, 4) for t in range(5)] for tt in range(2)]
    bB = V.get(40, 4)
    bufB = [[bB.sub((p * 5 + t) * 4, 4) for t in range(5)] for p in range(2)]
    bA = V.get(20, 4)
    bufA = [[bA.sub((p * 2 + tt) * 4, 4) for tt in range(2)] for p in range(2)]
    Wf = AG.get(256, 4)
    Kf, Vf = Wf.sub(96, 80), Wf.sub(176, 80)
    sWO = "s95"

    def wo_dma(j, ubase):
        pre = [f"s_add_u32 s3, {sB}, {j}", "s_and_b32 s3, s3, 7", f"s_lshl_b32 {sWO}, s3, 18"]
        g_ = dma(f"wo{j}", WO, vw, sWO, ubase)
        g_[0] = pre + g_[0]
        return g_

    def mfmas1(s_, i):
        buf = i & 1
        out = []
        for t in range(5):
            for tt in range(2):
                cc = "0" if (s_ == 0 and i == 0) else acc[tt][t]
                out.append([W(lg=[f"A{s_}_{i}_{tt}", f"B{s_}_{i}_{t}"]), f"{MF} {acc[tt][t]}, {bufA[buf][tt]}, {bufB[buf][t]}, {cc}"])
        return out

    def reads1(s_, i):
        ra, rb = [], []
        for tt in range(2):
            for hf in range(2):
                rg, off = lds_ref(wa[tt], (s_ % 3) * SLOT + 20480 + i * 8192 + hf * 1024)
                ra.append(LG(f"A{s_}_{i}_{tt}", f"ds_read_b64_tr_b16 {bufA[i & 1][tt].sub(2 * hf, 2)}, {rg} offset:{off}"))
        for t in range(5):
            rg, off = lds_ref(xa[i], (s_ % 3) * SLOT + t * 4096)
            rb.append(LG(f"B{s_}_{i}_{t}", f"ds_read_b128 {bufB[i & 1][t]}, {rg} offset:{off}"))
        return ra[:2] + rb[:1] + ra[2:] + rb[1:]

    extra1 = [dma_stage(s_ + 2) for s_ in range(6)] + [dma("k", KS, [vk] * 5, S4K, KBASE, NTKV), dma("v", VS, [vv] * 5, S4K, VBASE, NTKV)]
    if PFWO:
        for n_ in range(PFN):
            grp = [f"s_lshl_b32 s3, {sB}, 18", f"s_cmp_eq_u32 s79, {n_}", "s_cselect_b32 s83, s3, 0x400000",
                   VM("pf", f"buffer_load_dword {vdump}, {vpw}, {WO}, s83 offen")]
            extra1[PFWO + n_] = extra1[PFWO + n_] + [grp]
    extra1[1] = [[VM("ci", f"buffer_atomic_add {vone}, {vci_a}, {DBG}, 0 offen sc1")]] + extra1[1]
    for s_ in range(8):
        A.comment(f"q-projection stage {s_}")
        A(W(vm=f"st{s_}", lg="*"))
        A("s_barrier")
        stamp(f"s{s_}")
        ex = extra1[s_]
        n = len(ex)
        parts = [ex[(n * i) // 4:(n * (i + 1)) // 4] for i in range(4)]
        if s_ == 6:
            parts = [ex[:3], ex[3:], [], []]
        for i in range(4):
            rd = reads1(s_, i)
            if s_ == 0 and i == 0:
                seq = rd + parts[0]
            else:
                m = mfmas1(s_, i - 1) if i else mfmas1(s_ - 1, 3)
                seq = spread(interleave(m, rd, start=0, per=RPS), parts[i], lo=2)
            A(seq)
    A(mfmas1(7, 3))
    stamp("qdone")

    vnew = vk
    A(f"v_add_u32 {vnew}, 1, {vtag}")
    A(f"s_mov_b32 s3, {TAGMUL:#x}")
    A(f"v_mul_lo_u32 {vtag}, {vnew}, s3")
    qb = V.get(20, 4)
    for t in range(5):
        for tt in range(2):
            for hf in range(2):
                A(f"v_cvt_pk_bf16_f32 {qb[t * 4 + tt * 2 + hf]}, {acc[tt][t][2 * hf]}, {acc[tt][t][2 * hf + 1]}")
        A(LG("qw", f"ds_write_b128 {qwr}, {qb.sub(t * 4, 4)} offset:{QS + t * 4096}"))
    A(W(vm="k", lg="*"))
    A("s_barrier")
    stamp("bq")

    Qf = [[bB.sub((T * 4 + u) * 4, 4) for u in range(4)] for T in range(2)]
    sr = V.get(40, 4)
    sacc = [[sr.sub((T * 5 + kt) * 4, 4) for kt in range(5)] for T in range(2)]
    P = [bA.sub(0, 10), bA.sub(10, 10)]
    sums = [bB.sub(32, 4), bB.sub(36, 4)]
    ones = qb.sub(16, 4)
    tmpr = V.get(4, 2)
    oacc = [accr.sub(i * 4, 4) for i in range(10)]

    def rQ(T, u):
        if T == 0:
            return LG(f"Q0{u}", f"ds_read_b128 {Qf[0][u]}, {qown} offset:{QS + u * 1024}")
        return LG(f"Q1{u}", f"ds_read_b128 {Qf[1][u]}, {l16} offset:{QS + 16384 + u * 1024}")

    def rK(u):
        return [LG(f"K{kt}{u}", f"ds_read_b64 {Kf.sub((kt * 4 + u) * 4 + 2 * hf, 2)}, {ka[2 * u + hf]} offset:{kt * 4096}")
                for kt in range(5) for hf in range(2)]

    def mS(T, u):
        return [[W(lg=[f"K{kt}{u}", f"Q{T}{u}"]),
                 f"{MF} {sacc[T][kt]}, {Kf.sub((kt * 4 + u) * 4, 4)}, {Qf[T][u]}, {'0' if u == 0 else sacc[T][kt]}"] for kt in range(5)]

    rV = [LG(f"V{i}{ks}", f"ds_read_b64_tr_b16 {Vf.sub(i * 10 + kt * 2, 2)}, {va[i]} offset:{kt * 4096}")
          for ks in range(3) for i in range(8) for kt in range(2 * ks, min(2 * ks + 2, 5))]

    def softmax(T):
        vals = [sacc[T][kt][r_] for kt in range(5) for r_ in range(4)]
        m, t, nm = tmpr[0], tmpr[1], tmpr[2]
        o = [f"v_max3_f32 {m}, {vals[0]}, {vals[1]}, {vals[2]}", f"v_max3_f32 {t}, {vals[3]}, {vals[4]}, {vals[5]}"]
        for i in range(6, 18, 4):
            o.append(f"v_max3_f32 {m}, {m}, {vals[i]}, {vals[i + 1]}")
            o.append(f"v_max3_f32 {t}, {t}, {vals[i + 2]}, {vals[i + 3]}")
        o.append(f"v_max3_f32 {m}, {m}, {vals[18]}, {vals[19]}")
        o.append(f"v_max_f32 {m}, {m}, {t}")
        for sw in ("v_permlane32_swap_b32", "v_permlane16_swap_b32"):
            o += [f"v_mov_b32 {t}, {m}", f"{sw} {m}, {t}", f"v_max_f32 {m}, {m}, {t}"]
        o.append(f"v_mul_f32 {nm}, {sC}, {m}")
        sc = int(sC[1:])
        for i in range(0, 20, 2):
            if PK:
                pr = R("v", vals[i].n, 2)
                o.append(f"v_pk_fma_f32 {pr}, {pr}, s[{sc}:{sc + 1}], {tmpr.sub(2, 2)} op_sel_hi:[1,0,0] neg_lo:[0,0,1] neg_hi:[0,0,1]")
            else:
                o.append(f"v_fma_f32 {vals[i]}, {vals[i]}, {sC}, -{nm}")
                o.append(f"v_fma_f32 {vals[i + 1]}, {vals[i + 1]}, {sC}, -{nm}")
        for i in range(10):
            o += [f"v_exp_f32 {vals[2 * i]}, {vals[2 * i]}", f"v_exp_f32 {vals[2 * i + 1]}, {vals[2 * i + 1]}"]
            if i:
                o.append(f"v_cvt_pk_bf16_f32 {P[T][i - 1]}, {vals[2 * i - 2]}, {vals[2 * i - 1]}")
        o.append(f"v_cvt_pk_bf16_f32 {P[T][9]}, {vals[18]}, {vals[19]}")
        return o

    def mPV(T, slots):
        out = []
        for ks in range(3):
            op, n = (MF, 4) if ks < 2 else (MF16, 2)
            out.append(f"{op} {sums[T]}, {ones.sub(0, n)}, {P[T].sub(ks * 4, n)}, {'0' if ks == 0 else sums[T]}")
            for i, o in slots:
                out.append([W(lg=f"V{i}{ks}"), f"{op} {o}, {Vf.sub(i * 10 + ks * 4, n)}, {P[T].sub(ks * 4, n)}, {'0' if ks == 0 else o}"])
        return out

    def finish(T, pairs, stage):
        rc = tmpr.sub(2 * T, 2)
        out = [f"v_rcp_f32 {rc[0]}, {sums[T][0]}"]
        for p, o0, o1 in pairs:
            if T == 0:
                out += [f"s_add_u32 s3, {sW}, {p}", "s_and_b32 s3, s3, 3", "s_mul_i32 s3, s3, 5", f"s_add_u32 s3, s3, {sW}", "s_lshl_b32 s3, s3, 10"]
            else:
                out += [f"s_mul_i32 s3, {sW}, 5", "s_add_u32 s3, s3, 4", "s_lshl_b32 s3, s3, 10"]
            ob = stage.sub(p * 4, 4)
            for o in (o0, o1):
                for hf in range(2):
                    if PK:
                        out.append(f"v_pk_mul_f32 {o.sub(2 * hf, 2)}, {o.sub(2 * hf, 2)}, {rc} op_sel_hi:[1,0]")
                    else:
                        out += [f"v_mul_f32 {o[2 * hf + e]}, {o[2 * hf + e]}, {rc[0]}" for e in range(2)]
            for hh, o in enumerate((o0, o1)):
                for hf in range(2):
                    out.append(f"v_cvt_pk_bf16_f32 {ob[hh * 2 + hf]}, {o[2 * hf]}, {o[2 * hf + 1]}")
            out.append(VM("ost", f"buffer_store_dwordx4 {ob}, {l16}, {OW}, s3 offen sc1"))
        return out

    wstream = wo_dma(0, U[0]) + wo_dma(1, U[2]) + wo_dma(2, U[1]) + wo_dma(3, U[3]) + wo_dma(4, U[4])
    assert P1 + P2 <= 16
    A([rQ(0, 0)] + rK(0))
    for i in range(4):
        A(f"v_mov_b32 {ones[i]}, 0x3f803f80")
    for u in range(4):
        nxt = ([rQ(0, u + 1)] + rK(u + 1)) if u < 3 else [rQ(1, k) for k in range(4)]
        A(interleave(mS(0, u), nxt, per=2))
    m1 = [x for u in range(4) for x in mS(1, u)]
    sm0 = softmax(0)
    A(m1[:4])
    A(spread(spread(sm0, m1[4:], lo=0, hi=len(sm0) - 12), wstream[:P1], lo=4))
    A(W(vm="v", lg="*"))
    A("s_barrier")
    stamp("bv")
    pv0 = mPV(0, [(i, oacc[i]) for i in range(8)])
    sm1 = softmax(1)
    A(rV[:8])
    seq = spread(sm1, pv0, lo=4)
    seq = interleave(seq, rV[8:], start=0, per=1)
    seq = spread(seq, wstream[P1:P1 + P2], lo=50)
    A(seq)
    A(W(lg="*"))
    A("s_barrier")
    stamp("b2")
    pv1 = mPV(1, [(0, oacc[8]), (1, oacc[9])])
    fin0 = finish(0, [(p, oacc[2 * p], oacc[2 * p + 1]) for p in range(4)], qb)
    A(spread(fin0, pv1, lo=0, hi=30))
    A(finish(1, [(4, oacc[8], oacc[9])], qb))
    stamp("ost")
    A(VM("cir", f"buffer_load_dword {vci}, {vci_r}, {DBG}, 0 offen sc1"))

    vo = vq
    ob = xa[0]
    wa2 = wa
    A(f"s_mul_i32 s83, {sW}, 5120")
    for j in range(8):
        A(f"s_add_u32 s3, {sB}, {j}")
        A("s_and_b32 s3, s3, 7")
        A("s_mul_i32 s3, s3, 20480")
        A("s_add_u32 s3, s3, s83")
        A(f"v_add_u32 {vo[j]}, s3, {l16}")
    for k in range(3):
        A(f"v_add_u32 {ob[k]}, {k * 65536}, {l16}")
    for tt in range(2):
        A(f"s_lshl_b32 s3, {sW}, 6")
        A(f"s_add_u32 s3, s3, {32 * tt}")
        A(f"v_xor_b32 {wa2[tt][0]}, s3, {trb}")
        A(f"v_add_u32 {wa2[tt][1]}, 0x10000, {wa2[tt][0]}")
        A(f"v_add_u32 {wa2[tt][2]}, 0x20000, {wa2[tt][0]}")
    A(f"s_cmp_eq_u32 {sW}, {sKQ}")
    for i in range(1, 4):
        A(f"s_cselect_b32 {sRECV4[i]}, {sRECV[i]}, {PSIZE}")
    A(f"s_cselect_b32 {sOWN4}, 0xff, 0")
    A(f"s_mov_b32 {sROW4}, 0x40000")
    A(f"s_cselect_b32 {sROW4}, 0x20000, {sROW4}")
    A(f"s_lshl_b32 {sROW0}, {sKQ}, 15")
    oa = vx[0]
    A(f"v_readfirstlane_b32 {sTAG[0]}, {vtag}")
    for i in range(4):
        A(f"s_mov_b32 {sSEL[i]}, {0x07060500 + i:#x}")
    for i in range(1, 4):
        A(f"s_lshr_b32 {sTAG[i]}, {sTAG[0]}, {8 * i}")
    A(f"v_lshlrev_b32 {oa}, 11, {q}")
    A(f"v_lshl_add_u32 {oa}, {g}, 4, {oa}")

    def wo_reads(j, ub):
        out = []
        for u in range(4):
            for tt in range(2):
                for hf in range(2):
                    rg, off = lds_ref(wa2[tt], ub + u * 8192 + hf * 4096)
                    out.append(LG(f"W{j * 4 + u}", f"ds_read_b64_tr_b16 {Wf.sub(((j * 4 + u) * 2 + tt) * 4 + 2 * hf, 2)}, {rg} offset:{off}"))
        return out

    rest = wstream[P1 + P2:]
    nb = NB
    A(rest[:nb])
    A(W(vm="ost"))
    A(VM("f1", f"buffer_store_dword {vtag}, {vf1}, {FL}, 0 offen sc1"))
    stamp("f1set")
    slots = [4, 1, 2, 3, 0]
    ohome = [U[1], U[4], U[0], U[2], U[3]]

    def o_dma(p):
        sl = slots[p]
        pre = [f"s_add_u32 s3, {sKQ}, {sl}", "s_and_b32 s3, s3, 3", f"s_lshl_b32 {sSO0}, s3, 10"] if sl < 4 else [f"s_mov_b32 {sSO0}, 4096"]
        g_ = dma(f"o{p}", OR, vo, sSO0, ohome[p], "sc1")
        g_[0] = pre + g_[0]
        return g_

    done = P1 + P2 + nb
    cut = max(done, 16 + AHEAD)
    A(wstream[done:cut])
    A(W(vm=["wo0", "wo1"]))
    A("s_barrier")
    stamp("b3")
    A(interleave(wstream[cut:], wo_reads(0, U[0]) + wo_reads(1, U[2]), per=2))
    A(W(vm=["wo2", "wo3"], lg="*"))
    A("s_barrier")
    stamp("b4")
    pollop = VM("poll", f"buffer_load_dword {vpf}, {vp1}, {FL}, 0 offen sc1")
    A(interleave(wo_dma(5, U[0]) + [pollop] + wo_dma(6, U[2])[:PW6], wo_reads(2, U[1]) + wo_reads(3, U[3]), per=4))
    A(W(vm=["wo4", "poll"], lg="*"))
    A("s_barrier")
    A.label("L_p1")
    A(f"v_cmp_ne_u32 vcc, {vtag}, {vpf}")
    A("s_nop 1")
    A("s_cbranch_vccz L_p1_done")
    A(pollop.text)
    A("s_waitcnt vmcnt(0)")
    spin_tail("L_p1", "L_p1_done")
    stamp("f1ok")
    A(interleave(wo_dma(6, U[2])[PW6:] + o_dma(0), wo_reads(4, U[4]) + wo_reads(5, U[0]), per=3))
    A(wo_dma(7, U[3])[:AHEAD])
    A(W(vm="wo6", lg="*"))
    A("s_barrier")
    stamp("b5")
    A(interleave(wo_dma(7, U[3])[AHEAD:], wo_reads(6, U[2]), per=4))
    late = o_dma(1)

    quads = [sr.sub(i * 4, 4) for i in range(10)] + [bA.sub(i * 4, 4) for i in range(2)]
    gA = {i: quads[2 * (i - 1):2 * i] for i in range(1, 4)}
    gB = {i: quads[6 + 2 * (i - 1):6 + 2 * i] for i in range(1, 4)}
    xacc = {0: tmpr[0], 1: tmpr[1]}

    groups = [[(3, 0), (1, 1), (2, 1), (3, 1)], [(2, 0), (1, 0)]]
    vcan = vx[1]
    vcan_g = vx[2:4]
    for gi, keys in enumerate(groups):
        A(f"v_mov_b32 {vcan_g[gi]}, {PSIZE}")
        for i, four in keys:
            A(f"s_add_u32 s3, {sRECV4[i] if four else sRECV[i]}, {4080 if four else 2032}")
            A(f"v_writelane_b32 {vcan_g[gi]}, s3, {i - 1 + 4 * four}")
    A(f"s_and_b32 {sTAGB}, {sTAG[0]}, 0xff")

    def canary(tag, gi):
        vcan_a = vcan_g[gi]
        if CAN == "atomic":
            return [f"v_mov_b32 {vcan}, 0", VM(tag, f"buffer_atomic_add {vcan}, {vcan_a}, {PT}, 0 offen sc0 sc1")]
        return [VM(tag, f"buffer_load_dword {vcan}, {vcan_a}, {PT}, 0 offen sc1")]

    def judge():
        return [f"v_and_b32 {vcan}, 0xff, {vcan}", f"v_cmp_eq_u32 vcc, {sTAGB}, {vcan}", "s_nop 3"]

    def gate(tag, keys):
        out = [W(vm=tag)] + judge()
        for i, four in keys:
            out += [f"s_bitcmp1_b32 vcc_lo, {i - 1 + 4 * four}", f"s_cselect_b32 {sEFF[(i, four)]}, {sRECV4[i] if four else sRECV[i]}, {PSIZE}"]
        return out

    def gather(i, four, gated=False):
        so, bufs = (sRECV4[i], gB[i]) if four else (sRECV[i], gA[i])
        if gated and CAN != "off":
            so = sEFF[(i, int(four))]
        return [VM(f"g{i}{int(four)}", f"buffer_load_dwordx4 {bufs[tt]}, {l16}, {PT}, {so} offen offset:{(tt + 2 * four) * 1024} sc1") for tt in range(2)]

    def verify(i, four):
        x = xacc[int(four)]
        return [W(vm=f"g{i}{int(four)}")] + [f"v_bitop3_b32 {x}, {x}, {qd[e]}, {sTAG[e]} bitop3:0xf6" for qd in (gB if four else gA)[i] for e in range(4)]

    def send(sl):
        out = []
        for tt in range(2):
            d = acc[tt][sl]
            out.append([f"v_perm_b32 {d[e]}, {d[e]}, {vtag}, {sSEL[e]}" for e in range(4)]
                       + [VM("snd", f"buffer_store_dwordx4 {d}, {l16}, {PT}, {sSEND[sl]} offen offset:{(tt + (2 if sl == 4 else 0)) * 1024} sc1")])
        return out

    frag = [bB.sub(i * 4, 4) for i in range(DEPTH)]
    after = {k: [] for k in range(160)}

    def place(items, lo, hi):
        for n_, it in enumerate(items):
            after[lo + (n_ * (hi - lo)) // len(items)].append(it)

    place(late, 0, 10)
    after[W7AT].append([W(vm="wo7"), "s_barrier"])
    place(wo_reads(7, U[3]), W7AT + 1, W7AT + 9)
    place(o_dma(2), 12, 30)
    place(o_dma(3), 44, 62)
    place(o_dma(4), 76, 94)
    for p in range(4):
        place(send(slots[p]), 32 * p + 34, 32 * p + 36)
    after[C1AT].append(canary("c1", 0))
    after[GT1].append(gate("c1", groups[0]))
    place([x for i, f in groups[0] for x in gather(i, f, True)], GG1, GG1 + 8)
    after[C2AT].append(canary("c2", 1))

    def rd2(k):
        p, kk = divmod(k, 32)
        rg, off = lds_ref(ob, ohome[p] + kk * 1024)
        if kk == 0:
            A(W(vm=f"o{p}", lg="*" if p == 0 else ()))
            A("s_barrier")
            stamp(f"p{p}")
        A(LG(f"F{k}", f"ds_read_b128 {frag[k % DEPTH]}, {rg} offset:{off}"))

    for k in range(DEPTH - 1):
        rd2(k)
    for k in range(160):
        p, kk = divmod(k, 32)
        sl = slots[p]
        A(W(lg=[f"F{k}", f"W{kk}"]))
        A(f"{MF} {acc[0][sl]}, {Wf.sub(kk * 8, 4)}, {frag[k % DEPTH]}, {'0' if kk == 0 else acc[0][sl]}")
        if k + DEPTH - 1 < 160:
            rd2(k + DEPTH - 1)
        A(f"{MF} {acc[1][sl]}, {Wf.sub(kk * 8 + 4, 4)}, {frag[k % DEPTH]}, {'0' if kk == 0 else acc[1][sl]}")
        A(after[k])
    stamp("pdone")

    def await_canaries(lab, gi, first_tag=None):
        mask = sum(1 << (i - 1 + 4 * four) for i, four in groups[gi])
        A(f"s_or_b32 s83, {sOWN4}, 15")
        A(f"s_and_b32 s83, s83, {mask}")
        if first_tag:
            A(W(vm=first_tag))
            A(f"s_branch {lab}_j")
        A.label(lab + "_w")
        A([o.text if isinstance(o, Op) else o for o in canary("cw", gi)])
        A("s_waitcnt vmcnt(0)")
        A.label(lab + "_j")
        A(judge())
        A("s_and_b32 s3, vcc_lo, s83")
        A("s_cmp_eq_u32 s3, s83")
        A(f"s_cbranch_scc1 {lab}_go")
        spin_tail(lab + "_w", lab + "_go")

    await_canaries("L_a", 1, "c2")
    stamp("cok")
    A([gather(i, f) for i, f in groups[1]])
    for gi, keys in enumerate(groups):
        lab = f"L_c{gi}"
        A.label(lab)
        A([f"v_mov_b32 {xacc[0]}, 0", f"v_mov_b32 {xacc[1]}, 0"][:2 if gi == 0 else 1])
        for i, four in keys:
            A(verify(i, four))
        A(f"v_and_b32 {xacc[0]}, 0xff, {xacc[0]}")
        if gi == 0:
            A(f"v_and_or_b32 {xacc[0]}, {xacc[1]}, {sOWN4}, {xacc[0]}")
        A(f"v_cmp_ne_u32 vcc, 0, {xacc[0]}")
        A("s_nop 1")
        A(f"s_cbranch_vccz {lab}_done")
        await_canaries(lab, gi)
        for i, four in keys:
            A([o.text for o in gather(i, four)])
        A("s_waitcnt vmcnt(0)")
        spin_tail(lab, lab + "_done")
    stamp("gok")

    for t, gg, soff, stg in ((0, gA, sROW0, qb.sub(0, 4)), (4, gB, sROW4, qb.sub(4, 4))):
        for i in (3, 2, 1):
            for tt in range(2):
                for hf in range(2):
                    d = acc[tt][t].sub(2 * hf, 2)
                    A(f"v_pk_add_f32 {d}, {d}, {gg[i][tt].sub(2 * hf, 2)}")
        for tt in range(2):
            for hf in range(2):
                A(f"v_cvt_pk_bf16_f32 {stg[tt * 2 + hf]}, {acc[tt][t][2 * hf]}, {acc[tt][t][2 * hf + 1]}")
        for hf in range(2):
            A(f"v_permlane32_swap_b32 {stg[hf]}, {stg[2 + hf]}")
        for hf in range(2):
            A(f"v_permlane16_swap_b32 {stg[hf]}, {stg[2 + hf]}")
        A(VM("out", f"buffer_store_dwordx4 {stg}, {oa}, {OUT}, {soff} offen"))
    A("s_and_b32 s3, s2, 31")
    A(f"s_or_b32 s3, s3, {sW}")
    A("s_cmp_lg_u32 s3, 0")
    A("s_cbranch_scc1 L_noep")
    A.label("L_ci")
    A(f"v_readfirstlane_b32 s3, {vci}")
    A("s_cmp_ge_u32 s3, 32")
    A("s_cbranch_scc1 L_ci_done")
    A(f"buffer_load_dword {vci}, {vci_r}, {DBG}, 0 offen sc1")
    A("s_waitcnt vmcnt(0)")
    spin_tail("L_ci", "L_ci_done")
    A(f"v_lshl_add_u32 {vep}, {lane}, 20, {vep}")
    A(f"buffer_store_dword {vnew}, {vep}, {FL}, 0 offen sc1")
    A.label("L_noep")
    if STAMPS:
        A("s_waitcnt vmcnt(0)")
        stamp("end")
        A(W(lg="*"))
        harvest()
        A("s_lshl_b32 s3, s2, 8")
        A(f"s_add_u32 s3, s3, {STAMP_OFF}")
        A(srd(KS, 18, "s3", 256))
        A(f"v_lshlrev_b32 {t0}, 2, v0")
        A(f"buffer_store_dword {vstamp}, {t0}, {KS}, 0 offen")
    A.label("L_end")
    A("s_endpgm")
    n = autopad(A.lines)
    print("autopad inserted", n, "nops; vgpr", V.hi, "agpr", AG.hi)
    check(A.lines, NAME)
    return A.text(), descriptor(NAME, V.hi, AG.hi, 100), names


def main():
    code, desc, names = build()
    out = HEADER
    out += "; @launch grid=(256,1,1) block=(256,1,1) lds=163840\n"
    if names:
        out += "; stamps: " + ",".join(names) + "\n"
    out += '.amdgcn_target "amdgcn-amd-amdhsa--gfx950"\n.text\n' + code + desc
    open(sys.argv[1], "w").write(out)


main()
```

```python
import re


def v(n, cnt=1):
    return f"v{n}" if cnt == 1 else f"v[{n}:{n + cnt - 1}]"


def a(n, cnt=1):
    return f"a{n}" if cnt == 1 else f"a[{n}:{n + cnt - 1}]"


def s(n, cnt=1):
    return f"s{n}" if cnt == 1 else f"s[{n}:{n + cnt - 1}]"


class R:
    def __init__(self, f, n, cnt=1):
        self.f, self.n, self.cnt = f, n, cnt

    def __getitem__(self, i):
        if isinstance(i, slice):
            assert i.stop <= self.cnt
            return R(self.f, self.n + i.start, i.stop - i.start)
        assert 0 <= i < self.cnt, (i, self.cnt)
        return R(self.f, self.n + i, 1)

    def sub(self, off, cnt):
        assert off + cnt <= self.cnt, (off, cnt, self.cnt)
        return R(self.f, self.n + off, cnt)

    def __str__(self):
        return f"{self.f}{self.n}" if self.cnt == 1 else f"{self.f}[{self.n}:{self.n + self.cnt - 1}]"

    __repr__ = __str__


class Alloc:
    def __init__(self, f, start, limit):
        self.f, self.cur, self.limit, self.hi = f, start, limit, start

    def get(self, cnt=1, align=1):
        if cnt >= 2 and align == 1:
            align = 2
        self.cur = (self.cur + align - 1) // align * align
        r = R(self.f, self.cur, cnt)
        self.cur += cnt
        assert self.cur <= self.limit, f"out of {self.f} registers: {self.cur} > {self.limit}"
        self.hi = max(self.hi, self.cur)
        return r


class Op:
    def __init__(self, kind, tag, text=None):
        self.kind, self.tag, self.text = kind, tag, text


def VM(tag, text):
    return Op("vm", tag, text)


def LG(tag, text):
    return Op("lg", tag, text)


def SM(text):
    return Op("sm", "smem", text)


def W(vm=(), lg=()):
    return Op("wait", (tuple(vm) if not isinstance(vm, str) else (vm,), tuple(lg) if not isinstance(lg, str) else (lg,)))


class Asm:
    def __init__(self):
        self.lines = []
        self.vmq, self.lgq = [], []

    def __call__(self, item):
        if isinstance(item, (list, tuple)):
            for it in item:
                self(it)
            return
        if isinstance(item, Op):
            self._op(item)
            return
        for ln in str(item).split("\n"):
            ln = ln.strip()
            if ln:
                self.lines.append(ln)

    @staticmethod
    def _need(q, tags):
        if "*" in tags:
            return 0 if q else None
        last = max((i for i, t in enumerate(q) if t in tags), default=None)
        return None if last is None else len(q) - 1 - last

    def _op(self, o):
        if o.kind == "vm":
            self.vmq.append(o.tag)
            assert len(self.vmq) <= 63, "vmcnt overflow"
            self.lines.append(o.text)
        elif o.kind in ("lg", "sm"):
            load = len(self.lgq) + self.lgq.count("smem")
            if load + (2 if o.kind == "sm" else 1) > 15:
                keep = 0 if "smem" in self.lgq else 12
                self.lines.append(f"s_waitcnt lgkmcnt({keep})")
                self.lgq = self.lgq[len(self.lgq) - keep:] if keep else []
            self.lgq.append(o.tag)
            self.lines.append(o.text)
        else:
            vt, lt = o.tag
            nv, nl = self._need(self.vmq, vt), self._need(self.lgq, lt)
            if nl is not None and "smem" in self.lgq:
                nl = 0
            parts = []
            if nv is not None:
                parts.append(f"vmcnt({nv})")
                self.vmq = self.vmq[len(self.vmq) - nv:] if nv else []
            if nl is not None:
                parts.append(f"lgkmcnt({nl})")
                self.lgq = self.lgq[len(self.lgq) - nl:] if nl else []
            if parts:
                self.lines.append("s_waitcnt " + " ".join(parts))

    def label(self, name):
        self.lines.append(name + ":")

    def comment(self, text):
        self.lines.append("; " + text)

    def text(self):
        out = []
        for ln in self.lines:
            if ln.endswith(":") or ln.startswith(".") or ln.startswith(";"):
                out.append(ln)
            else:
                out.append("    " + ln)
        return "\n".join(out) + "\n"


def interleave(main, fill, start=0, per=1, every=1):
    out = []
    fi = 0
    for i, m in enumerate(main):
        out.append(m)
        if i >= start and (i - start) % every == 0:
            for _ in range(per):
                if fi < len(fill):
                    out.append(fill[fi])
                    fi += 1
    out.extend(fill[fi:])
    return out


def spread(main, fill, lo=0, hi=None):
    hi = len(main) if hi is None else hi
    n = hi - lo
    slots = [[] for _ in main]
    for j, f in enumerate(fill):
        slots[lo + (j * n) // max(len(fill), 1)].append(f)
    out = []
    for m, sl in zip(main, slots):
        out.append(m)
        out.extend(sl)
    return out


def flat(items):
    out = []
    for it in items:
        if isinstance(it, (list, tuple)):
            out.extend(flat(it))
        else:
            out.append(it)
    return out


_REG = re.compile(r"^-?(?:abs\()?([vas])(?:(\d+)|\[(\d+):(\d+)\])\)?$")
TRANS = ("v_exp_f32", "v_log_f32", "v_rcp_f32", "v_rsq_f32", "v_sqrt_f32", "v_sin_f32", "v_cos_f32")


def regs_of(op):
    op = op.strip()
    if op in ("vcc", "exec", "m0", "scc"):
        return {(op, 0)}
    if op in ("vcc_lo", "vcc_hi"):
        return {("vcc", 0)}
    m = _REG.match(op)
    if not m:
        return set()
    f = m.group(1)
    if m.group(2) is not None:
        return {(f, int(m.group(2)))}
    return {(f, i) for i in range(int(m.group(3)), int(m.group(4)) + 1)}


class Ins:
    def __init__(self, text):
        self.text = text
        body = text.split(";")[0].strip()
        parts = body.split(None, 1)
        self.op = parts[0]
        for suf in ("_e32", "_e64", "_dpp", "_sdwa"):
            if self.op.endswith(suf):
                self.op = self.op[: -len(suf)]
        rest = parts[1] if len(parts) > 1 else ""
        ops = [o.strip() for o in rest.split(",")] if rest else []
        mods = ""
        if ops:
            last = ops[-1].split(None, 1)
            ops[-1] = last[0]
            mods = last[1] if len(last) > 1 else ""
        self.ops, self.mods = ops, mods
        op = self.op
        self.is_mfma = op.startswith("v_mfma")
        self.is_valu = op.startswith("v_") and not self.is_mfma
        self.is_salu = op.startswith("s_") and not op.startswith(("s_load", "s_buffer_load", "s_waitcnt", "s_nop", "s_barrier", "s_cbranch", "s_branch", "s_endpgm", "s_memtime", "s_memrealtime", "s_sleep", "s_setprio"))
        self.is_smem = op.startswith(("s_load", "s_buffer_load", "s_memtime", "s_memrealtime"))
        self.is_ds = op.startswith("ds_")
        self.is_vmem = op.startswith(("buffer_", "global_"))
        self.is_dma = self.is_vmem and (" lds" in " " + mods or "_lds_" in op)
        self.is_store = self.is_vmem and "store" in op
        self.is_dpp = "row_" in mods or "quad_perm" in mods
        rs = [regs_of(o) for o in ops]
        w, r = set(), set()
        if self.is_mfma:
            w = rs[0]
            self.A, self.B, self.C = rs[1], rs[2], rs[3]
            r = rs[1] | rs[2] | rs[3]
            self.passes = 8 if "32x32" in op else 4
        elif self.is_dma or self.is_store or op.startswith(("ds_write", "s_cmp", "s_bitcmp", "buffer_inv", "buffer_wbl2")):
            for x in rs:
                r |= x
            if self.is_dma:
                r |= {("m0", 0)}
        elif "atomic" in op:
            for x in rs:
                r |= x
            if "sc0" in mods:
                w = rs[0]
        elif op.startswith("v_permlane") and "swap" in op:
            w = rs[0] | rs[1]
            r = set(w)
        elif op.startswith(("s_waitcnt", "s_nop", "s_barrier", "s_branch", "s_endpgm", "s_sleep", "s_setprio")):
            pass
        elif op.startswith("s_cbranch"):
            if "vcc" in op:
                r = {("vcc", 0)}
        else:
            if rs:
                w = set(rs[0])
                for x in rs[1:]:
                    r |= x
            if op.startswith(("v_add_co", "v_sub_co", "v_addc_co", "v_subb_co")):
                w |= rs[1]
                r = set().union(*rs[2:])
            if op.startswith(("v_fmac", "v_pk_fmac", "s_addk", "s_mulk", "v_writelane", "s_bitset")):
                r |= rs[0]
            if "saveexec" in op:
                w |= {("exec", 0)}
        self.w, self.r = w, r
        self.store_data = rs[0] if (self.is_store and op.startswith("buffer_")) else (rs[1] if self.is_store else set())
        self.wide_store = self.is_store and ("x4" in op or "x3" in op)

    def states(self):
        if self.op == "s_nop":
            return int(self.ops[0], 0) + 1
        return 1


_cache = {}


def _parsed(text):
    if text not in _cache:
        _cache[text] = Ins(text)
    return _cache[text]


def vec(rs):
    return {x for x in rs if x[0] in "va"}


def sca(rs):
    return {x for x in rs if x[0] in ("s", "vcc")}


def drop_m0_nops(lines):
    n = 0
    i = 1
    while i + 2 < len(lines):
        if lines[i].startswith("s_add_u32 m0,") and lines[i + 1] == "s_nop 0":
            prev = lines[i - 1]
            if prev.startswith(("v_", "ds_")) and "vcc" not in prev:
                lines[i - 1], lines[i] = lines[i], prev
                del lines[i + 1]
                n += 1
        i += 1
    return n


def autopad(lines):
    added = 0
    while True:
        short = []
        check(lines, verbose=False, short=short)
        if not short:
            return added
        idx, miss = short[0]
        miss = max(m for i, m in short if i == idx)
        lines.insert(idx, f"s_nop {miss - 1}")
        added += 1


def check(lines, name="", verbose=True, short=None):
    where = [k for k, l in enumerate(lines) if l and not l.endswith(":") and not l.startswith((".", ";"))]
    ins = [_parsed(lines[k]) for k in where]
    probs = []
    vm, lg = [], []
    for i, c in enumerate(ins):
        if c.op == "s_waitcnt":
            t = " ".join(c.ops) + " " + c.mods
            m = re.search(r"vmcnt\((\d+)\)", t)
            if m:
                n = int(m.group(1))
                assert n <= 63
                vm = vm[len(vm) - n:] if n < len(vm) and n > 0 else ([] if n == 0 else vm)
            m = re.search(r"lgkmcnt\((\d+)\)", t)
            if m:
                n = int(m.group(1))
                assert n <= 15
                if n > 0 and any(k == "smem" for k, _, _ in lg):
                    probs.append(f"[{i}] counted lgkmcnt with SMEM outstanding: {c.text}")
                lg = lg[len(lg) - n:] if n < len(lg) and n > 0 else ([] if n == 0 else lg)
        touched = c.r | c.w
        for q in (vm, lg):
            for kind, dst, txt in q:
                if dst & touched and not (c.is_ds and kind == "ds" and not (dst & c.r)) and not (c.is_vmem and kind == "vm" and not (dst & c.r)):
                    probs.append(f"[{i}] '{c.text}' touches {sorted(dst & touched)[:2]} with outstanding '{txt}'")
        if c.is_vmem:
            vm.append(("vm", set(c.w), c.text))
            if len(vm) > 63:
                probs.append(f"[{i}] more than 63 vector-memory ops outstanding (issue stalls): {c.text}")
                vm = vm[1:]
        if c.is_ds:
            lg.append(("ds", set(c.w), c.text))
        if c.is_smem:
            lg.append(("smem", set(c.w), c.text))
        if short:
            break
        dist = 0
        for j in range(i - 1, max(i - 14, -1), -1):
            p = ins[j]
            need = 0
            if p.is_valu:
                if c.is_mfma and vec(p.w) & c.r:
                    need = max(need, 2)
                if c.op.startswith("v_permlane") and vec(p.w) & c.r:
                    need = max(need, 2)
                if c.is_dpp and vec(p.w) & c.r:
                    need = max(need, 2)
                if c.op in ("v_readfirstlane_b32", "v_readlane_b32") and vec(p.w) & c.r:
                    need = max(need, 1)
                if p.op in TRANS and c.is_valu and vec(p.w) & (c.r | c.w):
                    need = max(need, 1)
                if sca(p.w) & c.r:
                    if c.is_valu:
                        need = max(need, 2)
                    if c.is_vmem:
                        need = max(need, 5)
                    if c.op.startswith("v_readlane") or c.op.startswith("v_writelane"):
                        need = max(need, 4)
                if ("exec", 0) in p.w and (c.is_valu or c.is_mfma):
                    need = max(need, 5)
            if p.is_mfma:
                full = 8 if p.passes == 4 else 12
                if c.is_mfma:
                    if p.w & (c.A | c.B):
                        need = max(need, full)
                    if p.w & c.C and not (p.w == c.C and p.op == c.op):
                        need = max(need, full - 2)
                    if p.w & c.w and not (p.w & c.C):
                        need = max(need, full - 2)
                elif (c.is_valu or c.is_vmem or c.is_ds) and p.w & (c.r | c.w):
                    need = max(need, full)
                if c.is_valu and p.C & c.w:
                    need = max(need, 3 if p.passes == 4 else 7)
            if p.is_salu and ("m0", 0) in p.w and c.is_dma:
                need = max(need, 1)
            if p.wide_store and p.store_data & c.w:
                need = max(need, 2 if c.is_valu or c.is_mfma else 1)
            if dist < need:
                if short is not None:
                    short.append((where[i], need - dist))
                probs.append(f"[{i}] hazard: '{p.text}' -> '{c.text}' needs {need} wait states, has {dist}")
            dist += p.states()
    if verbose:
        for pr in probs[:40]:
            print(f"CHECK {name}: {pr}")
        print(f"check {name}: {len(ins)} instructions, {len(probs)} problems")
    return probs


def descriptor(name, vgpr, agpr, sgpr):
    acc = (vgpr + 3) // 4 * 4
    nfv = acc + agpr if agpr else vgpr
    return f""".section .rodata,"a"
.p2align 6
.amdhsa_kernel {name}
  .amdhsa_next_free_vgpr {nfv}
  .amdhsa_next_free_sgpr {sgpr}
  .amdhsa_accum_offset {acc}
  .amdhsa_group_segment_fixed_size 0
  .amdhsa_kernarg_size 64
  .amdhsa_user_sgpr_count 2
  .amdhsa_user_sgpr_kernarg_segment_ptr 1
  .amdhsa_system_sgpr_workgroup_id_x 1
  .amdhsa_float_denorm_mode_32 3
.end_amdhsa_kernel
"""


HEADER = """; Kernarg layout for this problem (64 bytes, ptrs only, base s[0:1]):
;   offset  16: d_in[2] v_cache  shape=(8, 32, 80, 128) dtype=bfloat16 strides=(655360, 20480, 256, 2) contiguous=True
"""
```

```python
import math
import struct
import sys

from asmlib import *

OPT = dict(kv.split("=") for kv in sys.argv[2:])
STAMPS = int(OPT.get("stamps", 0))
PK = int(OPT.get("pk", 1))
RPS = int(OPT.get("rps", 1))
P1 = int(OPT.get("p1", 3))
P2 = int(OPT.get("p2", 3))
DEPTH = int(OPT.get("depth", 8))
G2AT = int(OPT.get("g2", 16))
G3AT = int(OPT.get("g3", 28))
PFWO = int(OPT.get("pfwo", 0))
PFN = int(OPT.get("pfn", 4))
P1E = int(OPT.get("p1e", 0))
P2LO = int(OPT.get("p2lo", 50))
PM = int(OPT.get("pm", 0))
PMLO = int(OPT.get("pmlo", 30))
PFKV = OPT.get("pfkv", "")
PFAT = int(OPT.get("pfat", 2))
AHEAD = int(OPT.get("ahead", 6))
PW6 = int(OPT.get("pw6", 6))
W7AT = int(OPT.get("w7at", 12))
G1AT = int(OPT.get("g1", 5))
CAN = OPT.get("can", "load")
C1AT = int(OPT.get("c1", 88))
GT1 = int(OPT.get("gt1", 97))
GG1 = int(OPT.get("gg1", 100))
C2AT = int(OPT.get("c2", 148))
CPF = int(OPT.get("cpf", 1))
TLB = OPT.get("tlb", "")
CB = int(OPT.get("cb", 0))
GTB = int(OPT.get("gtb", 145))
OUTMOD = OPT.get("outmod", "").replace("+", " ")
SPEC = int(OPT.get("spec", 0))
NONOP = int(OPT.get("nonop", 1))
TAGMUL = 0x9E3779B1
NTKV = "nt" if int(OPT.get("ntkv", 0)) else ""
NB = int(OPT.get("nb", 5))
SPIN = 1 << 20

NAME = "standalone__mha_block_cached__near_ridge_kernel"
SLOT = 53248
KBASE = 2 * SLOT
VBASE = KBASE + 20480
QS = 32768
U = [i * 32768 for i in range(5)]
F1OFF = 6 << 20
F2REL = 32768
POFF = 8 << 20
PSIZE = 16 << 20
STAMP_OFF = 64 << 20
MF = "v_mfma_f32_16x16x32_bf16"
MF16 = "v_mfma_f32_16x16x16_bf16"

sW, sB, sH, sROT1 = "s20", "s21", "s22", "s23"
X, WQ, KS, VS, OW, WO, OR, FL, DBG, PT, OUT = (f"s[{n}:{n + 3}]" for n in range(24, 68, 4))
sW1K, sXCD, sSO0, sSO1, sKQ, sNT, sC, sHH, sSPIN = "s68", "s69", "s70", "s71", "s77", "s78", "s80", "s81", "s82"
S4K = [f"s{72 + j}" for j in range(5)]
sGRP = "s86"
sSEND = {i: f"s{87 + i}" for i in range(1, 5)}
sRECV = {i: f"s{91 + i}" for i in range(1, 4)}
sRECV4 = {1: "s24", 2: "s25", 3: "s26"}
sROW0, sROW4, sOWN4 = "s27", "s28", "s29"
sSEL = [f"s{32 + i}" for i in range(4)]
sTAG = [f"s{36 + i}" for i in range(4)]
sEFF = {(i, f): f"s{40 + 3 * f + i - 1}" for i in range(1, 4) for f in range(2)}
sTAGB, sSKIP = "s46", "s47"


def f32bits(x):
    return struct.unpack("<I", struct.pack("<f", x))[0]


def srd(d, lo, off, size):
    n = int(d[2:d.index(":")])
    if off is None:
        o = [f"s_mov_b32 s{n}, s{lo}", f"s_and_b32 s{n + 1}, s{lo + 1}, 0xffff"]
    else:
        o = [f"s_add_u32 s{n}, s{lo}, {off}", f"s_addc_u32 s{n + 1}, s{lo + 1}, 0", f"s_and_b32 s{n + 1}, s{n + 1}, 0xffff"]
    return o + [f"s_mov_b32 s{n + 2}, {size}", f"s_mov_b32 s{n + 3}, 0x20000"]


def lds_ref(regsets, const):
    k = const // 65536
    return regsets[k], const - k * 65536


def dma(tag, srd_regs, vregs, soff, base, mod=""):
    out = []
    for j, vr in enumerate(vregs):
        so = soff[j] if isinstance(soff, list) else soff
        out.append([f"s_add_u32 m0, {sW1K}, {base + j * 4096}", "s_nop 0",
                    VM(tag, f"buffer_load_dwordx4 {vr}, {srd_regs}, {so} offen {mod} lds".replace("  ", " "))])
    return out


def build():
    A = Asm()
    V = Alloc("v", 1, 256)
    AG = Alloc("a", 0, 256)
    vstamp = V.get()
    names = []
    st = {"pend": None, "flip": 0}

    def harvest():
        if st["pend"] is not None:
            pair, idx = st["pend"]
            if "smem" in A.lgq:
                A(W(lg="*"))
            A(f"v_writelane_b32 {vstamp}, s{pair}, {idx}")
            st["pend"] = None

    def stamp(nm):
        if not STAMPS or (STAMPS == 2 and nm not in ("start", "end")):
            return
        harvest()
        pair = 96 + 2 * st["flip"]
        st["flip"] ^= 1
        A(SM(f"s_memrealtime s[{pair}:{pair + 1}]"))
        st["pend"] = (pair, len(names))
        names.append(nm)

    C = Asm()

    def txt(items):
        return [o.text if isinstance(o, Op) else o for o in flat(items)]

    def bounded(target, give_up):
        C(f"s_sub_u32 {sSPIN}, {sSPIN}, 1")
        C(f"s_cmp_eq_u32 {sSPIN}, 0")
        C(f"s_cbranch_scc0 {target}")
        C(f"s_mov_b32 {sSPIN}, 1")
        C(f"s_branch {give_up}")

    A(f".globl {NAME}")
    A(".p2align 8")
    A(f".type {NAME},@function")
    A.label(NAME)
    A("s_cmp_ge_u32 s2, 256")
    A("s_cbranch_scc1 L_end")
    A(SM("s_load_dwordx16 s[4:19], s[0:1], 0"))
    if STAMPS:
        A(f"v_mov_b32 {vstamp}, 0")
    stamp("start")

    lane, q, g, r, c, r4, l16 = (V.get() for _ in range(7))
    tq = V.get(4, 2)
    t0, t1, t2, t3 = (tq[i] for i in range(4))
    vcp = V.get()
    if CPF:
        A.comment("the workgroups of one die together touch every 128-byte line of this kernel's code once")
        A("s_getpc_b64 s[84:85]")
        A.label("L_pc")
        A("s_lshr_b32 s3, s2, 3")
        if CPF == 1:
            A(f"v_lshrrev_b32 {t2}, 5, v0")
            A(f"v_lshl_add_u32 {t2}, s3, 3, {t2}")
        else:
            A(f"v_mov_b32 {t2}, v0")
        A(f"v_lshlrev_b32 {t2}, 7, {t2}")
        A(f"v_min_u32 {t2}, L_last-L_pc, {t2}")
        A(f"v_mov_b32 {t1}, s85")
        A(f"v_add_co_u32 {t0}, vcc, s84, {t2}")
        A(f"v_addc_co_u32 {t1}, vcc, 0, {t1}, vcc")
        A(VM("cpf", f"global_load_dword {vcp}, {tq.sub(0, 2)}, off"))
    A(f"v_lshrrev_b32 {r4}, 6, v0")
    A(f"v_and_b32 {lane}, 63, v0")
    A(f"v_readfirstlane_b32 {sW}, {r4}")
    A(f"v_and_b32 {q}, 15, v0")
    A(f"v_lshrrev_b32 {g}, 4, {lane}")
    A(f"v_lshrrev_b32 {r4}, 4, v0")
    A(f"s_and_b32 {sXCD}, s2, 7")
    A(f"s_lshr_b32 {sB}, s2, 5")
    A(f"s_bfe_u32 {sHH}, s2, 0x20003")
    A(f"s_lshl_b32 s3, {sXCD}, 2")
    A(f"s_add_u32 {sH}, {sHH}, s3")
    A(f"s_add_u32 {sROT1}, {sXCD}, {sB}")
    A(f"s_lshl_b32 {sW1K}, {sW}, 10")
    A(f"s_mul_i32 s84, {sB}, 163840")
    A(f"s_lshl_b32 s85, {sH}, 8")
    vx = [V.get() for _ in range(5)]
    vq = [V.get() for _ in range(8)]
    vk, vv = V.get(), V.get()
    vf1, vep, vtag = V.get(), V.get(), V.get()
    A(f"v_xor_b32 {t0}, {q}, {r4}")
    A(f"v_lshlrev_b32 {t0}, 4, {t0}")
    A(f"v_lshl_add_u32 {vx[0]}, {r4}, 11, {t0}")
    A(f"v_lshl_add_u32 {vk}, {r4}, 8, {t0}")
    for j in range(1, 5):
        A(f"v_add_u32 {vx[j]}, {j * 32768}, {vx[0]}")
    A(f"v_lshrrev_b32 {t1}, 3, {r4}")
    A(f"v_lshl_or_b32 {t1}, {t1}, 2, {g}")
    A(f"v_lshlrev_b32 {t1}, 1, {t1}")
    A(f"v_xor_b32 {t1}, {q}, {t1}")
    A(f"v_lshlrev_b32 {t1}, 4, {t1}")
    A(f"v_lshl_add_u32 {vq[0]}, {r4}, 13, {t1}")
    for j in range(1, 8):
        A(f"v_add_u32 {vq[j]}, {j * 16 * 8192}, {vq[0]}")
    A(W(lg="*"))
    stamp("karg")
    A(srd(X, 4, "s84", 163840))
    A(srd(WQ, 10, "s85", 8388608 - 7936))

    def dma_stage(s_):
        slot = (s_ % 3) * SLOT
        pre = [f"s_add_u32 s3, {sROT1}, {s_}", "s_and_b32 s3, s3, 7", f"s_lshl_b32 {sSO0}, s3, 8", f"s_lshl_b32 {sSO1}, s3, 20"]
        gx = dma(f"st{s_}", X, vx, sSO0, slot)
        gq = dma(f"st{s_}", WQ, vq, sSO1, slot + 20480)
        gx[0] = pre + gx[0]
        return gx + gq

    first = dma_stage(0)
    A(first[:10])

    A(srd(FL, 18, F1OFF, 65536))
    A("s_lshl_b32 s3, s2, 7")
    A(f"s_lshl_b32 s83, {sW}, 2")
    A("s_add_u32 s3, s3, s83")
    A(f"v_lshlrev_b32 {vf1}, 20, {lane}")
    A(f"v_add_u32 {vf1}, s3, {vf1}")
    A(f"s_lshl_b32 s3, {sB}, 7")
    A(f"s_add_u32 s3, s3, {F2REL}")
    A(f"v_mov_b32 {vep}, s3")
    A(f"v_bfe_u32 {r}, v0, 2, 2")
    A(f"v_and_b32 {c}, 3, v0")
    A(f"v_lshlrev_b32 {l16}, 4, {lane}")
    A(f"s_lshr_b32 {sKQ}, {sXCD}, 1")
    A(f"s_and_b32 s3, {sXCD}, 1")
    A("s_lshl_b32 s3, s3, 2")
    A(f"s_add_u32 {sNT}, s3, {sHH}")
    A(f"s_lshl_b32 s3, {sB}, 5")
    A(f"s_add_u32 s83, s3, {sH}")
    A("s_mul_i32 s83, s83, 20480")
    A(srd(KS, 6, "s83", 20480))
    A(srd(VS, 8, "s83", 20480))
    A(srd(OW, 18, "s83", 20480))
    A(f"s_lshl_b32 s83, {sKQ}, 3")
    A("s_add_u32 s83, s83, s3")
    A("s_mul_i32 s83, s83, 20480")
    A(srd(OR, 18, "s83", 8 * 20480))
    A(f"s_lshl_b32 s83, {sKQ}, 21")
    A(f"s_lshl_b32 s3, {sNT}, 8")
    A("s_add_u32 s83, s83, s3")
    A(srd(WO, 12, "s83", 1024 * 2048 - 1792))
    A("s_add_u32 s83, s84, s3")
    A(f"s_lshl_b32 s3, {sW}, 6")
    A("s_add_u32 s83, s83, s3")
    A(srd(OUT, 14, "s83", 163840 - 1984))
    A(srd(PT, 18, POFF, PSIZE))
    A(srd(DBG, 16, None, 256))
    for j in range(5):
        A(f"s_mov_b32 {S4K[j]}, {j * 4096}")
    A(f"s_mov_b32 {sC}, {f32bits(math.log2(math.e) / math.sqrt(128.0)):#x}")
    A(f"s_mov_b32 {sSPIN}, {SPIN}")
    vw = [V.get() for _ in range(8)]
    A(f"v_and_b32 {t1}, 7, {r4}")
    A(f"v_lshlrev_b32 {t1}, 1, {t1}")
    A(f"v_xor_b32 {t1}, {q}, {t1}")
    A(f"v_lshlrev_b32 {t1}, 4, {t1}")
    A(f"v_lshl_add_u32 {vv}, {r4}, 8, {t1}")
    A(f"v_lshl_add_u32 {vw[0]}, {r4}, 11, {t1}")
    for j in range(1, 8):
        A(f"v_add_u32 {vw[j]}, {j * 16 * 2048}, {vw[0]}")
    xa = [[V.get() for _ in range(3)] for _ in range(4)]
    wa = [[V.get() for _ in range(3)] for _ in range(2)]
    for s4 in range(4):
        A(f"v_or_b32 {t0}, {4 * s4}, {g}")
        A(f"v_xor_b32 {t0}, {t0}, {q}")
        A(f"v_lshlrev_b32 {t0}, 4, {t0}")
        A(f"v_lshl_add_u32 {xa[s4][0]}, {q}, 8, {t0}")
        A(f"v_add_u32 {xa[s4][1]}, 0x10000, {xa[s4][0]}")
        A(f"v_add_u32 {xa[s4][2]}, 0x20000, {xa[s4][0]}")
    A(f"v_and_b32 {t0}, 1, {g}")
    A(f"v_lshl_or_b32 {t0}, {t0}, 2, {r}")
    A(f"v_lshl_add_u32 {t1}, {g}, 3, {r}")
    A(f"v_lshlrev_b32 {t1}, 8, {t1}")
    A(f"v_lshl_add_u32 {t1}, {c}, 3, {t1}")
    A(f"s_lshl_b32 s3, {sW}, 1")
    for tt in range(2):
        A(f"s_add_u32 s83, s3, {tt}")
        A(f"v_xor_b32 {t2}, s83, {t0}")
        A(f"v_lshl_add_u32 {wa[tt][0]}, {t2}, 5, {t1}")
        A(f"v_add_u32 {wa[tt][1]}, 0x10000, {wa[tt][0]}")
        A(f"v_add_u32 {wa[tt][2]}, 0x20000, {wa[tt][0]}")
    ka = [V.get() for _ in range(8)]
    va = [V.get() for _ in range(8)]
    qown, qwr = V.get(), V.get()
    A(f"v_lshrrev_b32 {t0}, 1, {g}")
    A(f"v_xor_b32 {t0}, {t0}, {q}")
    A(f"v_lshlrev_b32 {t0}, 4, {t0}")
    A(f"v_lshl_add_u32 {t0}, {q}, 8, {t0}")
    A(f"v_and_b32 {t1}, 1, {g}")
    A(f"v_lshl_add_u32 {t0}, {t1}, 3, {t0}")
    A(f"v_add_u32 {ka[0]}, {KBASE}, {t0}")
    for i in range(1, 8):
        A(f"v_xor_b32 {ka[i]}, {32 * i}, {ka[0]}")
    trb = V.get()
    A(f"v_lshl_add_u32 {t0}, {g}, 2, {r}")
    A(f"v_and_b32 {t1}, 7, {t0}")
    A(f"v_lshlrev_b32 {t1}, 5, {t1}")
    A(f"v_lshl_add_u32 {t0}, {t0}, 8, {t1}")
    A(f"v_lshl_add_u32 {trb}, {c}, 3, {t0}")
    A(f"v_add_u32 {t0}, {VBASE}, {trb}")
    for i in range(8):
        A(f"s_lshl_b32 s3, {sW}, 1")
        A(f"s_add_u32 s3, s3, {i}")
        A("s_and_b32 s3, s3, 7")
        A("s_lshl_b32 s3, s3, 5")
        A(f"v_xor_b32 {va[i]}, s3, {t0}")
    A(f"v_add_u32 {qwr}, {sW1K}, {l16}")
    A(f"s_lshl_b32 s3, {sW}, 12")
    A(f"v_add_u32 {qown}, s3, {l16}")
    vci_a, vci_r, vone, vci = V.get(), V.get(), V.get(), V.get()
    A(f"s_lshl_b32 s3, {sB}, 5")
    A(f"v_mov_b32 {vci_r}, s3")
    A(f"v_lshl_add_u32 {vci_a}, v0, 20, {vci_r}")
    A(f"v_mov_b32 {vone}, 1")
    vp1, vpf = V.get(), V.get()
    A(f"v_bfe_u32 {t1}, v0, 4, 1")
    A(f"v_lshl_add_u32 {t0}, {r}, 3, {t1}")
    A(f"s_lshl_b32 s83, {sKQ}, 1")
    A("s_add_u32 s83, s83, s3")
    A(f"v_add_u32 {t0}, s83, {t0}")
    A(f"v_lshlrev_b32 {t0}, 7, {t0}")
    A(f"v_lshl_add_u32 {vp1}, {c}, 2, {t0}")
    A(f"s_and_b32 {sGRP}, s2, 0xf9")
    A(f"s_lshl_b32 s87, {sKQ}, 2")
    A(f"s_add_u32 s87, s87, {sW}")
    for i in range(1, 5):
        A(f"s_add_u32 s3, {sKQ}, {i}" if i < 4 else f"s_mov_b32 s3, {sW}")
        A("s_and_b32 s3, s3, 3")
        A("s_lshl_b32 s3, s3, 1")
        A(f"s_add_u32 s3, s3, {sGRP}")
        A("s_lshl_b32 s3, s3, 4")
        A("s_add_u32 s3, s3, s87")
        A(f"s_lshl_b32 {sSEND[i]}, s3, 12")
    for i in range(1, 4):
        A(f"s_add_u32 s3, {sKQ}, {i}")
        A("s_and_b32 s3, s3, 3")
        A("s_lshl_b32 s83, s2, 2")
        A("s_add_u32 s3, s3, s83")
        A("s_lshl_b32 s3, s3, 2")
        A(f"s_add_u32 s3, s3, {sW}")
        A(f"s_lshl_b32 {sRECV[i]}, s3, 12")
    vpw, vdump = V.get(), V.get()
    if PFWO:
        A(f"v_lshrrev_b32 {vpw}, 1, v0")
        A(f"v_lshlrev_b32 {vpw}, 11, {vpw}")
        A(f"v_and_b32 {t0}, 1, v0")
        A(f"v_lshl_add_u32 {vpw}, {t0}, 7, {vpw}")
        A(f"s_and_b32 s79, {sB}, {PFN - 1}")
    if PFKV:
        A(f"v_lshlrev_b32 {vpw}, 7, v0")
        A(f"s_and_b32 s79, {sB}, {PFN - 1}")
    warm = []
    if TLB:
        A(f"v_mov_b32 {t3}, 0")
        touch = {"k": [(KS, "0"), (VS, "0")], "w": [(WO, "0")], "o": [(OW, "0"), (OR, "0")], "p": [(PT, sSEND[1]), (PT, sSEND[3]), (PT, sRECV[1])], "u": [(OUT, "0")]}
        for key in TLB:
            for sr_, so in touch[key]:
                extra_off = " offset:4092" if key == "p" else ""
                warm.append(VM("warm", f"buffer_load_dword {vdump}, {t3}, {sr_}, {so} offen{extra_off}"))
    stamp("setup")
    A(first[10:])
    A(warm)

    A(VM("ep", f"buffer_load_dword {vtag}, {vep}, {FL}, 0 offen sc1"))
    A(dma_stage(1))
    stamp("iss1")

    accr = V.get(40, 4)
    acc = [[accr.sub((tt * 5 + t) * 4, 4) for t in range(5)] for tt in range(2)]
    bB = V.get(40, 4)
    bufB = [[bB.sub((p * 5 + t) * 4, 4) for t in range(5)] for p in range(2)]
    bA = V.get(20, 4)
    bufA = [[bA.sub((p * 2 + tt) * 4, 4) for tt in range(2)] for p in range(2)]
    Wf = AG.get(256, 4)
    Kf, Vf = Wf.sub(96, 80), Wf.sub(176, 80)
    sWO = "s95"

    def wo_dma(j, ubase):
        pre = [f"s_add_u32 s3, {sB}, {j}", "s_and_b32 s3, s3, 7", f"s_lshl_b32 {sWO}, s3, 18"]
        g_ = dma(f"wo{j}", WO, vw, sWO, ubase)
        g_[0] = pre + g_[0]
        return g_

    def mfmas1(s_, i):
        buf = i & 1
        out = []
        for t in range(5):
            for tt in range(2):
                cc = "0" if (s_ == 0 and i == 0) else acc[tt][t]
                out.append([W(lg=[f"A{s_}_{i}_{tt}", f"B{s_}_{i}_{t}"]), f"{MF} {acc[tt][t]}, {bufA[buf][tt]}, {bufB[buf][t]}, {cc}"])
        return out

    def reads1(s_, i):
        ra, rb = [], []
        for tt in range(2):
            for hf in range(2):
                rg, off = lds_ref(wa[tt], (s_ % 3) * SLOT + 20480 + i * 8192 + hf * 1024)
                ra.append(LG(f"A{s_}_{i}_{tt}", f"ds_read_b64_tr_b16 {bufA[i & 1][tt].sub(2 * hf, 2)}, {rg} offset:{off}"))
        for t in range(5):
            rg, off = lds_ref(xa[i], (s_ % 3) * SLOT + t * 4096)
            rb.append(LG(f"B{s_}_{i}_{t}", f"ds_read_b128 {bufB[i & 1][t]}, {rg} offset:{off}"))
        return ra[:2] + rb[:1] + ra[2:] + rb[1:]

    extra1 = [dma_stage(s_ + 2) for s_ in range(6)] + [dma("k", KS, [vk] * 5, S4K, KBASE, NTKV), dma("v", VS, [vv] * 5, S4K, VBASE, NTKV)]
    if PFWO:
        for n_ in range(PFN):
            grp = [f"s_lshl_b32 s3, {sB}, 18", f"s_cmp_eq_u32 s79, {n_}", "s_cselect_b32 s83, s3, 0x400000",
                   VM("pf", f"buffer_load_dword {vdump}, {vpw}, {WO}, s83 offen")]
            extra1[PFWO + n_] = extra1[PFWO + n_] + [grp]
    if PFKV:
        for n_ in range(PFN):
            grp = [f"s_cmp_eq_u32 s79, {n_}", "s_cselect_b32 s83, 0, 0x400000"]
            grp += [VM("pf", f"buffer_load_dword {vdump}, {vpw}, {KS if ch == 'k' else VS}, s83 offen") for ch in PFKV]
            extra1[PFAT + n_] = extra1[PFAT + n_] + [grp]
    extra1[1] = [[VM("ci", f"buffer_atomic_add {vone}, {vci_a}, {DBG}, 0 offen sc1")]] + extra1[1]
    for s_ in range(8):
        A.comment(f"q-projection stage {s_}")
        A(W(vm=f"st{s_}", lg="*"))
        A("s_barrier")
        stamp(f"s{s_}")
        ex = extra1[s_]
        n = len(ex)
        parts = [ex[(n * i) // 4:(n * (i + 1)) // 4] for i in range(4)]
        if s_ == 6:
            parts = [ex[:3], ex[3:], [], []]
        for i in range(4):
            rd = reads1(s_, i)
            if s_ == 0 and i == 0:
                seq = rd + parts[0]
            else:
                m = mfmas1(s_, i - 1) if i else mfmas1(s_ - 1, 3)
                seq = spread(interleave(m, rd, start=0, per=RPS), parts[i], lo=2)
            A(seq)
    A(mfmas1(7, 3))
    stamp("qdone")

    vnew = vk
    A(f"v_add_u32 {vnew}, 1, {vtag}")
    A(f"s_mov_b32 s3, {TAGMUL:#x}")
    A(f"v_mul_lo_u32 {vtag}, {vnew}, s3")
    qb = V.get(20, 4)
    for t in range(5):
        for tt in range(2):
            for hf in range(2):
                A(f"v_cvt_pk_bf16_f32 {qb[t * 4 + tt * 2 + hf]}, {acc[tt][t][2 * hf]}, {acc[tt][t][2 * hf + 1]}")
        A(LG("qw", f"ds_write_b128 {qwr}, {qb.sub(t * 4, 4)} offset:{QS + t * 4096}"))
    A(W(vm="k", lg="*"))
    A("s_barrier")
    stamp("bq")

    Qf = [[bB.sub((T * 4 + u) * 4, 4) for u in range(4)] for T in range(2)]
    sr = V.get(40, 4)
    sacc = [[sr.sub((T * 5 + kt) * 4, 4) for kt in range(5)] for T in range(2)]
    P = [bA.sub(0, 10), bA.sub(10, 10)]
    sums = [bB.sub(32, 4), bB.sub(36, 4)]
    ones = qb.sub(16, 4)
    tmpr = V.get(4, 2)
    oacc = [accr.sub(i * 4, 4) for i in range(10)]

    def rQ(T, u):
        if T == 0:
            return LG(f"Q0{u}", f"ds_read_b128 {Qf[0][u]}, {qown} offset:{QS + u * 1024}")
        return LG(f"Q1{u}", f"ds_read_b128 {Qf[1][u]}, {l16} offset:{QS + 16384 + u * 1024}")

    def rK(u):
        return [LG(f"K{kt}{u}", f"ds_read_b64 {Kf.sub((kt * 4 + u) * 4 + 2 * hf, 2)}, {ka[2 * u + hf]} offset:{kt * 4096}")
                for kt in range(5) for hf in range(2)]

    def mS(T, u):
        return [[W(lg=[f"K{kt}{u}", f"Q{T}{u}"]),
                 f"{MF} {sacc[T][kt]}, {Kf.sub((kt * 4 + u) * 4, 4)}, {Qf[T][u]}, {'0' if u == 0 else sacc[T][kt]}"] for kt in range(5)]

    rV = [LG(f"V{i}{ks}", f"ds_read_b64_tr_b16 {Vf.sub(i * 10 + kt * 2, 2)}, {va[i]} offset:{kt * 4096}")
          for ks in range(3) for i in range(8) for kt in range(2 * ks, min(2 * ks + 2, 5))]

    def softmax(T):
        vals = [sacc[T][kt][r_] for kt in range(5) for r_ in range(4)]
        m, t, nm = tmpr[0], tmpr[1], tmpr[2]
        o = [f"v_max3_f32 {m}, {vals[0]}, {vals[1]}, {vals[2]}", f"v_max3_f32 {t}, {vals[3]}, {vals[4]}, {vals[5]}"]
        for i in range(6, 18, 4):
            o.append(f"v_max3_f32 {m}, {m}, {vals[i]}, {vals[i + 1]}")
            o.append(f"v_max3_f32 {t}, {t}, {vals[i + 2]}, {vals[i + 3]}")
        o.append(f"v_max3_f32 {m}, {m}, {vals[18]}, {vals[19]}")
        o.append(f"v_max_f32 {m}, {m}, {t}")
        for sw in ("v_permlane32_swap_b32", "v_permlane16_swap_b32"):
            o += [f"v_mov_b32 {t}, {m}", f"{sw} {m}, {t}", f"v_max_f32 {m}, {m}, {t}"]
        o.append(f"v_mul_f32 {nm}, {sC}, {m}")
        sc = int(sC[1:])
        for i in range(0, 20, 2):
            if PK:
                pr = R("v", vals[i].n, 2)
                o.append(f"v_pk_fma_f32 {pr}, {pr}, s[{sc}:{sc + 1}], {tmpr.sub(2, 2)} op_sel_hi:[1,0,0] neg_lo:[0,0,1] neg_hi:[0,0,1]")
            else:
                o.append(f"v_fma_f32 {vals[i]}, {vals[i]}, {sC}, -{nm}")
                o.append(f"v_fma_f32 {vals[i + 1]}, {vals[i + 1]}, {sC}, -{nm}")
        for i in range(10):
            o += [f"v_exp_f32 {vals[2 * i]}, {vals[2 * i]}", f"v_exp_f32 {vals[2 * i + 1]}, {vals[2 * i + 1]}"]
            if i:
                o.append(f"v_cvt_pk_bf16_f32 {P[T][i - 1]}, {vals[2 * i - 2]}, {vals[2 * i - 1]}")
        o.append(f"v_cvt_pk_bf16_f32 {P[T][9]}, {vals[18]}, {vals[19]}")
        return o

    def mPV(T, slots):
        out = []
        for ks in range(3):
            op, n = (MF, 4) if ks < 2 else (MF16, 2)
            out.append(f"{op} {sums[T]}, {ones.sub(0, n)}, {P[T].sub(ks * 4, n)}, {'0' if ks == 0 else sums[T]}")
            for i, o in slots:
                out.append([W(lg=f"V{i}{ks}"), f"{op} {o}, {Vf.sub(i * 10 + ks * 4, n)}, {P[T].sub(ks * 4, n)}, {'0' if ks == 0 else o}"])
        return out

    def finish(T, pairs, stage):
        rc = tmpr.sub(2 * T, 2)
        out = [f"v_rcp_f32 {rc[0]}, {sums[T][0]}"]
        for p, o0, o1 in pairs:
            if T == 0:
                out += [f"s_add_u32 s3, {sW}, {p}", "s_and_b32 s3, s3, 3", "s_mul_i32 s3, s3, 5", f"s_add_u32 s3, s3, {sW}", "s_lshl_b32 s3, s3, 10"]
            else:
                out += [f"s_mul_i32 s3, {sW}, 5", "s_add_u32 s3, s3, 4", "s_lshl_b32 s3, s3, 10"]
            ob = stage.sub(p * 4, 4)
            for o in (o0, o1):
                for hf in range(2):
                    if PK:
                        out.append(f"v_pk_mul_f32 {o.sub(2 * hf, 2)}, {o.sub(2 * hf, 2)}, {rc} op_sel_hi:[1,0]")
                    else:
                        out += [f"v_mul_f32 {o[2 * hf + e]}, {o[2 * hf + e]}, {rc[0]}" for e in range(2)]
            for hh, o in enumerate((o0, o1)):
                for hf in range(2):
                    out.append(f"v_cvt_pk_bf16_f32 {ob[hh * 2 + hf]}, {o[2 * hf]}, {o[2 * hf + 1]}")
            out.append(VM("ost", f"buffer_store_dwordx4 {ob}, {l16}, {OW}, s3 offen sc1"))
        return out

    wstream = wo_dma(0, U[0]) + wo_dma(1, U[2]) + wo_dma(2, U[1]) + wo_dma(3, U[3]) + wo_dma(4, U[4])
    assert P1 + P2 <= 16
    A([rQ(0, 0)] + rK(0))
    for i in range(4):
        A(f"v_mov_b32 {ones[i]}, 0x3f803f80")
    if P1E:
        A(wstream[:P1])
    for u in range(4):
        nxt = ([rQ(0, u + 1)] + rK(u + 1)) if u < 3 else [rQ(1, k) for k in range(4)]
        A(interleave(mS(0, u), nxt, per=2))
    m1 = [x for u in range(4) for x in mS(1, u)]
    sm0 = softmax(0)
    A(m1[:4])
    segb = spread(sm0, m1[4:], lo=0, hi=len(sm0) - 12)
    A(spread(segb, wstream[P1:P1 + PM], lo=PMLO) if P1E else spread(segb, wstream[:P1], lo=4))
    A(W(vm="v", lg="*"))
    A("s_barrier")
    stamp("bv")
    pv0 = mPV(0, [(i, oacc[i]) for i in range(8)])
    sm1 = softmax(1)
    A(rV[:8])
    seq = spread(sm1, pv0, lo=4)
    seq = interleave(seq, rV[8:], start=0, per=1)
    seq = spread(seq, wstream[P1 + PM:P1 + PM + P2], lo=P2LO, hi=P2LO + 12 * max(P2, 1))
    A(seq)
    A(W(lg="*"))
    A("s_barrier")
    stamp("b2")
    pv1 = mPV(1, [(0, oacc[8]), (1, oacc[9])])
    fin0 = finish(0, [(p, oacc[2 * p], oacc[2 * p + 1]) for p in range(4)], qb)
    A(spread(fin0, pv1, lo=0, hi=30))
    A(finish(1, [(4, oacc[8], oacc[9])], qb))
    stamp("ost")
    A(VM("cir", f"buffer_load_dword {vci}, {vci_r}, {DBG}, 0 offen sc1"))

    vo = vq
    ob = xa[0]
    wa2 = wa
    A(f"s_mul_i32 s83, {sW}, 5120")
    for j in range(8):
        A(f"s_add_u32 s3, {sB}, {j}")
        A("s_and_b32 s3, s3, 7")
        A("s_mul_i32 s3, s3, 20480")
        A("s_add_u32 s3, s3, s83")
        A(f"v_add_u32 {vo[j]}, s3, {l16}")
    for k in range(3):
        A(f"v_add_u32 {ob[k]}, {k * 65536}, {l16}")
    for tt in range(2):
        A(f"s_lshl_b32 s3, {sW}, 6")
        A(f"s_add_u32 s3, s3, {32 * tt}")
        A(f"v_xor_b32 {wa2[tt][0]}, s3, {trb}")
        A(f"v_add_u32 {wa2[tt][1]}, 0x10000, {wa2[tt][0]}")
        A(f"v_add_u32 {wa2[tt][2]}, 0x20000, {wa2[tt][0]}")
    A(f"s_cmp_eq_u32 {sW}, {sKQ}")
    for i in range(1, 4):
        A(f"s_cselect_b32 {sRECV4[i]}, {sRECV[i]}, {PSIZE}")
    A(f"s_cselect_b32 {sOWN4}, 0xff, 0")
    A(f"s_mov_b32 {sROW4}, 0x40000")
    A(f"s_cselect_b32 {sROW4}, 0x20000, {sROW4}")
    A(f"s_lshl_b32 {sROW0}, {sKQ}, 15")
    oa = vx[0]
    A(f"v_readfirstlane_b32 {sTAG[0]}, {vtag}")
    for i in range(4):
        A(f"s_mov_b32 {sSEL[i]}, {0x07060500 + i:#x}")
    for i in range(1, 4):
        A(f"s_lshr_b32 {sTAG[i]}, {sTAG[0]}, {8 * i}")
    A(f"v_lshlrev_b32 {oa}, 11, {q}")
    A(f"v_lshl_add_u32 {oa}, {g}, 4, {oa}")

    def wo_reads(j, ub):
        out = []
        for u in range(4):
            for tt in range(2):
                for hf in range(2):
                    rg, off = lds_ref(wa2[tt], ub + u * 8192 + hf * 4096)
                    out.append(LG(f"W{j * 4 + u}", f"ds_read_b64_tr_b16 {Wf.sub(((j * 4 + u) * 2 + tt) * 4 + 2 * hf, 2)}, {rg} offset:{off}"))
        return out

    rest = wstream[P1 + PM + P2:]
    nb = NB
    A(rest[:nb])
    A(W(vm="ost"))
    A(VM("f1", f"buffer_store_dword {vtag}, {vf1}, {FL}, 0 offen sc1"))
    stamp("f1set")
    slots = [4, 1, 2, 3, 0]
    ohome = [U[1], U[4], U[0], U[2], U[3]]

    def o_dma(p):
        sl = slots[p]
        pre = [f"s_add_u32 s3, {sKQ}, {sl}", "s_and_b32 s3, s3, 3", f"s_lshl_b32 {sSO0}, s3, 10"] if sl < 4 else [f"s_mov_b32 {sSO0}, 4096"]
        g_ = dma(f"o{p}", OR, vo, sSO0, ohome[p], "sc1")
        g_[0] = pre + g_[0]
        return g_

    done = P1 + PM + P2 + nb
    cut = max(done, 16 + AHEAD)
    A(wstream[done:cut])
    A(W(vm=["wo0", "wo1"]))
    A("s_barrier")
    stamp("b3")
    A(interleave(wstream[cut:], wo_reads(0, U[0]) + wo_reads(1, U[2]), per=2))
    A(W(vm=["wo2", "wo3"], lg="*"))
    A("s_barrier")
    stamp("b4")
    pollop = VM("poll", f"buffer_load_dword {vpf}, {vp1}, {FL}, 0 offen sc1")
    A(interleave(wo_dma(5, U[0]) + [pollop] + wo_dma(6, U[2])[:PW6], wo_reads(2, U[1]) + wo_reads(3, U[3]), per=4))
    A(W(vm=["wo4", "poll"], lg="*"))
    A("s_barrier")
    A.label("L_p1")
    A(f"v_cmp_ne_u32 vcc, {vtag}, {vpf}")
    A("s_nop 1")
    A("s_cbranch_vccnz L_p1_slow")
    A.label("L_p1_done")
    C.label("L_p1_slow")
    C(pollop.text)
    C("s_waitcnt vmcnt(0)")
    bounded("L_p1", "L_p1_done")
    stamp("f1ok")
    A(interleave(wo_dma(6, U[2])[PW6:] + o_dma(0), wo_reads(4, U[4]) + wo_reads(5, U[0]), per=3))
    A(wo_dma(7, U[3])[:AHEAD])
    A(W(vm="wo6", lg="*"))
    A("s_barrier")
    stamp("b5")
    A(interleave(wo_dma(7, U[3])[AHEAD:], wo_reads(6, U[2]), per=4))
    late = o_dma(1)

    quads = [sr.sub(i * 4, 4) for i in range(10)] + [bA.sub(i * 4, 4) for i in range(2)]
    gA = {i: quads[2 * (i - 1):2 * i] for i in range(1, 4)}
    gB = {i: quads[6 + 2 * (i - 1):6 + 2 * i] for i in range(1, 4)}
    xacc = {0: tmpr[0], 1: tmpr[1]}

    groups = [[(3, 0), (1, 1), (2, 1), (3, 1)], [(2, 0), (1, 0)]]
    if CB:
        groups = [groups[0], [(1, 0)], [(2, 0)]]
    vcan = vx[1]
    vcan_g = vx[2:5]
    for gi, keys in enumerate(groups):
        A(f"v_mov_b32 {vcan_g[gi]}, {PSIZE}")
        for i, four in keys:
            A(f"s_add_u32 s3, {sRECV4[i] if four else sRECV[i]}, {4080 if four else 2032}")
            A(f"v_writelane_b32 {vcan_g[gi]}, s3, {i - 1 + 4 * four}")
    A(f"s_and_b32 {sTAGB}, {sTAG[0]}, 0xff")

    def canary(tag, gi):
        vcan_a = vcan_g[gi]
        if CAN == "atomic":
            return [f"v_mov_b32 {vcan}, 0", VM(tag, f"buffer_atomic_add {vcan}, {vcan_a}, {PT}, 0 offen sc0 sc1")]
        return [VM(tag, f"buffer_load_dword {vcan}, {vcan_a}, {PT}, 0 offen sc1")]

    def judge():
        return [f"v_and_b32 {vcan}, 0xff, {vcan}", f"v_cmp_eq_u32 vcc, {sTAGB}, {vcan}", "s_nop 3"]

    def gate(tag, keys):
        mask = sum(1 << (i - 1 + 4 * four) for i, four in keys)
        out = [W(vm=tag)] + judge()
        out += [f"s_or_b32 s83, {sOWN4}, 15", f"s_and_b32 s83, s83, {mask}", f"s_andn2_b32 s83, s83, vcc_lo",
                f"s_mov_b32 {sSKIP}, s83" if tag == "c1" else f"s_or_b32 {sSKIP}, {sSKIP}, s83"]
        for i, four in keys:
            out += [f"s_bitcmp1_b32 vcc_lo, {i - 1 + 4 * four}", f"s_cselect_b32 {sEFF[(i, four)]}, {sRECV4[i] if four else sRECV[i]}, {PSIZE}"]
        return out

    def gather(i, four, gated=False):
        so, bufs = (sRECV4[i], gB[i]) if four else (sRECV[i], gA[i])
        if gated and CAN != "off":
            so = sEFF[(i, int(four))]
        return [VM(f"g{i}{int(four)}", f"buffer_load_dwordx4 {bufs[tt]}, {l16}, {PT}, {so} offen offset:{(tt + 2 * four) * 1024} sc1") for tt in range(2)]

    def verify(i, four):
        x = xacc[int(four)]
        return [W(vm=f"g{i}{int(four)}")] + [f"v_bitop3_b32 {x}, {x}, {qd[e]}, {sTAG[e]} bitop3:0xf6" for qd in (gB if four else gA)[i] for e in range(4)]

    def send(sl):
        out = []
        for tt in range(2):
            d = acc[tt][sl]
            out.append([f"v_perm_b32 {d[e]}, {d[e]}, {vtag}, {sSEL[e]}" for e in range(4)]
                       + [VM("snd", f"buffer_store_dwordx4 {d}, {l16}, {PT}, {sSEND[sl]} offen offset:{(tt + (2 if sl == 4 else 0)) * 1024} sc1")])
        return out

    frag = [bB.sub(i * 4, 4) for i in range(DEPTH)]
    after = {k: [] for k in range(160)}

    def place(items, lo, hi):
        for n_, it in enumerate(items):
            after[lo + (n_ * (hi - lo)) // len(items)].append(it)

    place(late, 0, 10)
    after[W7AT].append([W(vm="wo7"), "s_barrier"])
    place(wo_reads(7, U[3]), W7AT + 1, W7AT + 9)
    place(o_dma(2), 12, 30)
    place(o_dma(3), 44, 62)
    place(o_dma(4), 76, 94)
    for p in range(4):
        place(send(slots[p]), 32 * p + 34, 32 * p + 36)
    after[C1AT].append(canary("c1", 0))
    after[GT1].append(gate("c1", groups[0]))
    place([x for i, f in groups[0] for x in gather(i, f, True)], GG1, GG1 + 8)
    if CB:
        after[CB].append(canary("cb", 2))
        after[GTB].append(gate("cb", groups[2]))
        place(gather(2, 0, True), GTB + 1, GTB + 3)
    after[C2AT].append(canary("c2", 1))

    def rd2(k):
        p, kk = divmod(k, 32)
        rg, off = lds_ref(ob, ohome[p] + kk * 1024)
        if kk == 0:
            A(W(vm=f"o{p}", lg="*" if p == 0 else ()))
            A("s_barrier")
            stamp(f"p{p}")
        A(LG(f"F{k}", f"ds_read_b128 {frag[k % DEPTH]}, {rg} offset:{off}"))

    for k in range(DEPTH - 1):
        rd2(k)
    for k in range(160):
        p, kk = divmod(k, 32)
        sl = slots[p]
        A(W(lg=[f"F{k}", f"W{kk}"]))
        A(f"{MF} {acc[0][sl]}, {Wf.sub(kk * 8, 4)}, {frag[k % DEPTH]}, {'0' if kk == 0 else acc[0][sl]}")
        if k + DEPTH - 1 < 160:
            rd2(k + DEPTH - 1)
        A(f"{MF} {acc[1][sl]}, {Wf.sub(kk * 8 + 4, 4)}, {frag[k % DEPTH]}, {'0' if kk == 0 else acc[1][sl]}")
        A(after[k])
    stamp("pdone")

    def need_mask(X_, gi):
        mask = sum(1 << (i - 1 + 4 * four) for i, four in groups[gi])
        X_(f"s_or_b32 s83, {sOWN4}, 15")
        X_(f"s_and_b32 s83, s83, {mask}")

    def cold_await(lab, gi):
        need_mask(C, gi)
        C.label(lab + "_w")
        C(txt(canary("cw", gi)))
        C("s_waitcnt vmcnt(0)")
        C(judge())
        C("s_and_b32 s3, vcc_lo, s83")
        C("s_cmp_eq_u32 s3, s83")
        C(f"s_cbranch_scc1 {lab}_go")
        bounded(lab + "_w", lab + "_go")

    def settle(lab, keys, gi):
        A.label(lab)
        four_too = any(f for _, f in keys)
        A([f"v_mov_b32 {xacc[0]}, 0", f"v_mov_b32 {xacc[1]}, 0"][:2 if four_too else 1])
        for i, four in keys:
            A(verify(i, four))
        A(f"v_and_b32 {xacc[0]}, 0xff, {xacc[0]}")
        if four_too:
            A(f"v_and_or_b32 {xacc[0]}, {xacc[1]}, {sOWN4}, {xacc[0]}")
        A(f"v_cmp_ne_u32 vcc, 0, {xacc[0]}")
        A("s_nop 1")
        A(f"s_cbranch_vccnz {lab}_slow")
        A.label(lab + "_done")
        C.label(lab + "_slow")
        cold_await(lab, gi)
        C.label(lab + "_go")
        C(txt([gather(i, four) for i, four in keys]))
        C("s_waitcnt vmcnt(0)")
        bounded(lab, lab + "_done")

    def add_in(t_, quads2):
        for tt in range(2):
            for hf in range(2):
                d = acc[tt][t_].sub(2 * hf, 2)
                A(f"v_pk_add_f32 {d}, {d}, {quads2[tt].sub(2 * hf, 2)}")

    def emit_rows(t_, soff, stg):
        for tt in range(2):
            for hf in range(2):
                A(f"v_cvt_pk_bf16_f32 {stg[tt * 2 + hf]}, {acc[tt][t_][2 * hf]}, {acc[tt][t_][2 * hf + 1]}")
        for hf in range(2):
            A(f"v_permlane32_swap_b32 {stg[hf]}, {stg[2 + hf]}")
        for hf in range(2):
            A(f"v_permlane16_swap_b32 {stg[hf]}, {stg[2 + hf]}")
        A(VM("out", f"buffer_store_dwordx4 {stg}, {oa}, {OUT}, {soff} offen {OUTMOD}".rstrip()))

    need_mask(A, 1)
    A(W(vm="c2"))
    A(judge())
    A("s_and_b32 s3, vcc_lo, s83")
    A("s_cmp_eq_u32 s3, s83")
    A("s_cbranch_scc0 L_a_slow")
    A.label("L_a_go")
    C.label("L_a_slow")
    cold_await("L_a", 1)
    stamp("cok")
    A([gather(i, f) for i, f in groups[1]])
    settle("L_c0", groups[0], 0)
    for i in (3, 2, 1):
        add_in(4, gB[i])
    add_in(0, gA[3])
    emit_rows(4, sROW4, qb.sub(4, 4))
    if CB:
        settle("L_c2", groups[2], 2)
        add_in(0, gA[2])
        settle("L_c1", groups[1], 1)
    else:
        settle("L_c1", groups[1], 1)
        add_in(0, gA[2])
    stamp("gok")
    add_in(0, gA[1])
    emit_rows(0, sROW0, qb.sub(0, 4))
    A("s_and_b32 s3, s2, 31")
    A(f"s_or_b32 s3, s3, {sW}")
    A("s_cmp_eq_u32 s3, 0")
    A("s_cbranch_scc1 L_ci")
    A.label("L_noep")
    C.label("L_ci")
    C(f"v_readfirstlane_b32 s3, {vci}")
    C("s_cmp_ge_u32 s3, 32")
    C("s_cbranch_scc1 L_ci_done")
    C(f"buffer_load_dword {vci}, {vci_r}, {DBG}, 0 offen sc1")
    C("s_waitcnt vmcnt(0)")
    bounded("L_ci", "L_ci_done")
    C.label("L_ci_done")
    C(f"v_lshl_add_u32 {vep}, {lane}, 20, {vep}")
    C(f"buffer_store_dword {vnew}, {vep}, {FL}, 0 offen sc1")
    C("s_branch L_noep")
    if STAMPS:
        A("s_waitcnt vmcnt(0)")
        stamp("end")
        A(W(lg="*"))
        harvest()
        A("s_lshl_b32 s3, s2, 8")
        A(f"s_add_u32 s3, s3, {STAMP_OFF}")
        A(srd(KS, 18, "s3", 256))
        A(f"v_lshlrev_b32 {t0}, 2, v0")
        A(f"buffer_store_dword {vstamp}, {t0}, {KS}, 0 offen")
    A.label("L_end")
    A("s_endpgm")
    A.lines += C.lines
    A.label("L_last")
    A("s_endpgm")
    if NONOP:
        print("dropped", drop_m0_nops(A.lines), "m0 nops")
    n = autopad(A.lines)
    print("autopad inserted", n, "nops; vgpr", V.hi, "agpr", AG.hi)
    check(A.lines, NAME)
    return A.text(), descriptor(NAME, V.hi, AG.hi, 100), names


def main():
    code, desc, names = build()
    out = HEADER
    out += "; @launch grid=(256,1,1) block=(256,1,1) lds=163840\n"
    if names:
        out += "; stamps: " + ",".join(names) + "\n"
    out += '.amdgcn_target "amdgcn-amd-amdhsa--gfx950"\n.text\n' + code + desc
    open(sys.argv[1], "w").write(out)


main()
```

```python
import re


def v(n, cnt=1):
    return f"v{n}" if cnt == 1 else f"v[{n}:{n + cnt - 1}]"


def a(n, cnt=1):
    return f"a{n}" if cnt == 1 else f"a[{n}:{n + cnt - 1}]"


def s(n, cnt=1):
    return f"s{n}" if cnt == 1 else f"s[{n}:{n + cnt - 1}]"


class R:
    def __init__(self, f, n, cnt=1):
        self.f, self.n, self.cnt = f, n, cnt

    def __getitem__(self, i):
        if isinstance(i, slice):
            assert i.stop <= self.cnt
            return R(self.f, self.n + i.start, i.stop - i.start)
        assert 0 <= i < self.cnt, (i, self.cnt)
        return R(self.f, self.n + i, 1)

    def sub(self, off, cnt):
        assert off + cnt <= self.cnt, (off, cnt, self.cnt)
        return R(self.f, self.n + off, cnt)

    def __str__(self):
        return f"{self.f}{self.n}" if self.cnt == 1 else f"{self.f}[{self.n}:{self.n + self.cnt - 1}]"

    __repr__ = __str__


class Alloc:
    def __init__(self, f, start, limit):
        self.f, self.cur, self.limit, self.hi = f, start, limit, start

    def get(self, cnt=1, align=1):
        if cnt >= 2 and align == 1:
            align = 2
        self.cur = (self.cur + align - 1) // align * align
        r = R(self.f, self.cur, cnt)
        self.cur += cnt
        assert self.cur <= self.limit, f"out of {self.f} registers: {self.cur} > {self.limit}"
        self.hi = max(self.hi, self.cur)
        return r


class Op:
    def __init__(self, kind, tag, text=None, rng=None):
        self.kind, self.tag, self.text, self.rng = kind, tag, text, rng


def VM(tag, text, rng=None):
    return Op("vm", tag, text, rng)


def LG(tag, text, rng=None):
    return Op("lg", tag, text, rng)


def SM(text):
    return Op("sm", "smem", text)


def W(vm=(), lg=()):
    return Op("wait", (tuple(vm) if not isinstance(vm, str) else (vm,), tuple(lg) if not isinstance(lg, str) else (lg,)))


class Asm:
    def __init__(self):
        self.lines = []
        self.vmq, self.lgq = [], []
        self.vm_done = self.lg_done = self.vm_n = self.lg_n = 0
        self.open_reads, self.open_writes = [], []
        self.lds_problems = []

    def _lds(self, o):
        is_write = o.kind == "vm" or o.text.startswith("ds_write")
        lo, hi = o.rng
        for kind, n, (a0, a1), txt in self.open_writes + (self.open_reads if is_write else []):
            if a0 < hi and lo < a1:
                self.lds_problems.append(f"'{o.text}' {o.rng} not ordered after '{txt}' {(a0, a1)}")
        rec = (o.kind, self.vm_n if o.kind == "vm" else self.lg_n, o.rng, o.text)
        (self.open_writes if is_write else self.open_reads).append(rec)

    def _barrier(self):
        vm_done, lg_done = self.vm_n - len(self.vmq), self.lg_n - len(self.lgq)
        keep = lambda recs: [r for r in recs if r[1] > (vm_done if r[0] == "vm" else lg_done)]
        self.open_reads, self.open_writes = keep(self.open_reads), keep(self.open_writes)

    def __call__(self, item):
        if isinstance(item, (list, tuple)):
            for it in item:
                self(it)
            return
        if isinstance(item, Op):
            self._op(item)
            return
        if callable(item):
            item()
            return
        for ln in str(item).split("\n"):
            ln = ln.strip()
            if ln:
                self.lines.append(ln)
                if ln == "s_barrier":
                    self._barrier()

    @staticmethod
    def _need(q, tags):
        if "*" in tags:
            return 0 if q else None
        last = max((i for i, t in enumerate(q) if t in tags), default=None)
        return None if last is None else len(q) - 1 - last

    def _op(self, o):
        if o.kind == "vm":
            self.vmq.append(o.tag)
            self.vm_n += 1
            if o.rng:
                self._lds(o)
            assert len(self.vmq) <= 63, "vmcnt overflow"
            self.lines.append(o.text)
        elif o.kind in ("lg", "sm"):
            load = len(self.lgq) + self.lgq.count("smem")
            if load + (2 if o.kind == "sm" else 1) > 15:
                keep = 0 if "smem" in self.lgq else 12
                self.lines.append(f"s_waitcnt lgkmcnt({keep})")
                self.lgq = self.lgq[len(self.lgq) - keep:] if keep else []
            self.lgq.append(o.tag)
            self.lg_n += 1
            if o.rng:
                self._lds(o)
            self.lines.append(o.text)
        else:
            vt, lt = o.tag
            nv, nl = self._need(self.vmq, vt), self._need(self.lgq, lt)
            if nl is not None and "smem" in self.lgq:
                nl = 0
            parts = []
            if nv is not None:
                parts.append(f"vmcnt({nv})")
                self.vmq = self.vmq[len(self.vmq) - nv:] if nv else []
            if nl is not None:
                parts.append(f"lgkmcnt({nl})")
                self.lgq = self.lgq[len(self.lgq) - nl:] if nl else []
            if parts:
                self.lines.append("s_waitcnt " + " ".join(parts))

    def label(self, name):
        self.lines.append(name + ":")

    def comment(self, text):
        self.lines.append("; " + text)

    def text(self):
        out = []
        for ln in self.lines:
            if ln.endswith(":") or ln.startswith(".") or ln.startswith(";"):
                out.append(ln)
            else:
                out.append("    " + ln)
        return "\n".join(out) + "\n"


def interleave(main, fill, start=0, per=1, every=1):
    out = []
    fi = 0
    for i, m in enumerate(main):
        out.append(m)
        if i >= start and (i - start) % every == 0:
            for _ in range(per):
                if fi < len(fill):
                    out.append(fill[fi])
                    fi += 1
    out.extend(fill[fi:])
    return out


def spread(main, fill, lo=0, hi=None):
    hi = len(main) if hi is None else hi
    n = hi - lo
    slots = [[] for _ in main]
    for j, f in enumerate(fill):
        slots[lo + (j * n) // max(len(fill), 1)].append(f)
    out = []
    for m, sl in zip(main, slots):
        out.append(m)
        out.extend(sl)
    return out


def flat(items):
    out = []
    for it in items:
        if isinstance(it, (list, tuple)):
            out.extend(flat(it))
        else:
            out.append(it)
    return out


_REG = re.compile(r"^-?(?:abs\()?([vas])(?:(\d+)|\[(\d+):(\d+)\])\)?$")
TRANS = ("v_exp_f32", "v_log_f32", "v_rcp_f32", "v_rsq_f32", "v_sqrt_f32", "v_sin_f32", "v_cos_f32")


def regs_of(op):
    op = op.strip()
    if op in ("vcc", "exec", "m0", "scc"):
        return {(op, 0)}
    if op in ("vcc_lo", "vcc_hi"):
        return {("vcc", 0)}
    m = _REG.match(op)
    if not m:
        return set()
    f = m.group(1)
    if m.group(2) is not None:
        return {(f, int(m.group(2)))}
    return {(f, i) for i in range(int(m.group(3)), int(m.group(4)) + 1)}


class Ins:
    def __init__(self, text):
        self.text = text
        body = text.split(";")[0].strip()
        parts = body.split(None, 1)
        self.op = parts[0]
        for suf in ("_e32", "_e64", "_dpp", "_sdwa"):
            if self.op.endswith(suf):
                self.op = self.op[: -len(suf)]
        rest = parts[1] if len(parts) > 1 else ""
        rest = re.sub(r"\s+(op_sel|op_sel_hi|neg_lo|neg_hi):\[[^\]]*\]", "", rest)
        ops = [o.strip() for o in rest.split(",")] if rest else []
        mods = ""
        if ops:
            last = ops[-1].split(None, 1)
            ops[-1] = last[0]
            mods = last[1] if len(last) > 1 else ""
        self.ops, self.mods = ops, mods
        op = self.op
        self.is_mfma = op.startswith("v_mfma")
        self.is_valu = op.startswith("v_") and not self.is_mfma
        self.is_salu = op.startswith("s_") and not op.startswith(("s_load", "s_buffer_load", "s_waitcnt", "s_nop", "s_barrier", "s_cbranch", "s_branch", "s_endpgm", "s_memtime", "s_memrealtime", "s_sleep", "s_setprio"))
        self.is_smem = op.startswith(("s_load", "s_buffer_load", "s_memtime", "s_memrealtime"))
        self.is_ds = op.startswith("ds_")
        self.is_vmem = op.startswith(("buffer_", "global_"))
        self.is_dma = self.is_vmem and (" lds" in " " + mods or "_lds_" in op)
        self.is_store = self.is_vmem and "store" in op
        self.is_dpp = "row_" in mods or "quad_perm" in mods
        rs = [regs_of(o) for o in ops]
        w, r = set(), set()
        if self.is_mfma:
            w = rs[0]
            self.A, self.B, self.C = rs[1], rs[2], rs[3]
            r = rs[1] | rs[2] | rs[3]
            self.passes = 8 if "32x32" in op else 4
        elif self.is_dma or self.is_store or op.startswith(("ds_write", "s_cmp", "s_bitcmp", "buffer_inv", "buffer_wbl2")):
            for x in rs:
                r |= x
            if self.is_dma:
                r |= {("m0", 0)}
        elif "atomic" in op:
            for x in rs:
                r |= x
            if "sc0" in mods:
                w = rs[0]
        elif op.startswith("v_permlane") and "swap" in op:
            w = rs[0] | rs[1]
            r = set(w)
        elif op.startswith(("s_waitcnt", "s_nop", "s_barrier", "s_branch", "s_endpgm", "s_sleep", "s_setprio")):
            pass
        elif op.startswith("s_cbranch"):
            if "vcc" in op:
                r = {("vcc", 0)}
        else:
            if rs:
                w = set(rs[0])
                for x in rs[1:]:
                    r |= x
            if op.startswith(("v_add_co", "v_sub_co", "v_addc_co", "v_subb_co")):
                w |= rs[1]
                r = set().union(*rs[2:])
            if op.startswith(("v_fmac", "v_pk_fmac", "s_addk", "s_mulk", "v_writelane", "s_bitset")):
                r |= rs[0]
            if "saveexec" in op:
                w |= {("exec", 0)}
        self.w, self.r = w, r
        self.store_data = rs[0] if (self.is_store and op.startswith("buffer_")) else (rs[1] if self.is_store else set())
        self.wide_store = self.is_store and ("x4" in op or "x3" in op)

    def states(self):
        if self.op == "s_nop":
            return int(self.ops[0], 0) + 1
        return 1


_cache = {}


def _parsed(text):
    if text not in _cache:
        _cache[text] = Ins(text)
    return _cache[text]


def vec(rs):
    return {x for x in rs if x[0] in "va"}


def sca(rs):
    return {x for x in rs if x[0] in ("s", "vcc")}


def drop_m0_nops(lines):
    n = 0
    i = 1
    while i + 2 < len(lines):
        if lines[i].startswith("s_add_u32 m0,") and lines[i + 1] == "s_nop 0":
            prev = lines[i - 1]
            if prev.startswith(("v_", "ds_")) and "vcc" not in prev:
                lines[i - 1], lines[i] = lines[i], prev
                del lines[i + 1]
                n += 1
        i += 1
    return n


def autopad(lines):
    added = 0
    while True:
        short = []
        check(lines, verbose=False, short=short)
        if not short:
            return added
        idx, miss = short[0]
        miss = max(m for i, m in short if i == idx)
        lines.insert(idx, f"s_nop {miss - 1}")
        added += 1


def check(lines, name="", verbose=True, short=None):
    where = [k for k, l in enumerate(lines) if l and not l.endswith(":") and not l.startswith((".", ";"))]
    ins = [_parsed(lines[k]) for k in where]
    probs = []
    vm, lg = [], []
    for i, c in enumerate(ins):
        if c.op == "s_waitcnt":
            t = " ".join(c.ops) + " " + c.mods
            m = re.search(r"vmcnt\((\d+)\)", t)
            if m:
                n = int(m.group(1))
                assert n <= 63
                vm = vm[len(vm) - n:] if n < len(vm) and n > 0 else ([] if n == 0 else vm)
            m = re.search(r"lgkmcnt\((\d+)\)", t)
            if m:
                n = int(m.group(1))
                assert n <= 15
                if n > 0 and any(k == "smem" for k, _, _ in lg):
                    probs.append(f"[{i}] counted lgkmcnt with SMEM outstanding: {c.text}")
                lg = lg[len(lg) - n:] if n < len(lg) and n > 0 else ([] if n == 0 else lg)
        touched = c.r | c.w
        for q in (vm, lg):
            for kind, dst, txt in q:
                if dst & touched and not (c.is_ds and kind == "ds" and not (dst & c.r)) and not (c.is_vmem and kind == "vm" and not (dst & c.r)):
                    probs.append(f"[{i}] '{c.text}' touches {sorted(dst & touched)[:2]} with outstanding '{txt}'")
        if c.is_vmem:
            vm.append(("vm", set(c.w), c.text))
            if len(vm) > 63:
                probs.append(f"[{i}] more than 63 vector-memory ops outstanding (issue stalls): {c.text}")
                vm = vm[1:]
        if c.is_ds:
            lg.append(("ds", set(c.w), c.text))
        if c.is_smem:
            lg.append(("smem", set(c.w), c.text))
        if short:
            break
        dist = 0
        for j in range(i - 1, max(i - 14, -1), -1):
            p = ins[j]
            need = 0
            if p.is_valu:
                if c.is_mfma and vec(p.w) & c.r:
                    need = max(need, 2)
                if c.op.startswith("v_permlane") and vec(p.w) & c.r:
                    need = max(need, 2)
                if c.is_dpp and vec(p.w) & c.r:
                    need = max(need, 2)
                if c.op in ("v_readfirstlane_b32", "v_readlane_b32") and vec(p.w) & c.r:
                    need = max(need, 1)
                if p.op in TRANS and c.is_valu and vec(p.w) & (c.r | c.w):
                    need = max(need, 1)
                if sca(p.w) & c.r:
                    if c.is_valu:
                        need = max(need, 2)
                    if c.is_vmem:
                        need = max(need, 5)
                    if c.op.startswith("v_readlane") or c.op.startswith("v_writelane"):
                        need = max(need, 4)
                if ("exec", 0) in p.w and (c.is_valu or c.is_mfma):
                    need = max(need, 5)
            if p.is_mfma:
                full = 8 if p.passes == 4 else 12
                if c.is_mfma:
                    if p.w & (c.A | c.B):
                        need = max(need, full)
                    if p.w & c.C and not (p.w == c.C and p.op == c.op):
                        need = max(need, full - 2)
                    if p.w & c.w and not (p.w & c.C):
                        need = max(need, full - 2)
                elif (c.is_valu or c.is_vmem or c.is_ds) and p.w & (c.r | c.w):
                    need = max(need, full)
                if c.is_valu and p.C & c.w:
                    need = max(need, 3 if p.passes == 4 else 7)
            if p.is_salu and ("m0", 0) in p.w and c.is_dma:
                need = max(need, 1)
            if p.wide_store and p.store_data & c.w:
                need = max(need, 2 if c.is_valu or c.is_mfma else 1)
            if dist < need:
                if short is not None:
                    short.append((where[i], need - dist))
                probs.append(f"[{i}] hazard: '{p.text}' -> '{c.text}' needs {need} wait states, has {dist}")
            dist += p.states()
    if verbose:
        for pr in probs[:40]:
            print(f"CHECK {name}: {pr}")
        print(f"check {name}: {len(ins)} instructions, {len(probs)} problems")
    return probs


def descriptor(name, vgpr, agpr, sgpr):
    acc = (vgpr + 3) // 4 * 4
    nfv = acc + agpr if agpr else vgpr
    return f""".section .rodata,"a"
.p2align 6
.amdhsa_kernel {name}
  .amdhsa_next_free_vgpr {nfv}
  .amdhsa_next_free_sgpr {sgpr}
  .amdhsa_accum_offset {acc}
  .amdhsa_group_segment_fixed_size 0
  .amdhsa_kernarg_size 64
  .amdhsa_user_sgpr_count 2
  .amdhsa_user_sgpr_kernarg_segment_ptr 1
  .amdhsa_system_sgpr_workgroup_id_x 1
  .amdhsa_float_denorm_mode_32 3
.end_amdhsa_kernel
"""


HEADER = """; Kernarg layout for this problem (64 bytes, ptrs only, base s[0:1]):
;   offset  16: d_in[2] v_cache  shape=(8, 32, 80, 128) dtype=bfloat16 strides=(655360, 20480, 256, 2) contiguous=True
"""
```

```python
import math
import struct
import sys

from asmlib import *

OPT = dict(kv.split("=") for kv in sys.argv[2:])
STAMPS = int(OPT.get("stamps", 0))
ONLY = [x for x in OPT.get("only", "").split(",") if x]
PK = int(OPT.get("pk", 1))
RPS = int(OPT.get("rps", 1))
P1 = int(OPT.get("p1", 5))
P2 = int(OPT.get("p2", 0))
DEPTH = int(OPT.get("depth", 10))
G2AT = int(OPT.get("g2", 0))
C3AT = int(OPT.get("c3", 139))
G4AT = int(OPT.get("g4", 100))
EPAT = int(OPT.get("epat", 56))
PFWO = int(OPT.get("pfwo", 0))
PFN = int(OPT.get("pfn", 4))
P1E = int(OPT.get("p1e", 1))
P2LO = int(OPT.get("p2lo", 50))
PM = int(OPT.get("pm", 3))
PMLO = int(OPT.get("pmlo", 30))
PFKV = OPT.get("pfkv", "")
PFAT = int(OPT.get("pfat", 2))
AHEAD = int(OPT.get("ahead", 6))
PW6 = int(OPT.get("pw6", 6))
W7AT = int(OPT.get("w7at", 10))
G1AT = int(OPT.get("g1", 106))
CAN = OPT.get("can", "atomic")
C1AT = int(OPT.get("c1", 0))
GT1 = int(OPT.get("gt1", 97))
GG1 = int(OPT.get("gg1", 105))
C2AT = int(OPT.get("c2", 135))
CPF = int(OPT.get("cpf", 1))
TLB = OPT.get("tlb", "")
CB = int(OPT.get("cb", 0))
GTB = int(OPT.get("gtb", 145))
OUTMOD = OPT.get("outmod", "").replace("+", " ")
SPEC = int(OPT.get("spec", 0))
NONOP = int(OPT.get("nonop", 1))
TAGMUL = 0x9E3779B1
NTKV = "nt" if int(OPT.get("ntkv", 1)) else ""
NB = int(OPT.get("nb", 8))
O3 = [int(x) for x in OPT.get("o3", "36,46").split(",")]
O4 = [int(x) for x in OPT.get("o4", "63,71").split(",")]
SGAP = int(OPT.get("sgap", 2))
SGAPL = int(OPT.get("sgapl", 2))
SPLITP = int(OPT.get("splitp", 1))
GSP = int(OPT.get("gsp", 8))
S0AT = int(OPT.get("s0at", 0))
O2 = [int(x) for x in OPT.get("o2", "12,26").split(",")]
W7F = int(OPT.get("w7f", 0))
PP = int(OPT.get("pp", 2))
N45 = int(OPT.get("n45", 10))
WG1 = int(OPT.get("wg1", 1))
WGRP = {1: [0, 2, 2, 4, 4], 2: [1, 1, 4, 4, 4], 3: [4, 4, 4, 4, 4], 4: [0, 1, 3, 3, 4]}
ABL = OPT.get("abl", "")
WG2 = int(OPT.get("wg2", 1))
SPIN = 64 if ABL else 1 << 20

NAME = "standalone__mha_block_cached__near_ridge_kernel"
SLOT = 53248
KBASE = 2 * SLOT
VBASE = KBASE + 20480
QS = 32768
U = [i * 32768 for i in range(5)]
F1OFF = 6 << 20
F2REL = 32768
POFF = 8 << 20
PSIZE = 16 << 20
STAMP_OFF = 64 << 20
MF = "v_mfma_f32_16x16x32_bf16"
MF16 = "v_mfma_f32_16x16x16_bf16"

sW, sB, sH, sROT1 = "s20", "s21", "s22", "s23"
X, WQ, KS, VS, OW, WO, OR, FL, DBG, PT, OUT = (f"s[{n}:{n + 3}]" for n in range(24, 68, 4))
sW1K, sXCD, sSO0, sSO1, sKQ, sNT, sC, sHH, sSPIN = "s68", "s69", "s70", "s71", "s77", "s78", "s80", "s81", "s82"
S4K = [f"s{72 + j}" for j in range(5)]
sGRP = "s86"
sSEND = {i: f"s{87 + i}" for i in range(1, 5)}
sRECV = {i: f"s{91 + i}" for i in range(1, 4)}
sRECV4 = {1: "s24", 2: "s25", 3: "s26"}
sROW0, sROW4, sOWN4 = "s27", "s28", "s29"
sSEL = [f"s{32 + i}" for i in range(4)]
sTAG = [f"s{36 + i}" for i in range(4)]
sEFF = {(i, f): f"s{40 + 3 * f + i - 1}" for i in range(1, 4) for f in range(2)}
sTAGB, sEPD, sBP, sEPW = "s30", "s31", "s79", "s40"


def f32bits(x):
    return struct.unpack("<I", struct.pack("<f", x))[0]


def srd(d, lo, off, size):
    n = int(d[2:d.index(":")])
    if off is None:
        o = [f"s_mov_b32 s{n}, s{lo}", f"s_and_b32 s{n + 1}, s{lo + 1}, 0xffff"]
    else:
        o = [f"s_add_u32 s{n}, s{lo}, {off}", f"s_addc_u32 s{n + 1}, s{lo + 1}, 0", f"s_and_b32 s{n + 1}, s{n + 1}, 0xffff"]
    return o + [f"s_mov_b32 s{n + 2}, {size}", f"s_mov_b32 s{n + 3}, 0x20000"]


def lds_ref(regsets, const):
    k = const // 65536
    return regsets[k], const - k * 65536


OWNER = {}


def owned(groups, reg, pre, tag):
    def claim():
        OWNER[reg] = tag

    def verify():
        assert OWNER.get(reg) == tag, f"{reg} holds {OWNER.get(reg)}, needed {tag}"

    groups = [[verify] + g for g in groups]
    groups[0] = [claim] + pre + groups[0]
    return groups


def head_of(i):
    if i == 0:
        o = [f"s_add_u32 s3, {sNT}, {sB}"]
    elif i == 1:
        o = [f"s_cmp_eq_u32 {sB}, 0", f"s_addc_u32 s3, {sNT}, 0"]
    else:
        o = [f"s_cmp_le_u32 {sBP}, {i - 1}", f"s_addc_u32 s3, {sNT}, {i - 1}"]
    return o + ["s_and_b32 s3, s3, 7"]


def dma(tag, srd_regs, vregs, soff, base, mod=""):
    out = []
    for j, vr in enumerate(vregs):
        so = soff[j] if isinstance(soff, list) else soff
        out.append([f"s_add_u32 m0, {sW1K}, {base + j * 4096}", "s_nop 0",
                    VM(tag, f"buffer_load_dwordx4 {vr}, {srd_regs}, {so} offen {mod} lds".replace("  ", " "), (base + j * 4096, base + j * 4096 + 4096))])
    return out


def build():
    A = Asm()
    V = Alloc("v", 1, 256)
    AG = Alloc("a", 0, 256)
    vstamp = V.get()
    names = []
    st = {"pend": None, "flip": 0}

    def harvest():
        if st["pend"] is not None:
            pair, idx = st["pend"]
            if "smem" in A.lgq:
                A(W(lg="*"))
            A(f"v_writelane_b32 {vstamp}, s{pair}, {idx}")
            st["pend"] = None

    def stamp(nm):
        if not STAMPS or (STAMPS >= 2 and nm not in ["start", "end"] + ONLY):
            return
        harvest()
        pair = 96 + 2 * st["flip"]
        st["flip"] ^= 1
        cyc = STAMPS == 3 and nm in ONLY
        A(SM(f"{'s_memtime' if cyc else 's_memrealtime'} s[{pair}:{pair + 1}]"))
        st["pend"] = (pair, len(names))
        names.append(nm + ("_c" if cyc else ""))

    C = Asm()

    def txt(items):
        return [o.text if isinstance(o, Op) else o for o in flat(items)]

    def bounded(target, give_up):
        C(f"s_sub_u32 {sSPIN}, {sSPIN}, 1")
        C(f"s_cmp_eq_u32 {sSPIN}, 0")
        C(f"s_cbranch_scc0 {target}")
        C(f"s_mov_b32 {sSPIN}, 1")
        C(f"s_branch {give_up}")

    A(f".globl {NAME}")
    A(".p2align 8")
    A(f".type {NAME},@function")
    A.label(NAME)
    A("s_cmp_ge_u32 s2, 256")
    A("s_cbranch_scc1 L_end")
    A(SM("s_load_dwordx16 s[4:19], s[0:1], 0"))
    if STAMPS:
        A(f"v_mov_b32 {vstamp}, 0")
    stamp("start")

    lane, q, g, r, c, r4, l16 = (V.get() for _ in range(7))
    tq = V.get(4, 2)
    t0, t1, t2, t3 = (tq[i] for i in range(4))
    vcp = V.get()
    if CPF:
        A.comment("the workgroups of one die together touch every 128-byte line of this kernel's code once")
        A("s_getpc_b64 s[84:85]")
        A.label("L_pc")
        A("s_lshr_b32 s3, s2, 3")
        if CPF == 1:
            A(f"v_lshrrev_b32 {t2}, 5, v0")
            A(f"v_lshl_add_u32 {t2}, s3, 3, {t2}")
        else:
            A(f"v_mov_b32 {t2}, v0")
        A(f"v_lshlrev_b32 {t2}, 7, {t2}")
        A(f"v_min_u32 {t2}, L_last-L_pc, {t2}")
        A(f"v_mov_b32 {t1}, s85")
        A(f"v_add_co_u32 {t0}, vcc, s84, {t2}")
        A(f"v_addc_co_u32 {t1}, vcc, 0, {t1}, vcc")
        A(VM("cpf", f"global_load_dword {vcp}, {tq.sub(0, 2)}, off"))
    A(f"v_lshrrev_b32 {r4}, 6, v0")
    A(f"v_and_b32 {lane}, 63, v0")
    A(f"v_readfirstlane_b32 {sW}, {r4}")
    A(f"v_and_b32 {q}, 15, v0")
    A(f"v_lshrrev_b32 {g}, 4, {lane}")
    A(f"v_lshrrev_b32 {r4}, 4, v0")
    A(f"s_and_b32 {sXCD}, s2, 7")
    A(f"s_lshr_b32 {sB}, s2, 5")
    A(f"s_bfe_u32 {sHH}, s2, 0x20003")
    A(f"s_lshl_b32 s3, {sXCD}, 2")
    A(f"s_add_u32 {sH}, {sHH}, s3")
    A(f"s_add_u32 {sROT1}, {sXCD}, {sB}")
    A(f"s_lshl_b32 {sW1K}, {sW}, 10")
    A(f"s_mul_i32 s84, {sB}, 163840")
    A(f"s_lshl_b32 s85, {sH}, 8")
    vx = [V.get() for _ in range(5)]
    vq = [V.get() for _ in range(8)]
    vk, vv = V.get(), V.get()
    vf1, vep, vtag = V.get(), V.get(), V.get()
    A(f"v_xor_b32 {t0}, {q}, {r4}")
    A(f"v_lshlrev_b32 {t0}, 4, {t0}")
    A(f"v_lshl_add_u32 {vx[0]}, {r4}, 11, {t0}")
    A(f"v_lshl_add_u32 {vk}, {r4}, 8, {t0}")
    for j in range(1, 5):
        A(f"v_add_u32 {vx[j]}, {j * 32768}, {vx[0]}")
    A(f"v_lshrrev_b32 {t1}, 3, {r4}")
    A(f"v_lshl_or_b32 {t1}, {t1}, 2, {g}")
    A(f"v_lshlrev_b32 {t1}, 1, {t1}")
    A(f"v_xor_b32 {t1}, {q}, {t1}")
    A(f"v_lshlrev_b32 {t1}, 4, {t1}")
    A(f"v_lshl_add_u32 {vq[0]}, {r4}, 13, {t1}")
    for j in range(1, 8):
        A(f"v_add_u32 {vq[j]}, {j * 16 * 8192}, {vq[0]}")
    A(W(lg="*"))
    stamp("karg")
    A(srd(X, 4, "s84", 163840))
    A(srd(WQ, 10, "s85", 8388608 - 7936))

    def dma_stage(s_):
        slot = (s_ % 3) * SLOT
        pre = [f"s_add_u32 s3, {sROT1}, {s_}", "s_and_b32 s3, s3, 7", f"s_lshl_b32 {sSO0}, s3, 8", f"s_lshl_b32 {sSO1}, s3, 20"]
        gx = dma(f"st{s_}", X, vx, sSO0, slot)
        gq = dma(f"st{s_}", WQ, vq, sSO1, slot + 20480)
        gx[0] = pre + gx[0]
        return gx + gq

    first = dma_stage(0)
    A(first[:10])

    A(srd(FL, 18, F1OFF, 65536))
    A("s_lshl_b32 s3, s2, 7")
    A(f"s_lshl_b32 s83, {sW}, 2")
    A("s_add_u32 s3, s3, s83")
    A(f"v_lshlrev_b32 {vf1}, 20, {lane}")
    A(f"v_add_u32 {vf1}, s3, {vf1}")
    A(f"s_lshl_b32 s3, {sB}, 7")
    A(f"s_add_u32 s3, s3, {F2REL}")
    A(f"v_mov_b32 {vep}, s3")
    A(f"v_bfe_u32 {r}, v0, 2, 2")
    A(f"v_and_b32 {c}, 3, v0")
    A(f"v_lshlrev_b32 {l16}, 4, {lane}")
    A(f"s_lshr_b32 {sKQ}, {sXCD}, 1")
    A(f"s_and_b32 s3, {sXCD}, 1")
    A("s_lshl_b32 s3, s3, 2")
    A(f"s_add_u32 {sNT}, s3, {sHH}")
    A(f"s_lshl_b32 s3, {sB}, 5")
    A(f"s_add_u32 s83, s3, {sH}")
    A("s_mul_i32 s83, s83, 20480")
    A(srd(KS, 6, "s83", 20480))
    A(srd(VS, 8, "s83", 20480))
    A(srd(OW, 18, "s83", 20480))
    A(f"s_lshl_b32 s83, {sKQ}, 3")
    A("s_add_u32 s83, s83, s3")
    A("s_mul_i32 s83, s83, 20480")
    A(srd(OR, 18, "s83", 8 * 20480))
    A(f"s_lshl_b32 s83, {sKQ}, 21")
    A(f"s_lshl_b32 s3, {sNT}, 8")
    A("s_add_u32 s83, s83, s3")
    A(srd(WO, 12, "s83", 1024 * 2048 - 1792))
    A("s_add_u32 s83, s84, s3")
    A(f"s_lshl_b32 s3, {sW}, 6")
    A("s_add_u32 s83, s83, s3")
    A(srd(OUT, 14, "s83", 163840 - 1984))
    A(srd(PT, 18, POFF, PSIZE))
    for j in range(5):
        A(f"s_mov_b32 {S4K[j]}, {j * 4096}")
    A(f"s_mov_b32 {sC}, {f32bits(math.log2(math.e) / math.sqrt(128.0)):#x}")
    A(f"s_mov_b32 {sSPIN}, {SPIN}")
    A(f"s_max_u32 {sBP}, {sB}, 1")
    vw = [V.get() for _ in range(8)]
    A(f"v_and_b32 {t1}, 7, {r4}")
    A(f"v_lshlrev_b32 {t1}, 1, {t1}")
    A(f"v_xor_b32 {t1}, {q}, {t1}")
    A(f"v_lshlrev_b32 {t1}, 4, {t1}")
    A(f"v_lshl_add_u32 {vv}, {r4}, 8, {t1}")
    A(f"v_lshl_add_u32 {vw[0]}, {r4}, 11, {t1}")
    for j in range(1, 8):
        A(f"v_add_u32 {vw[j]}, {j * 16 * 2048}, {vw[0]}")
    xa = [[V.get() for _ in range(3)] for _ in range(4)]
    wa = [[V.get() for _ in range(3)] for _ in range(2)]
    for s4 in range(4):
        A(f"v_or_b32 {t0}, {4 * s4}, {g}")
        A(f"v_xor_b32 {t0}, {t0}, {q}")
        A(f"v_lshlrev_b32 {t0}, 4, {t0}")
        A(f"v_lshl_add_u32 {xa[s4][0]}, {q}, 8, {t0}")
        A(f"v_add_u32 {xa[s4][1]}, 0x10000, {xa[s4][0]}")
        A(f"v_add_u32 {xa[s4][2]}, 0x20000, {xa[s4][0]}")
    A(f"v_and_b32 {t0}, 1, {g}")
    A(f"v_lshl_or_b32 {t0}, {t0}, 2, {r}")
    A(f"v_lshl_add_u32 {t1}, {g}, 3, {r}")
    A(f"v_lshlrev_b32 {t1}, 8, {t1}")
    A(f"v_lshl_add_u32 {t1}, {c}, 3, {t1}")
    A(f"s_lshl_b32 s3, {sW}, 1")
    for tt in range(2):
        A(f"s_add_u32 s83, s3, {tt}")
        A(f"v_xor_b32 {t2}, s83, {t0}")
        A(f"v_lshl_add_u32 {wa[tt][0]}, {t2}, 5, {t1}")
        A(f"v_add_u32 {wa[tt][1]}, 0x10000, {wa[tt][0]}")
        A(f"v_add_u32 {wa[tt][2]}, 0x20000, {wa[tt][0]}")
    ka = [V.get() for _ in range(8)]
    va = [V.get() for _ in range(8)]
    qown, qwr = V.get(), V.get()
    A(f"v_lshrrev_b32 {t0}, 1, {g}")
    A(f"v_xor_b32 {t0}, {t0}, {q}")
    A(f"v_lshlrev_b32 {t0}, 4, {t0}")
    A(f"v_lshl_add_u32 {t0}, {q}, 8, {t0}")
    A(f"v_and_b32 {t1}, 1, {g}")
    A(f"v_lshl_add_u32 {t0}, {t1}, 3, {t0}")
    A(f"v_add_u32 {ka[0]}, {KBASE}, {t0}")
    for i in range(1, 8):
        A(f"v_xor_b32 {ka[i]}, {32 * i}, {ka[0]}")
    trb = V.get()
    A(f"v_lshl_add_u32 {t0}, {g}, 2, {r}")
    A(f"v_and_b32 {t1}, 7, {t0}")
    A(f"v_lshlrev_b32 {t1}, 5, {t1}")
    A(f"v_lshl_add_u32 {t0}, {t0}, 8, {t1}")
    A(f"v_lshl_add_u32 {trb}, {c}, 3, {t0}")
    A(f"v_add_u32 {t0}, {VBASE}, {trb}")
    for i in range(8):
        A(f"s_lshl_b32 s3, {sW}, 1")
        A(f"s_add_u32 s3, s3, {i}")
        A("s_and_b32 s3, s3, 7")
        A("s_lshl_b32 s3, s3, 5")
        A(f"v_xor_b32 {va[i]}, s3, {t0}")
    A(f"v_add_u32 {qwr}, {sW1K}, {l16}")
    A(f"s_lshl_b32 s3, {sW}, 12")
    A(f"v_add_u32 {qown}, s3, {l16}")
    A(f"s_lshl_b32 s3, {sB}, 5")
    vp1, vpf = V.get(), V.get()
    A(f"v_bfe_u32 {t1}, v0, 4, 1")
    A(f"v_lshl_add_u32 {t0}, {r}, 3, {t1}")
    A(f"s_lshl_b32 s83, {sKQ}, 1")
    A("s_add_u32 s83, s83, s3")
    A(f"v_add_u32 {t0}, s83, {t0}")
    A(f"v_lshlrev_b32 {t0}, 7, {t0}")
    A(f"v_lshl_add_u32 {vp1}, {c}, 2, {t0}")
    A(f"s_and_b32 {sGRP}, s2, 0xf9")
    A(f"s_lshl_b32 s87, {sKQ}, 2")
    A(f"s_add_u32 s87, s87, {sW}")
    for i in range(1, 5):
        A(f"s_add_u32 s3, {sKQ}, {i}" if i < 4 else f"s_mov_b32 s3, {sW}")
        A("s_and_b32 s3, s3, 3")
        A("s_lshl_b32 s3, s3, 1")
        A(f"s_add_u32 s3, s3, {sGRP}")
        A("s_lshl_b32 s3, s3, 4")
        A("s_add_u32 s3, s3, s87")
        A(f"s_lshl_b32 {sSEND[i]}, s3, 12")
    for i in range(1, 4):
        A(f"s_add_u32 s3, {sKQ}, {i}")
        A("s_and_b32 s3, s3, 3")
        A("s_lshl_b32 s83, s2, 2")
        A("s_add_u32 s3, s3, s83")
        A("s_lshl_b32 s3, s3, 2")
        A(f"s_add_u32 s3, s3, {sW}")
        A(f"s_lshl_b32 {sRECV[i]}, s3, 12")
    vown = V.get()
    A(f"v_add_u32 {vown}, {U[4]}, {l16}")
    stamp("setup")
    A(first[10:])

    A(VM("ep", f"buffer_load_dword {vtag}, {vep}, {FL}, 0 offen sc1"))
    A(dma_stage(1))
    stamp("iss1")

    accr = V.get(40, 4)
    acc = [[accr.sub((tt * 5 + t) * 4, 4) for t in range(5)] for tt in range(2)]
    bB = V.get(40, 4)
    bufB = [[bB.sub((p * 5 + t) * 4, 4) for t in range(5)] for p in range(2)]
    bA = V.get(20, 4)
    bufA = [[bA.sub((p * 2 + tt) * 4, 4) for tt in range(2)] for p in range(2)]
    Wf = AG.get(256, 4)
    Kf, Vf = Wf.sub(96, 80), Wf.sub(176, 80)
    sWO = "s95"

    def wo_dma(j, ubase):
        return owned(dma(f"wo{j}", WO, vw, sWO, ubase), sWO, head_of(j) + [f"s_lshl_b32 {sWO}, s3, 18"], f"wo{j}")

    def mfmas1(s_, i):
        buf = i & 1
        out = []
        for t in range(5):
            for tt in range(2):
                cc = "0" if (s_ == 0 and i == 0) else acc[tt][t]
                tags = [f"A{s_}_{i}_{tt}", f"B{s_}_{i}_{t}"]
                if WG1:
                    tags = [f"A{s_}_{i}_1", f"B{s_}_{i}_{WGRP[WG1][t]}"]
                out.append([W(lg=tags), f"{MF} {acc[tt][t]}, {bufA[buf][tt]}, {bufB[buf][t]}, {cc}"])
        return out

    def reads1(s_, i):
        ra, rb = [], []
        for tt in range(2):
            for hf in range(2):
                rg, off = lds_ref(wa[tt], (s_ % 3) * SLOT + 20480 + i * 8192 + hf * 1024)
                ra.append(LG(f"A{s_}_{i}_{tt}", f"ds_read_b64_tr_b16 {bufA[i & 1][tt].sub(2 * hf, 2)}, {rg} offset:{off}",
                             ((s_ % 3) * SLOT + 20480 + i * 8192, (s_ % 3) * SLOT + 20480 + (i + 1) * 8192)))
        for t in range(5):
            rg, off = lds_ref(xa[i], (s_ % 3) * SLOT + t * 4096)
            rb.append(LG(f"B{s_}_{i}_{t}", f"ds_read_b128 {bufB[i & 1][t]}, {rg} offset:{off}",
                         ((s_ % 3) * SLOT + t * 4096, (s_ % 3) * SLOT + (t + 1) * 4096)))
        return ra[:2] + rb[:1] + ra[2:] + rb[1:]

    extra1 = [dma_stage(s_ + 2) for s_ in range(6)] + [dma("k", KS, [vk] * 5, S4K, KBASE, NTKV), dma("v", VS, [vv] * 5, S4K, VBASE, NTKV)]
    for s_ in range(8):
        A.comment(f"q-projection stage {s_}")
        A(W(vm=f"st{s_}", lg="*"))
        A("s_barrier")
        stamp(f"s{s_}")
        ex = extra1[s_]
        n = len(ex)
        parts = [ex[(n * i) // 4:(n * (i + 1)) // 4] for i in range(4)]
        if s_ == 6:
            parts = [ex[:3], ex[3:], [], []]
        for i in range(4):
            rd = reads1(s_, i)
            if s_ == 0 and i == 0:
                seq = rd + parts[0]
            else:
                m = mfmas1(s_, i - 1) if i else mfmas1(s_ - 1, 3)
                seq = spread(interleave(m, rd, start=0, per=RPS), parts[i], lo=2)
            A(seq)
    A(mfmas1(7, 3))
    stamp("qdone")

    vnew = vk
    A(f"v_add_u32 {vnew}, 1, {vtag}")
    A(f"s_mov_b32 s3, {TAGMUL:#x}")
    A(f"v_mul_lo_u32 {vtag}, {vnew}, s3")
    qb = V.get(20, 4)
    for t in range(5):
        for tt in range(2):
            for hf in range(2):
                A(f"v_cvt_pk_bf16_f32 {qb[t * 4 + tt * 2 + hf]}, {acc[tt][t][2 * hf]}, {acc[tt][t][2 * hf + 1]}")
        A(LG("qw", f"ds_write_b128 {qwr}, {qb.sub(t * 4, 4)} offset:{QS + t * 4096}", (QS + t * 4096, QS + t * 4096 + 4096)))
    A(W(vm="k", lg="*"))
    A("s_barrier")
    stamp("bq")

    Qf = [[bB.sub((T * 4 + u) * 4, 4) for u in range(4)] for T in range(2)]
    sr = V.get(40, 4)
    sacc = [[sr.sub((T * 5 + kt) * 4, 4) for kt in range(5)] for T in range(2)]
    P = [bA.sub(0, 10), bA.sub(10, 10)]
    sums = [bB.sub(32, 4), bB.sub(36, 4)]
    ones = qb.sub(16, 4)
    tmpr = V.get(4, 2)
    oacc = [accr.sub(i * 4, 4) for i in range(10)]

    def rQ(T, u):
        if T == 0:
            return LG(f"Q0{u}", f"ds_read_b128 {Qf[0][u]}, {qown} offset:{QS + u * 1024}", (QS, QS + 16384))
        return LG(f"Q1{u}", f"ds_read_b128 {Qf[1][u]}, {l16} offset:{QS + 16384 + u * 1024}", (QS + 16384, QS + 20480))

    def rK(u):
        return [LG(f"K{kt}{u}", f"ds_read_b64 {Kf.sub((kt * 4 + u) * 4 + 2 * hf, 2)}, {ka[2 * u + hf]} offset:{kt * 4096}", (KBASE, KBASE + 20480))
                for kt in range(5) for hf in range(2)]

    def mS(T, u):
        return [[W(lg=[f"K{kt}{u}", f"Q{T}{u}"]),
                 f"{MF} {sacc[T][kt]}, {Kf.sub((kt * 4 + u) * 4, 4)}, {Qf[T][u]}, {'0' if u == 0 else sacc[T][kt]}"] for kt in range(5)]

    rV = [LG(f"V{i}{ks}", f"ds_read_b64_tr_b16 {Vf.sub(i * 10 + kt * 2, 2)}, {va[i]} offset:{kt * 4096}", (VBASE, VBASE + 20480))
          for ks in range(3) for i in range(8) for kt in range(2 * ks, min(2 * ks + 2, 5))]

    def softmax(T):
        vals = [sacc[T][kt][r_] for kt in range(5) for r_ in range(4)]
        m, t, nm = tmpr[0], tmpr[1], tmpr[2]
        o = [f"v_max3_f32 {m}, {vals[0]}, {vals[1]}, {vals[2]}", f"v_max3_f32 {t}, {vals[3]}, {vals[4]}, {vals[5]}"]
        for i in range(6, 18, 4):
            o.append(f"v_max3_f32 {m}, {m}, {vals[i]}, {vals[i + 1]}")
            o.append(f"v_max3_f32 {t}, {t}, {vals[i + 2]}, {vals[i + 3]}")
        o.append(f"v_max3_f32 {m}, {m}, {vals[18]}, {vals[19]}")
        o.append(f"v_max_f32 {m}, {m}, {t}")
        for sw in ("v_permlane32_swap_b32", "v_permlane16_swap_b32"):
            o += [f"v_mov_b32 {t}, {m}", f"{sw} {m}, {t}", f"v_max_f32 {m}, {m}, {t}"]
        o.append(f"v_mul_f32 {nm}, {sC}, {m}")
        sc = int(sC[1:])
        for i in range(0, 20, 2):
            if PK:
                pr = R("v", vals[i].n, 2)
                o.append(f"v_pk_fma_f32 {pr}, {pr}, s[{sc}:{sc + 1}], {tmpr.sub(2, 2)} op_sel_hi:[1,0,0] neg_lo:[0,0,1] neg_hi:[0,0,1]")
            else:
                o.append(f"v_fma_f32 {vals[i]}, {vals[i]}, {sC}, -{nm}")
                o.append(f"v_fma_f32 {vals[i + 1]}, {vals[i + 1]}, {sC}, -{nm}")
        for i in range(10):
            o += [f"v_exp_f32 {vals[2 * i]}, {vals[2 * i]}", f"v_exp_f32 {vals[2 * i + 1]}, {vals[2 * i + 1]}"]
            if i:
                o.append(f"v_cvt_pk_bf16_f32 {P[T][i - 1]}, {vals[2 * i - 2]}, {vals[2 * i - 1]}")
        o.append(f"v_cvt_pk_bf16_f32 {P[T][9]}, {vals[18]}, {vals[19]}")
        return o

    def mPV(T, slots):
        out = []
        for ks in range(3):
            op, n = (MF, 4) if ks < 2 else (MF16, 2)
            out.append(f"{op} {sums[T]}, {ones.sub(0, n)}, {P[T].sub(ks * 4, n)}, {'0' if ks == 0 else sums[T]}")
            for i, o in slots:
                out.append([W(lg=f"V{i}{ks}"), f"{op} {o}, {Vf.sub(i * 10 + ks * 4, n)}, {P[T].sub(ks * 4, n)}, {'0' if ks == 0 else o}"])
        return out

    def finish(T, pairs, stage):
        rc = tmpr.sub(2 * T, 2)
        out = [f"v_rcp_f32 {rc[0]}, {sums[T][0]}"]
        for p, o0, o1 in pairs:
            if T == 0:
                out += [f"s_add_u32 s3, {sW}, {p}", "s_and_b32 s3, s3, 3", "s_mul_i32 s3, s3, 5", f"s_add_u32 s3, s3, {sW}", "s_lshl_b32 s3, s3, 10"]
            else:
                out += [f"s_mul_i32 s3, {sW}, 5", "s_add_u32 s3, s3, 4", "s_lshl_b32 s3, s3, 10"]
            ob = stage.sub(p * 4, 4)
            for o in (o0, o1):
                for hf in range(2):
                    if PK:
                        out.append(f"v_pk_mul_f32 {o.sub(2 * hf, 2)}, {o.sub(2 * hf, 2)}, {rc} op_sel_hi:[1,0]")
                    else:
                        out += [f"v_mul_f32 {o[2 * hf + e]}, {o[2 * hf + e]}, {rc[0]}" for e in range(2)]
            for hh, o in enumerate((o0, o1)):
                for hf in range(2):
                    out.append(f"v_cvt_pk_bf16_f32 {ob[hh * 2 + hf]}, {o[2 * hf]}, {o[2 * hf + 1]}")
            out.append(VM("ost", f"buffer_store_dwordx4 {ob}, {l16}, {OW}, s3 offen sc1"))
            out.append(f"v_add_u32 {tq[p & 3]}, s3, {vown}")
            out.append(LG("own", f"ds_write_b128 {tq[p & 3]}, {ob}", (U[4] + p, U[4] + p + 1)))
        return out

    wstream = wo_dma(0, U[0]) + wo_dma(1, U[2]) + wo_dma(2, U[1]) + wo_dma(3, U[3])
    assert P1 + P2 <= 16
    A([rQ(0, 0)] + rK(0))
    for i in range(4):
        A(f"v_mov_b32 {ones[i]}, 0x3f803f80")
    if P1E:
        A(wstream[:P1])
    for u in range(4):
        nxt = ([rQ(0, u + 1)] + rK(u + 1)) if u < 3 else [rQ(1, k) for k in range(4)]
        A(interleave(mS(0, u), nxt, per=2))
    m1 = [x for u in range(4) for x in mS(1, u)]
    sm0 = softmax(0)
    A(m1[:4])
    segb = spread(sm0, m1[4:], lo=0, hi=len(sm0) - 12)
    A(spread(segb, wstream[P1:P1 + PM], lo=PMLO) if P1E else spread(segb, wstream[:P1], lo=4))
    A(W(vm="v", lg="*"))
    A("s_barrier")
    stamp("bv")
    pv0 = mPV(0, [(i, oacc[i]) for i in range(8)])
    sm1 = softmax(1)
    A(rV[:8])
    seq = spread(sm1, pv0, lo=4)
    seq = interleave(seq, rV[8:], start=0, per=1)
    seq = spread(seq, wstream[P1 + PM:P1 + PM + P2], lo=P2LO, hi=P2LO + 12 * max(P2, 1))
    A(seq)
    A(W(lg="*"))
    A("s_barrier")
    stamp("b2")
    pv1 = mPV(1, [(0, oacc[8]), (1, oacc[9])])
    fin0 = finish(0, [(p, oacc[2 * p], oacc[2 * p + 1]) for p in range(4)], qb)
    A(spread(fin0, pv1, lo=0, hi=30))
    A(finish(1, [(4, oacc[8], oacc[9])], qb))
    stamp("ost")

    vo = vq
    ob = xa[0]
    wa2 = wa
    A(f"s_mul_i32 s83, {sW}, 5120")
    for j in range(1, 8):
        A(head_of(j) if j > 1 else [f"s_add_u32 s3, {sNT}, {sBP}", "s_and_b32 s3, s3, 7"])
        A("s_mul_i32 s3, s3, 20480")
        A("s_add_u32 s3, s3, s83")
        A(f"v_add_u32 {vo[j]}, s3, {l16}")
    oslot = xa[1] + xa[2][:2]
    for i in range(4):
        A(f"s_add_u32 s3, {sKQ}, {i}")
        A("s_and_b32 s3, s3, 3")
        A("s_lshl_b32 s3, s3, 10")
        A(f"v_add_u32 {oslot[i]}, s3, {vown}")
    A(f"v_add_u32 {oslot[4]}, 4096, {vown}")
    for k in range(3):
        A(f"v_add_u32 {ob[k]}, {k * 65536}, {l16}")
    for tt in range(2):
        A(f"s_lshl_b32 s3, {sW}, 6")
        A(f"s_add_u32 s3, s3, {32 * tt}")
        A(f"v_xor_b32 {wa2[tt][0]}, s3, {trb}")
        A(f"v_add_u32 {wa2[tt][1]}, 0x10000, {wa2[tt][0]}")
        A(f"v_add_u32 {wa2[tt][2]}, 0x20000, {wa2[tt][0]}")
    wb = [[ka[0], ka[1]], [ka[2], ka[3]]]
    A(f"s_cmp_eq_u32 {sB}, 0")
    A(f"s_cselect_b32 s3, {U[0]}, {U[2]}")
    A(f"s_cselect_b32 s83, {U[2]}, {U[0]}")
    for tt in range(2):
        A(f"v_add_u32 {wb[0][tt]}, s3, {wa2[tt][0]}")
        A(f"v_add_u32 {wb[1][tt]}, s83, {wa2[tt][0]}")
    A(f"s_cmp_eq_u32 {sW}, {sKQ}")
    for i in range(1, 4):
        A(f"s_cselect_b32 {sRECV4[i]}, {sRECV[i]}, {PSIZE}")
    A(f"s_cselect_b32 {sOWN4}, 0xff, 0")
    A(f"s_mov_b32 {sROW4}, 0x40000")
    A(f"s_cselect_b32 {sROW4}, 0x20000, {sROW4}")
    A(f"s_lshl_b32 {sROW0}, {sKQ}, 15")
    oa = vx[0]
    A(f"v_readfirstlane_b32 {sTAG[0]}, {vtag}")
    for i in range(4):
        A(f"s_mov_b32 {sSEL[i]}, {0x07060500 + i:#x}")
    for i in range(1, 4):
        A(f"s_lshr_b32 {sTAG[i]}, {sTAG[0]}, {8 * i}")
    A(f"v_lshlrev_b32 {oa}, 11, {q}")
    A(f"v_lshl_add_u32 {oa}, {g}, 4, {oa}")

    def wo_reads(j, ub):
        out = []
        for u in range(4):
            for tt in range(2):
                for hf in range(2):
                    rg, off = lds_ref(wa2[tt], ub + u * 8192 + hf * 4096) if j > 1 else (wb[j][tt], u * 8192 + hf * 4096)
                    out.append(LG(f"W{j * 4 + u}", f"ds_read_b64_tr_b16 {Wf.sub(((j * 4 + u) * 2 + tt) * 4 + 2 * hf, 2)}, {rg} offset:{off}", (ub + u * 8192, ub + (u + 1) * 8192)))
        return out

    rest = wstream[P1 + PM + P2:]
    nb = NB
    A(rest[:nb])
    A(W(vm="ost"))
    A(VM("f1", f"buffer_store_dword {vtag}, {vf1}, {FL}, 0 offen sc1"))
    stamp("f1set")
    slots = [4, 1, 2, 3, 0]
    ohome = [U[1], U[0], U[2], U[4], U[3]]

    def o_dma(p):
        sl = slots[p]
        pre = [f"s_add_u32 s3, {sKQ}, {sl}", "s_and_b32 s3, s3, 3", f"s_lshl_b32 {sSO0}, s3, 10"] if sl < 4 else [f"s_mov_b32 {sSO0}, 4096"]
        return owned(dma(f"o{p}", OR, vo[1:], sSO0, ohome[p], "sc1"), sSO0, pre, f"o{p}")

    done = P1 + PM + P2 + nb
    cut = max(done, 16 + AHEAD)
    A(wstream[done:cut])
    A(W(vm=["wo0", "wo1"], lg="*"))
    A("s_barrier")
    stamp("b3")
    A(interleave(wstream[cut:], wo_reads(0, U[0]) + wo_reads(1, U[2]), per=3))
    A(W(lg="*"))
    A("s_barrier")
    pf = [bB.sub(i * 4, 4) for i in range(10)]
    prd = [LG(f"P{n_}", f"ds_read_b128 {pf[n_ % 10]}, {oslot[n_ % 5]} offset:{(n_ // 5) * 5120}", (U[4], U[4] + 20480)) for n_ in range(20)]
    A(prd[:9])
    w45 = wo_dma(4, U[0]) + wo_dma(5, U[2])
    pre_seq = []
    for n_ in range(20):
        u, sl = divmod(n_, 5)
        grp = [W(lg=f"P{n_}"), f"{MF} {acc[0][sl]}, {Wf.sub(u * 8, 4)}, {pf[n_ % 10]}, {'0' if u == 0 else acc[0][sl]}"]
        if n_ + 9 < 20:
            grp.append(prd[n_ + 9])
        grp.append(f"{MF} {acc[1][sl]}, {Wf.sub(u * 8 + 4, 4)}, {pf[n_ % 10]}, {'0' if u == 0 else acc[1][sl]}")
        pre_seq.append(grp)
    A(spread(pre_seq, w45[:N45]))
    A(W(vm=["wo2", "wo3"], lg="*"))
    A("s_barrier")
    stamp("b4")
    pollop = VM("poll", f"buffer_load_dword {vpf}, {vp1}, {FL}, 0 offen sc1")
    w6 = wo_dma(6, U[4])
    A(interleave(w45[N45:] + [pollop] + w6[:PW6], wo_reads(2, U[1]) + wo_reads(3, U[3]), per=4))
    A(W(vm=["wo4", "wo5", "poll"], lg="*"))
    A("s_barrier")
    A.label("L_p1")
    A(f"v_cmp_ne_u32 vcc, {vtag}, {vpf}")
    A("s_nop 1")
    A("s_cbranch_vccnz L_p1_slow")
    A.label("L_p1_done")
    C.label("L_p1_slow")
    C(pollop.text)
    C("s_waitcnt vmcnt(0)")
    bounded("L_p1", "L_p1_done")
    stamp("f1ok")
    if STAMPS:
        A(f"v_writelane_b32 {vstamp}, {sSPIN}, 60")
    w7 = wo_dma(7, U[3])
    A(interleave(w6[PW6:] + o_dma(0), wo_reads(4, U[0]) + wo_reads(5, U[2]), per=3))
    A(w7[:AHEAD])
    A(W(vm="wo6", lg="*"))
    A("s_barrier")
    stamp("b5")
    A(interleave(w7[AHEAD:], wo_reads(6, U[4]), per=4))
    late = o_dma(1)

    quads = [sr.sub(i * 4, 4) for i in range(10)] + [bA.sub(i * 4, 4) for i in range(2)]
    gA = {i: quads[2 * (i - 1):2 * i] for i in range(1, 4)}
    gB = {i: quads[6 + 2 * (i - 1):6 + 2 * i] for i in range(1, 4)}
    xacc = {0: tmpr[0], 1: tmpr[1]}

    groups = [[(1, 0)]] if G2AT else [[(2, 0), (1, 0)]]
    early = [(1, 1), (2, 1), (3, 1), (3, 0)] + ([(2, 0)] if G2AT else [])
    vcan = vx[1]
    vcan_g = vx[2:5]
    for gi, keys in enumerate(groups):
        A(f"v_mov_b32 {vcan_g[gi]}, {PSIZE}")
        for i, four in keys:
            A(f"s_add_u32 s3, {sRECV4[i] if four else sRECV[i]}, {4080 if four else 2032}")
            A(f"v_writelane_b32 {vcan_g[gi]}, s3, {i - 1 + 4 * four}")
    A(f"s_and_b32 {sTAGB}, {sTAG[0]}, 0xff")
    vepf = ka[4]
    A("s_and_b32 s3, s2, 31")
    A(f"s_or_b32 s3, s3, {sW}")
    A("s_cmp_eq_u32 s3, 0")
    A(f"s_cselect_b32 {sEPW}, 0, 0x100000")
    A(f"v_and_b32 {vepf}, 31, {lane}")
    A(f"v_add_u32 {vepf}, s2, {vepf}")
    A(f"v_lshlrev_b32 {vepf}, 7, {vepf}")
    A(f"v_add_u32 {vepf}, {sEPW}, {vepf}")
    A(f"v_lshl_add_u32 {vep}, {lane}, 20, {vep}")
    A(f"v_add_u32 {vep}, {sEPW}, {vep}")

    def canary(tag, gi, vcan=vcan):
        vcan_a = vcan_g[gi]
        if CAN == "atomic":
            return [f"v_mov_b32 {vcan}, 0", VM(tag, f"buffer_atomic_add {vcan}, {vcan_a}, {PT}, 0 offen sc0 sc1")]
        return [VM(tag, f"buffer_load_dword {vcan}, {vcan_a}, {PT}, 0 offen sc1")]

    def judge(vcan=vcan):
        return [f"v_and_b32 {vcan}, 0xff, {vcan}", f"v_cmp_eq_u32 vcc, {sTAGB}, {vcan}", "s_nop 3"]

    def gather(i, four, gated=False):
        so, bufs = (sRECV4[i], gB[i]) if four else (sRECV[i], gA[i])
        return [VM(f"g{i}{int(four)}", f"buffer_load_dwordx4 {bufs[tt]}, {l16}, {PT}, {so} offen offset:{(tt + 2 * four) * 1024} sc1") for tt in range(2)]

    def verify(i, four):
        x = xacc[int(four)]
        return [W(vm=f"g{i}{int(four)}")] + [f"v_bitop3_b32 {x}, {x}, {qd[e]}, {sTAG[e]} bitop3:0xf6" for qd in (gB if four else gA)[i] for e in range(4)]

    def send(sl):
        out = []
        for tt in range(2):
            d = acc[tt][sl]
            out.append([f"v_perm_b32 {d[e]}, {d[e]}, {vtag}, {sSEL[e]}" for e in range(4)]
                       + [VM("snd", f"buffer_store_dwordx4 {d}, {l16}, {PT}, {sSEND[sl]} offen offset:{(tt + (2 if sl == 4 else 0)) * 1024} sc1")])
        return out

    frag = [bB.sub(i * 4, 4) for i in range(DEPTH)]
    PL = 28
    NI = 5 * PL
    after = {k: [] for k in range(NI)}

    def place(items, lo, hi):
        for n_, it in enumerate(items):
            after[lo + (n_ * (hi - lo)) // len(items)].append(it)

    place(late, 0, 9)
    after[W7AT].append([W(vm="wo7"), "s_barrier"])
    place(wo_reads(7, U[3]), W7AT + 1, W7AT + 8)
    place(o_dma(2), O2[0], O2[1])
    place(o_dma(3), O3[0], O3[1])
    place(o_dma(4), O4[0], O4[1])
    for p in range(4):
        gap = SGAP if p < 3 else SGAPL
        for tt, grp in enumerate(send(slots[p])):
            at = (S0AT if p == 0 and S0AT else PL * p + PL + 2) + tt * gap
            after[at].append(grp[:2])
            after[at + 1].append(grp[2:4])
            after[at + 2].append(grp[4:])
            if p == 3 and tt == 1:
                after[at + 2].append(lambda: stamp("slast"))
    place([x for i in (1, 2, 3) for x in gather(i, 1)], G4AT, G4AT + 6)
    place(gather(3, 0), G1AT, G1AT + 2)
    if G2AT:
        place(gather(2, 0), G2AT, G2AT + 2)
    after[C2AT].append(canary("c2", 0))
    if C3AT:
        after[C3AT].append(canary("c3", 0, vx[3]))
    epq = bA.sub(8, 4)
    after[EPAT].append(VM("epf", f"buffer_load_dwordx4 {epq}, {vepf}, {FL}, 0 offen sc1"))
    after[EPAT + 26].append([W(vm="epf")] + [f"v_xor_b32 {epq[e]}, {vtag}, {epq[e]}" for e in range(4)])
    after[EPAT + 27].append([f"v_or_b32 {epq[0]}, {epq[0]}, {epq[1]}", f"v_or3_b32 {epq[0]}, {epq[0]}, {epq[2]}, {epq[3]}", f"v_cmp_ne_u32 vcc, 0, {epq[0]}"])
    after[EPAT + 28].append(["s_cmp_eq_u64 vcc, 0", f"s_cselect_b32 {sEPD}, 0, 0x100000"])
    after[EPAT + 29].append(VM("eps", f"buffer_store_dword {vnew}, {vep}, {FL}, {sEPD} offen sc1"))

    def rd2(k):
        p, kk = divmod(k, PL)
        rg, off = lds_ref(ob, ohome[p] + kk * 1024)
        if kk == 0:
            A(W(vm=f"o{p}", lg="*" if p == 0 else (["W31"] if p == 1 else ())))
            A("s_barrier")
            stamp(f"p{p}")
        A(LG(f"F{k}", f"ds_read_b128 {frag[k % DEPTH]}, {rg} offset:{off}", (ohome[p] + kk * 1024, ohome[p] + kk * 1024 + 1024)))

    for k in range(DEPTH - 1):
        rd2(k)
    for k in range(NI):
        p, kk = divmod(k, PL)
        kk += 4
        sl = slots[p]
        A(W(lg=[f"F{k}", f"W{kk}"]))
        A(f"{MF} {acc[0][sl]}, {Wf.sub(kk * 8, 4)}, {frag[k % DEPTH]}, {acc[0][sl]}")
        if k + DEPTH - 1 < NI:
            rd2(k + DEPTH - 1)
        A(f"{MF} {acc[1][sl]}, {Wf.sub(kk * 8 + 4, 4)}, {frag[k % DEPTH]}, {acc[1][sl]}")
        A(after[k])
    stamp("pdone")

    def need_mask(X_, gi):
        mask = sum(1 << (i - 1 + 4 * four) for i, four in groups[gi])
        X_(f"s_or_b32 s83, {sOWN4}, 15")
        X_(f"s_and_b32 s83, s83, {mask}")

    def cold_await(lab, gi):
        need_mask(C, gi)
        C.label(lab + "_w")
        C(txt(canary("cw", gi)))
        C("s_waitcnt vmcnt(0)")
        C(judge())
        C("s_and_b32 s3, vcc_lo, s83")
        C("s_cmp_eq_u32 s3, s83")
        C(f"s_cbranch_scc1 {lab}_go")
        bounded(lab + "_w", lab + "_go")

    def settle(lab, keys, gi):
        A.label(lab)
        four_too = any(f for _, f in keys)
        A([f"v_mov_b32 {xacc[0]}, 0", f"v_mov_b32 {xacc[1]}, 0"][:2 if four_too else 1])
        for i, four in keys:
            A(verify(i, four))
        A(f"v_and_b32 {xacc[0]}, 0xff, {xacc[0]}")
        if four_too:
            A(f"v_and_or_b32 {xacc[0]}, {xacc[1]}, {sOWN4}, {xacc[0]}")
        A(f"v_cmp_ne_u32 vcc, 0, {xacc[0]}")
        A("s_nop 1")
        A(f"s_cbranch_vccnz {lab}_slow")
        A.label(lab + "_done")
        C.label(lab + "_slow")
        if gi is not None:
            cold_await(lab, gi)
            C.label(lab + "_go")
        C(txt([gather(i, four) for i, four in keys]))
        C("s_waitcnt vmcnt(0)")
        bounded(lab, lab + "_done")

    def add_in(t_, quads2):
        for tt in range(2):
            for hf in range(2):
                d = acc[tt][t_].sub(2 * hf, 2)
                A(f"v_pk_add_f32 {d}, {d}, {quads2[tt].sub(2 * hf, 2)}")

    def emit_rows(t_, soff, stg):
        for tt in range(2):
            for hf in range(2):
                A(f"v_cvt_pk_bf16_f32 {stg[tt * 2 + hf]}, {acc[tt][t_][2 * hf]}, {acc[tt][t_][2 * hf + 1]}")
        for hf in range(2):
            A(f"v_permlane32_swap_b32 {stg[hf]}, {stg[2 + hf]}")
        for hf in range(2):
            A(f"v_permlane16_swap_b32 {stg[hf]}, {stg[2 + hf]}")
        A(VM("out", f"buffer_store_dwordx4 {stg}, {oa}, {OUT}, {soff} offen {OUTMOD}".rstrip()))

    need_mask(A, 0)
    if "ack" in ONLY:
        A(W(vm="snd"))
        stamp("ack")
    A(W(vm="c2"))
    stamp("c2r")
    A(judge())
    A("s_and_b32 s3, vcc_lo, s83")
    A("s_cmp_eq_u32 s3, s83")
    A("s_cbranch_scc0 L_a_slow")
    A.label("L_a_go")
    C.label("L_a_slow")
    if C3AT:
        for n_, (cur, nxt) in enumerate(((vx[3], vcan), (vcan, vx[3]))):
            C.label(f"L_a_p{n_}")
            C(txt(canary("cw", 0, nxt)))
            C("s_waitcnt vmcnt(1)")
            C(judge(cur))
            C("s_and_b32 s3, vcc_lo, s83")
            C("s_cmp_eq_u32 s3, s83")
            C("s_cbranch_scc1 L_a_go")
        bounded("L_a_p0", "L_a_go")
    else:
        cold_await("L_a", 0)
    stamp("cok")
    if STAMPS:
        A(f"v_writelane_b32 {vstamp}, {sSPIN}, 61")
    A([gather(i, f) for i, f in groups[0]])
    settle("L_c0", early, None)
    if STAMPS:
        A(f"v_writelane_b32 {vstamp}, {sSPIN}, 62")
    for i in (3, 2, 1):
        add_in(4, gB[i])
    add_in(0, gA[3])
    if G2AT:
        add_in(0, gA[2])
    emit_rows(4, sROW4, qb.sub(4, 4))
    settle("L_c1", groups[0], None)
    if not G2AT:
        add_in(0, gA[2])
    stamp("gok")
    if STAMPS:
        A(f"v_writelane_b32 {vstamp}, {sSPIN}, 63")
    add_in(0, gA[1])
    emit_rows(0, sROW0, qb.sub(0, 4))
    A(f"s_andn2_b32 s3, {sEPD}, {sEPW}")
    A("s_cmp_lg_u32 s3, 0")
    A("s_cbranch_scc1 L_ci_w")
    A.label("L_noep")
    C.label("L_ci_w")
    for e in range(4):
        C(f"buffer_load_dword {quads[0][e]}, {vepf}, {FL}, 0 offen offset:{4 * e} sc1")
    C("s_waitcnt vmcnt(0)")
    for e in range(4):
        C(f"v_xor_b32 {quads[0][e]}, {vtag}, {quads[0][e]}")
    C(f"v_or_b32 {t1}, {quads[0][0]}, {quads[0][1]}")
    C(f"v_or3_b32 {t1}, {t1}, {quads[0][2]}, {quads[0][3]}")
    C(f"v_cmp_ne_u32 vcc, 0, {t1}")
    C("s_nop 1")
    C("s_cbranch_vccz L_ci_done")
    bounded("L_ci_w", "L_ci_done")
    C.label("L_ci_done")
    C(f"buffer_store_dword {vnew}, {vep}, {FL}, 0 offen sc1")
    C("s_branch L_noep")
    if STAMPS:
        A("s_waitcnt vmcnt(0)")
        stamp("end")
        A(W(lg="*"))
        harvest()
        A("s_lshl_b32 s3, s2, 8")
        A(f"s_add_u32 s3, s3, {STAMP_OFF}")
        A(srd(KS, 18, "s3", 256))
        A(f"v_lshlrev_b32 {t0}, 2, v0")
        A(f"buffer_store_dword {vstamp}, {t0}, {KS}, 0 offen")
    A.label("L_end")
    A("s_endpgm")
    A.lines += C.lines
    A.label("L_last")
    A("s_endpgm")
    if NONOP:
        print("dropped", drop_m0_nops(A.lines), "m0 nops")
    n = autopad(A.lines)
    print("autopad inserted", n, "nops; vgpr", V.hi, "agpr", AG.hi)
    check(A.lines, NAME)
    for pr in A.lds_problems[:5]:
        print("LDS ORDER:", pr)
    print("lds order problems:", len(A.lds_problems))
    return A.text(), descriptor(NAME, V.hi, AG.hi, 100), names


def main():
    code, desc, names = build()
    out = HEADER
    out += "; @launch grid=(256,1,1) block=(256,1,1) lds=163840\n"
    if names:
        out += "; stamps: " + ",".join(names) + "\n"
    out += '.amdgcn_target "amdgcn-amd-amdhsa--gfx950"\n.text\n' + code + desc
    open(sys.argv[1], "w").write(out)


main()
```

```python
import math
import struct
import sys

from asmlib import *

OPT = dict(kv.split("=") for kv in sys.argv[2:])
STAMPS = int(OPT.get("stamps", 0))
ONLY = [x for x in OPT.get("only", "").split(",") if x]
PK = int(OPT.get("pk", 1))
RPS = int(OPT.get("rps", 1))
P1 = int(OPT.get("p1", 5))
P2 = int(OPT.get("p2", 0))
DEPTH = int(OPT.get("depth", 10))
G2AT = int(OPT.get("g2", 0))
C3AT = int(OPT.get("c3", 139))
G4AT = int(OPT.get("g4", 104))
EPAT = int(OPT.get("epat", 56))
PFWO = int(OPT.get("pfwo", 0))
PFN = int(OPT.get("pfn", 4))
P1E = int(OPT.get("p1e", 1))
P2LO = int(OPT.get("p2lo", 50))
PM = int(OPT.get("pm", 3))
PMLO = int(OPT.get("pmlo", 30))
PFKV = OPT.get("pfkv", "")
PFAT = int(OPT.get("pfat", 2))
AHEAD = int(OPT.get("ahead", 6))
PW6 = int(OPT.get("pw6", 8))
W7AT = int(OPT.get("w7at", 10))
G1AT = int(OPT.get("g1", 110))
CAN = OPT.get("can", "atomic")
C1AT = int(OPT.get("c1", 0))
GT1 = int(OPT.get("gt1", 97))
GG1 = int(OPT.get("gg1", 105))
C2AT = int(OPT.get("c2", 136))
CPF = int(OPT.get("cpf", 1))
TLB = OPT.get("tlb", "")
CB = int(OPT.get("cb", 0))
GTB = int(OPT.get("gtb", 145))
OUTMOD = OPT.get("outmod", "").replace("+", " ")
SPEC = int(OPT.get("spec", 0))
NONOP = int(OPT.get("nonop", 1))
TAGMUL = 0x9E3779B1
NTKV = "nt" if int(OPT.get("ntkv", 1)) else ""
NB = int(OPT.get("nb", 8))
O3 = [int(x) for x in OPT.get("o3", "36,46").split(",")]
O4 = [int(x) for x in OPT.get("o4", "63,71").split(",")]
SGAP = int(OPT.get("sgap", 2))
SGAPL = int(OPT.get("sgapl", 2))
SPLITP = int(OPT.get("splitp", 1))
GSP = int(OPT.get("gsp", 8))
S0AT = int(OPT.get("s0at", 0))
O2 = [int(x) for x in OPT.get("o2", "12,26").split(",")]
W7F = int(OPT.get("w7f", 0))
PP = int(OPT.get("pp", 2))
N45 = int(OPT.get("n45", 12))
SW = [[0, 1, 2, 3, 4], [1, 1, 4, 4, 4], [0, 2, 2, 4, 4]][int(OPT.get("sw", 2))]
ORD = int(OPT.get("ord", 0))
D7 = int(OPT.get("d7", 0))
QAB = OPT.get("qab", "")
DPOS = OPT.get("dpos", "")
WFIRST = int(OPT.get("wfirst", 0))
UNI = [int(x) for x in OPT.get("uni", "0,39").split(",") if x]
SPLIT7 = int(OPT.get("split7", 0))
P0 = int(OPT.get("p0", 0))
VE = int(OPT.get("ve", 0))
WG1 = int(OPT.get("wg1", 1))
WGRP = {1: [0, 2, 2, 4, 4], 2: [1, 1, 4, 4, 4], 3: [4, 4, 4, 4, 4], 4: [0, 1, 3, 3, 4]}
ABL = OPT.get("abl", "")
WG2 = int(OPT.get("wg2", 1))
SPIN = 64 if ABL else 1 << 20

NAME = "standalone__mha_block_cached__near_ridge_kernel"
SLOT = 53248
KBASE = 2 * SLOT
VBASE = KBASE + 20480
QS = 32768
U = [i * 32768 for i in range(5)]
F1OFF = 6 << 20
F2REL = 32768
POFF = 8 << 20
PSIZE = 16 << 20
STAMP_OFF = 64 << 20
MF = "v_mfma_f32_16x16x32_bf16"
MF16 = "v_mfma_f32_16x16x16_bf16"

sW, sB, sH, sROT1 = "s20", "s21", "s22", "s23"
X, WQ, KS, VS, OW, WO, OR, FL, DBG, PT, OUT = (f"s[{n}:{n + 3}]" for n in range(24, 68, 4))
sW1K, sXCD, sSO0, sSO1, sKQ, sNT, sC, sHH, sSPIN = "s68", "s69", "s70", "s71", "s77", "s78", "s80", "s81", "s82"
S4K = [f"s{72 + j}" for j in range(5)]
sGRP = "s86"
sSEND = {i: f"s{87 + i}" for i in range(1, 5)}
sRECV = {i: f"s{91 + i}" for i in range(1, 4)}
sRECV4 = {1: "s24", 2: "s25", 3: "s26"}
sROW0, sROW4, sOWN4 = "s27", "s28", "s29"
sSEL = [f"s{32 + i}" for i in range(4)]
sTAG = [f"s{36 + i}" for i in range(4)]
sEFF = {(i, f): f"s{40 + 3 * f + i - 1}" for i in range(1, 4) for f in range(2)}
sTAGB, sEPD, sBP, sEPW = "s30", "s31", "s79", "s40"


def f32bits(x):
    return struct.unpack("<I", struct.pack("<f", x))[0]


def srd(d, lo, off, size):
    n = int(d[2:d.index(":")])
    if off is None:
        o = [f"s_mov_b32 s{n}, s{lo}", f"s_and_b32 s{n + 1}, s{lo + 1}, 0xffff"]
    else:
        o = [f"s_add_u32 s{n}, s{lo}, {off}", f"s_addc_u32 s{n + 1}, s{lo + 1}, 0", f"s_and_b32 s{n + 1}, s{n + 1}, 0xffff"]
    return o + [f"s_mov_b32 s{n + 2}, {size}", f"s_mov_b32 s{n + 3}, 0x20000"]


def lds_ref(regsets, const):
    k = const // 65536
    return regsets[k], const - k * 65536


OWNER = {}


def owned(groups, reg, pre, tag):
    def claim():
        OWNER[reg] = tag

    def verify():
        assert OWNER.get(reg) == tag, f"{reg} holds {OWNER.get(reg)}, needed {tag}"

    groups = [[verify] + g for g in groups]
    groups[0] = [claim] + pre + groups[0]
    return groups


def head_of(i, d="s87"):
    if i == 0:
        o = [f"s_add_u32 {d}, {sNT}, {sB}"]
    elif i == 1:
        o = [f"s_cmp_eq_u32 {sB}, 0", f"s_addc_u32 {d}, {sNT}, 0"]
    else:
        o = [f"s_cmp_le_u32 {sBP}, {i - 1}", f"s_addc_u32 {d}, {sNT}, {i - 1}"]
    return o + [f"s_and_b32 {d}, {d}, 7"]


def dma(tag, srd_regs, vregs, soff, base, mod=""):
    out = []
    for j, vr in enumerate(vregs):
        so = soff[j] if isinstance(soff, list) else soff
        out.append([f"s_add_u32 m0, {sW1K}, {base + j * 4096}", "s_nop 0",
                    VM(tag, f"buffer_load_dwordx4 {vr}, {srd_regs}, {so} offen {mod} lds".replace("  ", " "), (base + j * 4096, base + j * 4096 + 4096))])
    return out


def build():
    A = Asm()
    V = Alloc("v", 1, 256)
    AG = Alloc("a", 0, 256)
    vstamp = V.get()
    names = []
    st = {"pend": None, "flip": 0}

    def harvest():
        if st["pend"] is not None:
            pair, idx = st["pend"]
            if "smem" in A.lgq:
                A(W(lg="*"))
            A(f"v_writelane_b32 {vstamp}, s{pair}, {idx}")
            st["pend"] = None

    def stamp(nm):
        if not STAMPS or (STAMPS >= 2 and nm not in ["start", "end"] + ONLY):
            return
        harvest()
        pair = 96 + 2 * st["flip"]
        st["flip"] ^= 1
        cyc = STAMPS == 3 and nm in ONLY
        A(SM(f"{'s_memtime' if cyc else 's_memrealtime'} s[{pair}:{pair + 1}]"))
        st["pend"] = (pair, len(names))
        names.append(nm + ("_c" if cyc else ""))

    C = Asm()

    def txt(items):
        return [o.text if isinstance(o, Op) else o for o in flat(items)]

    def bounded(target, give_up):
        C(f"s_sub_u32 {sSPIN}, {sSPIN}, 1")
        C(f"s_cmp_eq_u32 {sSPIN}, 0")
        C(f"s_cbranch_scc0 {target}")
        C(f"s_mov_b32 {sSPIN}, 1")
        C(f"s_branch {give_up}")

    A(f".globl {NAME}")
    A(".p2align 8")
    A(f".type {NAME},@function")
    A.label(NAME)
    A("s_cmp_ge_u32 s2, 256")
    A("s_cbranch_scc1 L_end")
    A(SM("s_load_dwordx16 s[4:19], s[0:1], 0"))
    if STAMPS:
        A(f"v_mov_b32 {vstamp}, 0")
    stamp("start")

    lane, q, g, r, c, r4, l16 = (V.get() for _ in range(7))
    tq = V.get(4, 2)
    t0, t1, t2, t3 = (tq[i] for i in range(4))
    vcp = V.get()
    if CPF:
        A.comment("the workgroups of one die together touch every 128-byte line of this kernel's code once")
        A("s_getpc_b64 s[84:85]")
        A.label("L_pc")
        A("s_lshr_b32 s3, s2, 3")
        if CPF == 1:
            A(f"v_lshrrev_b32 {t2}, 5, v0")
            A(f"v_lshl_add_u32 {t2}, s3, 3, {t2}")
        else:
            A(f"v_mov_b32 {t2}, v0")
        A(f"v_lshlrev_b32 {t2}, 7, {t2}")
        A(f"v_min_u32 {t2}, L_last-L_pc, {t2}")
        A(f"v_mov_b32 {t1}, s85")
        A(f"v_add_co_u32 {t0}, vcc, s84, {t2}")
        A(f"v_addc_co_u32 {t1}, vcc, 0, {t1}, vcc")
        A(VM("cpf", f"global_load_dword {vcp}, {tq.sub(0, 2)}, off"))
    A(f"v_lshrrev_b32 {r4}, 6, v0")
    A(f"v_and_b32 {lane}, 63, v0")
    A(f"v_readfirstlane_b32 {sW}, {r4}")
    A(f"v_and_b32 {q}, 15, v0")
    A(f"v_lshrrev_b32 {g}, 4, {lane}")
    A(f"v_lshrrev_b32 {r4}, 4, v0")
    A(f"s_and_b32 {sXCD}, s2, 7")
    A(f"s_lshr_b32 {sB}, s2, 5")
    A(f"s_bfe_u32 {sHH}, s2, 0x20003")
    A(f"s_lshl_b32 s3, {sXCD}, 2")
    A(f"s_add_u32 {sH}, {sHH}, s3")
    A(f"s_add_u32 {sROT1}, {sXCD}, {sB}")
    A(f"s_lshl_b32 {sW1K}, {sW}, 10")
    A(f"s_mul_i32 s84, {sB}, 163840")
    A(f"s_lshl_b32 s85, {sH}, 8")
    vx = [V.get() for _ in range(5)]
    vq = [V.get() for _ in range(8)]
    vk, vv = V.get(), V.get()
    vf1, vep, vtag = V.get(), V.get(), V.get()
    A(f"v_xor_b32 {t0}, {q}, {r4}")
    A(f"v_lshlrev_b32 {t0}, 4, {t0}")
    A(f"v_lshl_add_u32 {vx[0]}, {r4}, 11, {t0}")
    A(f"v_lshl_add_u32 {vk}, {r4}, 8, {t0}")
    for j in range(1, 5):
        A(f"v_add_u32 {vx[j]}, {j * 32768}, {vx[0]}")
    A(f"v_lshrrev_b32 {t1}, 3, {r4}")
    A(f"v_lshl_or_b32 {t1}, {t1}, 2, {g}")
    A(f"v_lshlrev_b32 {t1}, 1, {t1}")
    A(f"v_xor_b32 {t1}, {q}, {t1}")
    A(f"v_lshlrev_b32 {t1}, 4, {t1}")
    A(f"v_lshl_add_u32 {vq[0]}, {r4}, 13, {t1}")
    for j in range(1, 8):
        A(f"v_add_u32 {vq[j]}, {j * 16 * 8192}, {vq[0]}")
    A(W(lg="*"))
    stamp("karg")
    A(srd(X, 4, "s84", 163840))
    A(srd(WQ, 10, "s85", 8388608 - 7936))

    def dma_stage(s_):
        slot = (s_ % 3) * SLOT
        pre = [f"s_add_u32 s3, {sROT1}, {s_}", "s_and_b32 s3, s3, 7", f"s_lshl_b32 {sSO0}, s3, 8", f"s_lshl_b32 {sSO1}, s3, 20"]
        gx = dma(f"st{s_}", X, vx, sSO0, slot)
        gq = dma(f"st{s_}", WQ, vq, sSO1, slot + 20480)
        if s_ == 7 and SPLIT7:
            for grp in gq[2 * SPLIT7:]:
                grp[-1].tag = "st7b"
        if WFIRST:
            gq[0] = pre + gq[0]
            return gq + gx
        gx[0] = pre + gx[0]
        return gx + gq

    first = dma_stage(0)
    A(first[:10])

    A(srd(FL, 18, F1OFF, 65536))
    A("s_lshl_b32 s3, s2, 7")
    A(f"s_lshl_b32 s83, {sW}, 2")
    A("s_add_u32 s3, s3, s83")
    A(f"v_lshlrev_b32 {vf1}, 20, {lane}")
    A(f"v_add_u32 {vf1}, s3, {vf1}")
    A(f"s_lshl_b32 s3, {sB}, 7")
    A(f"s_add_u32 s3, s3, {F2REL}")
    A(f"v_mov_b32 {vep}, s3")
    A(f"v_bfe_u32 {r}, v0, 2, 2")
    A(f"v_and_b32 {c}, 3, v0")
    A(f"v_lshlrev_b32 {l16}, 4, {lane}")
    A(f"s_lshr_b32 {sKQ}, {sXCD}, 1")
    A(f"s_and_b32 s3, {sXCD}, 1")
    A("s_lshl_b32 s3, s3, 2")
    A(f"s_add_u32 {sNT}, s3, {sHH}")
    A(f"s_lshl_b32 s3, {sB}, 5")
    A(f"s_add_u32 s83, s3, {sH}")
    A("s_mul_i32 s83, s83, 20480")
    A(srd(KS, 6, "s83", 20480))
    A(srd(VS, 8, "s83", 20480))
    A(srd(OW, 18, "s83", 20480))
    A(f"s_lshl_b32 s83, {sKQ}, 3")
    A("s_add_u32 s83, s83, s3")
    A("s_mul_i32 s83, s83, 20480")
    A(srd(OR, 18, "s83", 8 * 20480))
    A(f"s_lshl_b32 s83, {sKQ}, 21")
    A(f"s_lshl_b32 s3, {sNT}, 8")
    A("s_add_u32 s83, s83, s3")
    A(srd(WO, 12, "s83", 1024 * 2048 - 1792))
    A("s_add_u32 s83, s84, s3")
    A(f"s_lshl_b32 s3, {sW}, 6")
    A("s_add_u32 s83, s83, s3")
    A(srd(OUT, 14, "s83", 163840 - 1984))
    A(srd(PT, 18, POFF, PSIZE))
    for j in range(5):
        A(f"s_mov_b32 {S4K[j]}, {j * 4096}")
    A(f"s_mov_b32 {sC}, {f32bits(math.log2(math.e) / math.sqrt(128.0)):#x}")
    A(f"s_mov_b32 {sSPIN}, {SPIN}")
    A(f"s_max_u32 {sBP}, {sB}, 1")
    vw = [V.get() for _ in range(8)]
    A(f"v_and_b32 {t1}, 7, {r4}")
    A(f"v_lshlrev_b32 {t1}, 1, {t1}")
    A(f"v_xor_b32 {t1}, {q}, {t1}")
    A(f"v_lshlrev_b32 {t1}, 4, {t1}")
    A(f"v_lshl_add_u32 {vv}, {r4}, 8, {t1}")
    A(f"v_lshl_add_u32 {vw[0]}, {r4}, 11, {t1}")
    for j in range(1, 8):
        A(f"v_add_u32 {vw[j]}, {j * 16 * 2048}, {vw[0]}")
    xa = [[V.get() for _ in range(3)] for _ in range(4)]
    wa = [[V.get() for _ in range(3)] for _ in range(2)]
    for s4 in range(4):
        A(f"v_or_b32 {t0}, {4 * s4}, {g}")
        A(f"v_xor_b32 {t0}, {t0}, {q}")
        A(f"v_lshlrev_b32 {t0}, 4, {t0}")
        A(f"v_lshl_add_u32 {xa[s4][0]}, {q}, 8, {t0}")
        A(f"v_add_u32 {xa[s4][1]}, 0x10000, {xa[s4][0]}")
        A(f"v_add_u32 {xa[s4][2]}, 0x20000, {xa[s4][0]}")
    A(f"v_and_b32 {t0}, 1, {g}")
    A(f"v_lshl_or_b32 {t0}, {t0}, 2, {r}")
    A(f"v_lshl_add_u32 {t1}, {g}, 3, {r}")
    A(f"v_lshlrev_b32 {t1}, 8, {t1}")
    A(f"v_lshl_add_u32 {t1}, {c}, 3, {t1}")
    A(f"s_lshl_b32 s3, {sW}, 1")
    for tt in range(2):
        A(f"s_add_u32 s83, s3, {tt}")
        A(f"v_xor_b32 {t2}, s83, {t0}")
        A(f"v_lshl_add_u32 {wa[tt][0]}, {t2}, 5, {t1}")
        A(f"v_add_u32 {wa[tt][1]}, 0x10000, {wa[tt][0]}")
        A(f"v_add_u32 {wa[tt][2]}, 0x20000, {wa[tt][0]}")
    ka = [V.get() for _ in range(8)]
    va = [V.get() for _ in range(8)]
    qown, qwr = V.get(), V.get()
    A(f"v_lshrrev_b32 {t0}, 1, {g}")
    A(f"v_xor_b32 {t0}, {t0}, {q}")
    A(f"v_lshlrev_b32 {t0}, 4, {t0}")
    A(f"v_lshl_add_u32 {t0}, {q}, 8, {t0}")
    A(f"v_and_b32 {t1}, 1, {g}")
    A(f"v_lshl_add_u32 {t0}, {t1}, 3, {t0}")
    A(f"v_add_u32 {ka[0]}, {KBASE}, {t0}")
    for i in range(1, 8):
        A(f"v_xor_b32 {ka[i]}, {32 * i}, {ka[0]}")
    trb = V.get()
    A(f"v_lshl_add_u32 {t0}, {g}, 2, {r}")
    A(f"v_and_b32 {t1}, 7, {t0}")
    A(f"v_lshlrev_b32 {t1}, 5, {t1}")
    A(f"v_lshl_add_u32 {t0}, {t0}, 8, {t1}")
    A(f"v_lshl_add_u32 {trb}, {c}, 3, {t0}")
    A(f"v_add_u32 {t0}, {VBASE}, {trb}")
    for i in range(8):
        A(f"s_lshl_b32 s3, {sW}, 1")
        A(f"s_add_u32 s3, s3, {i}")
        A("s_and_b32 s3, s3, 7")
        A("s_lshl_b32 s3, s3, 5")
        A(f"v_xor_b32 {va[i]}, s3, {t0}")
    A(f"v_add_u32 {qwr}, {sW1K}, {l16}")
    A(f"s_lshl_b32 s3, {sW}, 12")
    A(f"v_add_u32 {qown}, s3, {l16}")
    A(f"s_lshl_b32 s3, {sB}, 5")
    vp1, vpf = V.get(), V.get()
    A(f"v_bfe_u32 {t1}, v0, 4, 1")
    A(f"v_lshl_add_u32 {t0}, {r}, 3, {t1}")
    A(f"s_lshl_b32 s83, {sKQ}, 1")
    A("s_add_u32 s83, s83, s3")
    A(f"v_add_u32 {t0}, s83, {t0}")
    A(f"v_lshlrev_b32 {t0}, 7, {t0}")
    A(f"v_lshl_add_u32 {vp1}, {c}, 2, {t0}")
    A(f"s_and_b32 {sGRP}, s2, 0xf9")
    A(f"s_lshl_b32 s87, {sKQ}, 2")
    A(f"s_add_u32 s87, s87, {sW}")
    for i in range(1, 5):
        A(f"s_add_u32 s3, {sKQ}, {i}" if i < 4 else f"s_mov_b32 s3, {sW}")
        A("s_and_b32 s3, s3, 3")
        A("s_lshl_b32 s3, s3, 1")
        A(f"s_add_u32 s3, s3, {sGRP}")
        A("s_lshl_b32 s3, s3, 4")
        A("s_add_u32 s3, s3, s87")
        A(f"s_lshl_b32 {sSEND[i]}, s3, 12")
    for i in range(1, 4):
        A(f"s_add_u32 s3, {sKQ}, {i}")
        A("s_and_b32 s3, s3, 3")
        A("s_lshl_b32 s83, s2, 2")
        A("s_add_u32 s3, s3, s83")
        A("s_lshl_b32 s3, s3, 2")
        A(f"s_add_u32 s3, s3, {sW}")
        A(f"s_lshl_b32 {sRECV[i]}, s3, 12")
    vpw, vdump = V.get(), V.get()
    if PFWO:
        A(f"v_lshrrev_b32 {vpw}, 1, v0")
        A(f"v_lshlrev_b32 {vpw}, 11, {vpw}")
        A(f"v_and_b32 {t0}, 1, v0")
        A(f"v_lshl_add_u32 {vpw}, {t0}, 7, {vpw}")
        A(head_of(0, "s84") + ["s_lshl_b32 s84, s84, 18", f"s_and_b32 s85, {sB}, {PFN - 1}"])
    vown = V.get()
    A(f"v_add_u32 {vown}, {U[3]}, {l16}")
    stamp("setup")
    A(first[10:])

    A(VM("ep", f"buffer_load_dword {vtag}, {vep}, {FL}, 0 offen sc1"))
    A(dma_stage(1))
    stamp("iss1")

    accr = V.get(40, 4)
    acc = [[accr.sub((tt * 5 + t) * 4, 4) for t in range(5)] for tt in range(2)]
    bB = V.get(40, 4)
    bufB = [[bB.sub((p * 5 + t) * 4, 4) for t in range(5)] for p in range(2)]
    bA = V.get(20, 4)
    bufA = [[bA.sub((p * 2 + tt) * 4, 4) for tt in range(2)] for p in range(2)]
    Wf = AG.get(256, 4)
    Kf, Vf = Wf.sub(96, 80), Wf.sub(176, 80)
    sWO = "s95"

    def wo_dma(j, ubase):
        return owned(dma(f"wo{j}", WO, vw, sWO, ubase), sWO, head_of(j) + [f"s_lshl_b32 {sWO}, s87, 18"], f"wo{j}")

    def mfmas1(s_, i):
        buf = i & 1
        out = []
        for t in range(5):
            for tt in range(2):
                cc = "0" if (s_ == 0 and i == 0) else acc[tt][t]
                tags = [f"A{s_}_{i}_{tt}", f"B{s_}_{i}_{t}"]
                if WG1:
                    tags = [f"A{s_}_{i}_1", f"B{s_}_{i}_{WGRP[WG1][t]}"]
                out.append([W(lg=tags), f"{MF} {acc[tt][t]}, {bufA[buf][tt]}, {bufB[buf][t]}, {cc}"])
        return out

    def reads1(s_, i):
        ra, rb = [], []
        for tt in range(2):
            for hf in range(2):
                rg, off = lds_ref(wa[tt], (s_ % 3) * SLOT + 20480 + i * 8192 + hf * 1024)
                ra.append(LG(f"A{s_}_{i}_{tt}", f"ds_read_b64_tr_b16 {bufA[i & 1][tt].sub(2 * hf, 2)}, {rg} offset:{off}",
                             ((s_ % 3) * SLOT + 20480 + i * 8192, (s_ % 3) * SLOT + 20480 + (i + 1) * 8192)))
        for t in range(5):
            rg, off = lds_ref(xa[i], (s_ % 3) * SLOT + t * 4096)
            rb.append(LG(f"B{s_}_{i}_{t}", f"ds_read_b128 {bufB[i & 1][t]}, {rg} offset:{off}",
                         ((s_ % 3) * SLOT + t * 4096, (s_ % 3) * SLOT + (t + 1) * 4096)))
        return ra[:2] + rb[:1] + ra[2:] + rb[1:]

    extra1 = [dma_stage(s_ + 2) for s_ in range(6)] + [dma("k", KS, [vk] * 5, S4K, KBASE, NTKV), dma("v", VS, [vv] * 5, S4K, VBASE, NTKV)]
    wstream = wo_dma(0, U[0]) + wo_dma(1, U[2]) + wo_dma(2, U[1]) + wo_dma(3, U[4])
    if PFWO:
        for n_ in range(PFN):
            grp = [f"s_cmp_eq_u32 s85, {n_}", "s_cselect_b32 s83, s84, 0x400000", VM("pf", f"buffer_load_dword {vdump}, {vpw}, {WO}, s83 offen")]
            extra1[PFWO + n_] = extra1[PFWO + n_] + [grp]
    for s_ in range(8):
        A.comment(f"q-projection stage {s_}")
        if not ("l" in QAB and 2 < s_ < 7):
            A(W(vm=f"st{s_}", lg="*"))
        if not ("b" in QAB and 2 < s_ < 7):
            A("s_barrier")
        stamp(f"s{s_}")
        ex = extra1[s_]
        n = len(ex)
        parts = [ex[(n * i) // 4:(n * (i + 1)) // 4] for i in range(4)]
        if DPOS and n >= 13:
            c_ = [int(x) for x in DPOS]
            parts = [ex[sum(c_[:i]):sum(c_[:i + 1])] for i in range(3)] + [ex[sum(c_[:3]):]]
        if s_ == 6:
            parts = [ex[:3], ex[3:], [], []]
            if VE:
                vd = extra1[7]
                parts = [ex[:3], ex[3:], vd[:VE // 2], vd[VE // 2:VE]]
        if s_ == 7 and (P0 or VE):
            w0 = wstream[:P0]
            allx = ex[VE:] + w0
            m_ = len(allx)
            parts = [allx[(m_ * i) // 4:(m_ * (i + 1)) // 4] for i in range(4)]
        if UNI and 1 <= s_ <= 5:
            seq = []
            for i in range(4):
                seq += interleave(mfmas1(s_, i - 1) if i else mfmas1(s_ - 1, 3), reads1(s_, i), start=0, per=RPS)
            mpos = [k for k, it in enumerate(seq) if isinstance(it, list)]
            lo_, hi_ = UNI[0], UNI[1]
            at = {}
            for j, grp in enumerate(ex):
                m_ = lo_ + (j * (hi_ - lo_) + (n - 1) // 2) // (n - 1)
                at.setdefault(mpos[m_] if m_ >= 0 else -1, []).append(grp)
            A(at.get(-1, []))
            for k, it in enumerate(seq):
                A(it)
                A(at.get(k, []))
            continue
        for i in range(4):
            if s_ == 7 and SPLIT7 and i == SPLIT7:
                A(W(vm="st7b"))
                A("s_barrier")
            rd = reads1(s_, i)
            if "x" in QAB:
                rd = [o for o in rd if "tr" in o.text]
            if "a" in QAB:
                rd = [o for o in rd if "tr" not in o.text]
            if s_ == 0 and i == 0:
                seq = rd + parts[0]
            else:
                m = mfmas1(s_, i - 1) if i else mfmas1(s_ - 1, 3)
                seq = spread(interleave(m, rd, start=0, per=RPS), parts[i], lo=2)
            A(seq)
    qb = V.get(20, 4)

    def qpack(t_):
        o = [f"v_cvt_pk_bf16_f32 {qb[t_ * 4 + tt * 2 + hf]}, {acc[tt][t_][2 * hf]}, {acc[tt][t_][2 * hf + 1]}" for tt in range(2) for hf in range(2)]
        return o + [LG("qw", f"ds_write_b128 {qwr}, {qb.sub(t_ * 4, 4)} offset:{QS + t_ * 4096}", (QS + t_ * 4096, QS + t_ * 4096 + 4096))]

    vnew = vk
    lastm = mfmas1(7, 3)
    A(lastm[:4])
    A([lastm[4], f"v_add_u32 {vnew}, 1, {vtag}", f"s_mov_b32 s3, {TAGMUL:#x}", lastm[5], f"v_mul_lo_u32 {vtag}, {vnew}, s3"])
    A(interleave(lastm[6:], qpack(0) + qpack(1)[:3], per=2))
    stamp("qdone")
    A(qpack(1)[3:] + qpack(2) + qpack(3) + qpack(4))
    A(W(vm="k", lg="*"))
    A("s_barrier")
    stamp("bq")

    Qf = [[bB.sub((T * 4 + u) * 4, 4) for u in range(4)] for T in range(2)]
    sr = V.get(40, 4)
    sacc = [[sr.sub((T * 5 + kt) * 4, 4) for kt in range(5)] for T in range(2)]
    P = [bA.sub(0, 10), bA.sub(10, 10)]
    sums = [bB.sub(32, 4), bB.sub(36, 4)]
    ones = qb.sub(16, 4)
    tmpr = V.get(4, 2)
    rcr = V.get(2, 2)
    oacc = [accr.sub(i * 4, 4) for i in range(10)]

    def rQ(T, u):
        if T == 0:
            return LG(f"Q0{u}", f"ds_read_b128 {Qf[0][u]}, {qown} offset:{QS + u * 1024}", (QS, QS + 16384))
        return LG(f"Q1{u}", f"ds_read_b128 {Qf[1][u]}, {l16} offset:{QS + 16384 + u * 1024}", (QS + 16384, QS + 20480))

    def rK(u):
        return [LG(f"K{kt}{u}", f"ds_read_b64 {Kf.sub((kt * 4 + u) * 4 + 2 * hf, 2)}, {ka[2 * u + hf]} offset:{kt * 4096}", (KBASE, KBASE + 20480))
                for kt in range(5) for hf in range(2)]

    def mS(T, u):
        return [[W(lg=[f"K{SW[kt]}{u}", f"Q{T}{u}"]),
                 f"{MF} {sacc[T][kt]}, {Kf.sub((kt * 4 + u) * 4, 4)}, {Qf[T][u]}, {'0' if u == 0 else sacc[T][kt]}"] for kt in range(5)]

    rV = [LG(f"V{i}{ks}", f"ds_read_b64_tr_b16 {Vf.sub(i * 10 + kt * 2, 2)}, {va[i]} offset:{kt * 4096}", (VBASE, VBASE + 20480))
          for ks in range(3) for i in range(8) for kt in range(2 * ks, min(2 * ks + 2, 5))]

    def softmax(T):
        vals = [sacc[T][kt][r_] for kt in range(5) for r_ in range(4)]
        m, t, nm = tmpr[0], tmpr[1], tmpr[2]
        o = [f"v_max3_f32 {m}, {vals[0]}, {vals[1]}, {vals[2]}", f"v_max3_f32 {t}, {vals[3]}, {vals[4]}, {vals[5]}"]
        for i in range(6, 18, 4):
            o.append(f"v_max3_f32 {m}, {m}, {vals[i]}, {vals[i + 1]}")
            o.append(f"v_max3_f32 {t}, {t}, {vals[i + 2]}, {vals[i + 3]}")
        o.append(f"v_max3_f32 {m}, {m}, {vals[18]}, {vals[19]}")
        o.append(f"v_max_f32 {m}, {m}, {t}")
        for sw in ("v_permlane32_swap_b32", "v_permlane16_swap_b32"):
            o += [f"v_mov_b32 {t}, {m}", f"{sw} {m}, {t}", f"v_max_f32 {m}, {m}, {t}"]
        o.append(f"v_mul_f32 {nm}, {sC}, {m}")
        sc = int(sC[1:])
        for i in range(0, 20, 2):
            if PK:
                pr = R("v", vals[i].n, 2)
                o.append(f"v_pk_fma_f32 {pr}, {pr}, s[{sc}:{sc + 1}], {tmpr.sub(2, 2)} op_sel_hi:[1,0,0] neg_lo:[0,0,1] neg_hi:[0,0,1]")
            else:
                o.append(f"v_fma_f32 {vals[i]}, {vals[i]}, {sC}, -{nm}")
                o.append(f"v_fma_f32 {vals[i + 1]}, {vals[i + 1]}, {sC}, -{nm}")
        for i in range(10):
            o += [f"v_exp_f32 {vals[2 * i]}, {vals[2 * i]}", f"v_exp_f32 {vals[2 * i + 1]}, {vals[2 * i + 1]}"]
            if i:
                o.append(f"v_cvt_pk_bf16_f32 {P[T][i - 1]}, {vals[2 * i - 2]}, {vals[2 * i - 1]}")
        o.append(f"v_cvt_pk_bf16_f32 {P[T][9]}, {vals[18]}, {vals[19]}")
        return o

    def mPV(T, slots):
        out = []
        for ks in range(3):
            op, n = (MF, 4) if ks < 2 else (MF16, 2)
            out.append(f"{op} {sums[T]}, {ones.sub(0, n)}, {P[T].sub(ks * 4, n)}, {'0' if ks == 0 else sums[T]}")
            for i, o in slots:
                out.append([W(lg=f"V{i}{ks}"), f"{op} {o}, {Vf.sub(i * 10 + ks * 4, n)}, {P[T].sub(ks * 4, n)}, {'0' if ks == 0 else o}"])
        return out

    def finish(T, pairs, stage):
        rc = rcr
        out = [f"v_rcp_f32 {rc[0]}, {sums[T][0]}"]
        for p, o0, o1 in pairs:
            if T == 0:
                out += [f"s_add_u32 s3, {sW}, {p}", "s_and_b32 s3, s3, 3", "s_mul_i32 s3, s3, 5", f"s_add_u32 s3, s3, {sW}", "s_lshl_b32 s3, s3, 10"]
            else:
                out += [f"s_mul_i32 s3, {sW}, 5", "s_add_u32 s3, s3, 4", "s_lshl_b32 s3, s3, 10"]
            ob = stage.sub(p * 4, 4)
            for o in (o0, o1):
                for hf in range(2):
                    if PK:
                        out.append(f"v_pk_mul_f32 {o.sub(2 * hf, 2)}, {o.sub(2 * hf, 2)}, {rc} op_sel_hi:[1,0]")
                    else:
                        out += [f"v_mul_f32 {o[2 * hf + e]}, {o[2 * hf + e]}, {rc[0]}" for e in range(2)]
            for hh, o in enumerate((o0, o1)):
                for hf in range(2):
                    out.append(f"v_cvt_pk_bf16_f32 {ob[hh * 2 + hf]}, {o[2 * hf]}, {o[2 * hf + 1]}")
            out.append(VM("ost", f"buffer_store_dwordx4 {ob}, {l16}, {OW}, s3 offen sc1"))
            out.append(f"v_add_u32 {tq[p & 3]}, s3, {vown}")
            out.append(LG("own", f"ds_write_b128 {tq[p & 3]}, {ob}", (U[3] + 8192 + p, U[3] + 8192 + p + 1)))
        return out

    assert P1 + PM <= 16 and P1 + PM + P2 <= 24
    A([rQ(0, 0)] + rK(0))
    for i in range(4):
        A(f"v_mov_b32 {ones[i]}, 0x3f803f80")
    if P1E:
        A(wstream[P0:P1])
    for u in range(4):
        nxt = ([rQ(0, u + 1)] + rK(u + 1)) if u < 3 else [rQ(1, k) for k in range(4)]
        A(interleave(mS(0, u), nxt, per=2))
    m1 = [x for u in range(4) for x in mS(1, u)]
    sm0 = softmax(0)
    A(m1[:4])
    segb = spread(sm0, m1[4:], lo=0, hi=len(sm0) - 12)
    A(spread(segb, wstream[P1:P1 + PM], lo=PMLO) if P1E else spread(segb, wstream[:P1], lo=4))
    A(W(vm="v", lg="*"))
    A("s_barrier")
    stamp("bv")
    sm1 = softmax(1)
    pv1 = mPV(1, [(0, oacc[8]), (1, oacc[9])])
    w2 = wstream[P1 + PM:P1 + PM + P2]
    if ORD == 0:
        pv0 = mPV(0, [(i, oacc[i]) for i in range(8)])
        A(rV[:8])
        A(spread(interleave(spread(sm1, pv0, lo=4), rV[8:], start=0, per=1), w2, lo=P2LO, hi=min(110, P2LO + 12 * max(P2, 1))))
        stamp("b2")
        fin0 = finish(0, [(p, oacc[2 * p], oacc[2 * p + 1]) for p in range(4)], qb)
        A(spread(fin0, pv1, lo=0, hi=30))
    else:
        A.comment("PV of the own tile pair by pair; each pair is normalised and stored beside the next pairs' MFMAs")
        rd = {(i, ks): [x for x in rV if x.tag == f"V{i}{ks}"] for i in range(8) for ks in range(3)}
        order = [(i, ks) for h_ in range(2) for ks in range(3) for i in range(4 * h_, 4 * h_ + 4)]
        rds = [x for key in order for x in rd[key]]
        sums0 = [m for m in mPV(0, []) ]
        mm = []
        for i, ks in order:
            op, n_ = (MF, 4) if ks < 2 else (MF16, 2)
            mm.append([W(lg=f"V{i | 1}{ks}"), f"{op} {oacc[i]}, {Vf.sub(i * 10 + ks * 4, n_)}, {P[0].sub(ks * 4, n_)}, {'0' if ks == 0 else oacc[i]}"])
        A(rds[:8])
        A(interleave(sums0[:2], sm1[:4], per=2))
        cutv = 18
        A(spread(interleave(spread(sm1[4:cutv], mm[:8] + sums0[2:]), rds[8:28], per=1), w2[:len(w2) // 2]))
        fin = finish(0, [(p, oacc[2 * p], oacc[2 * p + 1]) for p in range(4)], qb)
        per_pair = (len(fin) - 1) // 4
        A(spread(interleave(spread(sm1[cutv:cutv + 14], mm[8:16]), rds[28:], per=1), w2[len(w2) // 2:]))
        A(spread(fin[:1 + 2 * per_pair], mm[16:]))
        stamp("b2")
        A(fin[1 + 2 * per_pair:] + sm1[cutv + 14:])
        A(pv1)
    A(finish(1, [(4, oacc[8], oacc[9])], qb))
    stamp("ost")

    vo = vq
    ob = xa[0]
    wa2 = wa
    A(f"s_mul_i32 s83, {sW}, 5120")
    for j in range(1, 8):
        A(head_of(j, "s3") if j > 1 else [f"s_add_u32 s3, {sNT}, {sBP}", "s_and_b32 s3, s3, 7"])
        A("s_mul_i32 s3, s3, 20480")
        A("s_add_u32 s3, s3, s83")
        A(f"v_add_u32 {vo[j]}, s3, {l16}")
    oslot = xa[1] + xa[2][:2]
    for i in range(4):
        A(f"s_add_u32 s3, {sKQ}, {i}")
        A("s_and_b32 s3, s3, 3")
        A("s_lshl_b32 s3, s3, 10")
        A(f"v_add_u32 {oslot[i]}, s3, {vown}")
    A(f"v_add_u32 {oslot[4]}, 4096, {vown}")
    for k in range(3):
        A(f"v_add_u32 {ob[k]}, {k * 65536}, {l16}")
    for tt in range(2):
        A(f"s_lshl_b32 s3, {sW}, 6")
        A(f"s_add_u32 s3, s3, {32 * tt}")
        A(f"v_xor_b32 {wa2[tt][0]}, s3, {trb}")
        A(f"v_add_u32 {wa2[tt][1]}, 0x10000, {wa2[tt][0]}")
        A(f"v_add_u32 {wa2[tt][2]}, 0x20000, {wa2[tt][0]}")
    wb = [[ka[0], ka[1]], [ka[2], ka[3]]]
    A(f"s_cmp_eq_u32 {sB}, 0")
    A(f"s_cselect_b32 s3, {U[0]}, {U[2]}")
    A(f"s_cselect_b32 s83, {U[2]}, {U[0]}")
    for tt in range(2):
        A(f"v_add_u32 {wb[0][tt]}, s3, {wa2[tt][0]}")
        A(f"v_add_u32 {wb[1][tt]}, s83, {wa2[tt][0]}")
    A(f"s_cmp_eq_u32 {sW}, {sKQ}")
    for i in range(1, 4):
        A(f"s_cselect_b32 {sRECV4[i]}, {sRECV[i]}, {PSIZE}")
    A(f"s_cselect_b32 {sOWN4}, 0xff, 0")
    A(f"s_mov_b32 {sROW4}, 0x40000")
    A(f"s_cselect_b32 {sROW4}, 0x20000, {sROW4}")
    A(f"s_lshl_b32 {sROW0}, {sKQ}, 15")
    oa = vx[0]
    A(f"v_readfirstlane_b32 {sTAG[0]}, {vtag}")
    for i in range(4):
        A(f"s_mov_b32 {sSEL[i]}, {0x07060500 + i:#x}")
    for i in (3, 2, 1, 0):
        A(f"s_bfe_u32 {sTAG[i]}, {sTAG[0]}, {0x80000 + 8 * i:#x}")
    A(f"v_lshlrev_b32 {oa}, 11, {q}")
    A(f"v_lshl_add_u32 {oa}, {g}, 4, {oa}")

    def wo_reads(j, ub):
        out = []
        for u in range(4):
            for tt in range(2):
                for hf in range(2):
                    rg, off = lds_ref(wa2[tt], ub + u * 8192 + hf * 4096) if j > 1 else (wb[j][tt], u * 8192 + hf * 4096)
                    out.append(LG(f"W{j * 4 + u}", f"ds_read_b64_tr_b16 {Wf.sub(((j * 4 + u) * 2 + tt) * 4 + 2 * hf, 2)}, {rg} offset:{off}", (ub + u * 8192, ub + (u + 1) * 8192)))
        return out

    rest = wstream[P1 + PM + P2:]
    nb = min(NB, 24 - (P1 + PM + P2))
    A(rest[:nb])
    A(W(vm="ost"))
    A(VM("f1", f"buffer_store_dword {vtag}, {vf1}, {FL}, 0 offen sc1"))
    stamp("f1set")
    slots = [4, 1, 2, 3, 0]
    ohome = [U[1], U[4], U[2], U[3], U[0]] if D7 else [U[1], U[0], U[2], U[3], U[4]]
    home7 = U[0] if D7 else U[4]

    def o_dma(p):
        sl = slots[p]
        pre = [f"s_add_u32 s87, {sKQ}, {sl}", "s_and_b32 s87, s87, 3", f"s_lshl_b32 {sSO0}, s87, 10"] if sl < 4 else [f"s_mov_b32 {sSO0}, 4096"]
        return owned(dma(f"o{p}", OR, vo[1:], sSO0, ohome[p], "sc1"), sSO0, pre, f"o{p}")

    done = P1 + PM + P2 + nb
    cut = min(24, max(done, 16 + AHEAD))
    A(wstream[done:cut])
    A(W(vm=["wo0", "wo1"], lg="*"))
    A("s_barrier")
    stamp("b3")
    A(interleave(wstream[cut:], wo_reads(0, U[0]) + wo_reads(1, U[2]), per=3))
    A(W(lg="*"))
    A("s_barrier")
    pf = [bB.sub(i * 4, 4) for i in range(10)]
    prd = [LG(f"P{n_}", f"ds_read_b128 {pf[n_ % 10]}, {oslot[n_ % 5]} offset:{(n_ // 5) * 5120}", (U[3], U[3] + 20480)) for n_ in range(20)]
    A(prd[:9])
    w45 = wo_dma(4, U[0]) + wo_dma(5, U[2])
    pre_seq = []
    for n_ in range(20):
        u, sl = divmod(n_, 5)
        grp = [W(lg=f"P{n_}"), f"{MF} {acc[0][sl]}, {Wf.sub(u * 8, 4)}, {pf[n_ % 10]}, {'0' if u == 0 else acc[0][sl]}"]
        if n_ + 9 < 20:
            grp.append(prd[n_ + 9])
        grp.append(f"{MF} {acc[1][sl]}, {Wf.sub(u * 8 + 4, 4)}, {pf[n_ % 10]}, {'0' if u == 0 else acc[1][sl]}")
        pre_seq.append(grp)
    A(spread(pre_seq, w45[:N45]))
    A(W(vm=["wo2", "wo3"], lg="*"))
    A("s_barrier")
    stamp("b4")
    pollop = VM("poll", f"buffer_load_dword {vpf}, {vp1}, {FL}, 0 offen sc1")
    w6 = wo_dma(6, U[3])
    A(interleave(w45[N45:] + [pollop] + w6[:PW6], wo_reads(2, U[1]) + wo_reads(3, U[4]), per=4))
    A(W(vm=["wo4", "wo5", "poll"], lg="*"))
    A("s_barrier")
    A.label("L_p1")
    A(f"v_cmp_ne_u32 vcc, {vtag}, {vpf}")
    A("s_nop 1")
    A("s_cbranch_vccnz L_p1_slow")
    A.label("L_p1_done")
    C.label("L_p1_slow")
    C(pollop.text)
    C("s_waitcnt vmcnt(0)")
    bounded("L_p1", "L_p1_done")
    stamp("f1ok")
    if STAMPS:
        A(f"v_writelane_b32 {vstamp}, {sSPIN}, 60")
    nxt, late = (o_dma(1), wo_dma(7, home7)) if D7 else (wo_dma(7, home7), o_dma(1))
    A(interleave(w6[PW6:] + o_dma(0), wo_reads(4, U[0]) + wo_reads(5, U[2]), per=3))
    A(nxt[:AHEAD])
    A(W(vm="wo6", lg="*"))
    A("s_barrier")
    stamp("b5")
    A(interleave(nxt[AHEAD:], wo_reads(6, U[3]), per=4))

    quads = [sr.sub(i * 4, 4) for i in range(10)] + [bA.sub(i * 4, 4) for i in range(2)]
    gA = {i: quads[2 * (i - 1):2 * i] for i in range(1, 4)}
    gB = {i: quads[6 + 2 * (i - 1):6 + 2 * i] for i in range(1, 4)}
    xacc = {0: tmpr[0], 1: tmpr[1]}

    groups = [[(1, 0)]] if G2AT else [[(2, 0), (1, 0)]]
    early = [(1, 1), (2, 1), (3, 1), (3, 0)] + ([(2, 0)] if G2AT else [])
    vcan = vx[1]
    vcan_g = vx[2:5]
    for gi, keys in enumerate(groups):
        A(f"v_mov_b32 {vcan_g[gi]}, {PSIZE}")
        for i, four in keys:
            A(f"s_add_u32 s3, {sRECV4[i] if four else sRECV[i]}, {4080 if four else 2032}")
            A(f"v_writelane_b32 {vcan_g[gi]}, s3, {i - 1 + 4 * four}")
    vepf = ka[4]
    A("s_and_b32 s3, s2, 31")
    A(f"s_or_b32 s3, s3, {sW}")
    A("s_cmp_eq_u32 s3, 0")
    A(f"s_cselect_b32 {sEPW}, 0, 0x100000")
    A(f"v_and_b32 {vepf}, 31, {lane}")
    A(f"v_add_u32 {vepf}, s2, {vepf}")
    A(f"v_lshlrev_b32 {vepf}, 7, {vepf}")
    A(f"v_add_u32 {vepf}, {sEPW}, {vepf}")
    A(f"v_lshl_add_u32 {vep}, {lane}, 20, {vep}")
    A(f"v_add_u32 {vep}, {sEPW}, {vep}")

    def canary(tag, gi, vcan=vcan):
        vcan_a = vcan_g[gi]
        if CAN == "atomic":
            return [f"v_mov_b32 {vcan}, 0", VM(tag, f"buffer_atomic_add {vcan}, {vcan_a}, {PT}, 0 offen sc0 sc1")]
        return [VM(tag, f"buffer_load_dword {vcan}, {vcan_a}, {PT}, 0 offen sc1")]

    def judge(vcan=vcan):
        return [f"v_and_b32 {vcan}, 0xff, {vcan}", f"v_cmp_eq_u32 vcc, {sTAG[0]}, {vcan}", "s_nop 3"]

    def gather(i, four, gated=False):
        so, bufs = (sRECV4[i], gB[i]) if four else (sRECV[i], gA[i])
        return [VM(f"g{i}{int(four)}", f"buffer_load_dwordx4 {bufs[tt]}, {l16}, {PT}, {so} offen offset:{(tt + 2 * four) * 1024} sc1") for tt in range(2)]

    def verify(i, four):
        x = xacc[int(four)]
        out = [W(vm=f"g{i}{int(four)}")]
        for qd in (gB if four else gA)[i]:
            out += [f"v_xor_b32 {qd[e]}, {sTAG[e]}, {qd[e]}" for e in range(4)]
            out += [f"v_or3_b32 {x}, {x}, {qd[e]}, {qd[e + 1]}" for e in (0, 2)]
        return out

    def send(sl):
        out = []
        for tt in range(2):
            d = bA.sub(12 + 4 * tt, 4) if sl == 4 else acc[tt][sl]
            out.append([f"v_perm_b32 {d[e]}, {acc[tt][sl][e]}, {vtag}, {sSEL[e]}" for e in range(4)]
                       + [VM("snd", f"buffer_store_dwordx4 {d}, {l16}, {PT}, {sSEND[sl]} offen offset:{(tt + (2 if sl == 4 else 0)) * 1024} sc1")])
        return out

    frag = [bB.sub(i * 4, 4) for i in range(DEPTH)]
    PL = 28
    NI = 5 * PL
    after = {k: [] for k in range(NI)}

    def place(items, lo, hi):
        for n_, it in enumerate(items):
            after[lo + (n_ * (hi - lo)) // len(items)].append(it)

    place(late, 0, 9)
    after[W7AT].append([W(vm="wo7"), "s_barrier"])
    place(wo_reads(7, home7), W7AT + 1, W7AT + 8)
    if D7:
        sched = [(0, j) for j in range(6)] + [(1, j) for j in range(6)] + [(0, 6), (1, 6)]
    else:
        sched = [(p, j) for p in range(2) for j in range(7)]
    sched += [(p, j) for p in range(2, 5) for j in range(7)]
    items = [(p, j * 4 + u) for p, j in sched for u in range(4)]
    first_of = {p: min(k for k, it in enumerate(items) if it[0] == p) for p in range(5)}
    last_of = {p: max(k for k, it in enumerate(items) if it[0] == p) for p in range(5)}
    place(o_dma(2), O2[0], O2[1])
    place(o_dma(3), O3[0], O3[1])
    place(o_dma(4), O4[0], O4[1])
    for p in range(4):
        gap = SGAP if p < 3 else SGAPL
        for tt, grp in enumerate(send(slots[p])):
            at = (S0AT if p == 0 and S0AT else last_of[p] + 3) + tt * gap
            after[at].append(grp[:2])
            after[at + 1].append(grp[2:4])
            after[at + 2].append(grp[4:])
            if p == 3 and tt == 1:
                after[at + 2].append(lambda: stamp("slast"))
    place([x for i in (1, 2, 3) for x in gather(i, 1)], G4AT, G4AT + 6)
    place(gather(3, 0), G1AT, G1AT + 2)
    if G2AT:
        place(gather(2, 0), G2AT, G2AT + 2)
    after[C2AT].append(canary("c2", 0))
    if C3AT:
        after[C3AT].append(canary("c3", 0, vx[3]))
    epq = bA.sub(8, 4)
    after[EPAT].append(VM("epf", f"buffer_load_dwordx4 {epq}, {vepf}, {FL}, 0 offen sc1"))
    after[EPAT + 26].append([W(vm="epf")] + [f"v_xor_b32 {epq[e]}, {vtag}, {epq[e]}" for e in range(4)])
    after[EPAT + 27].append([f"v_or_b32 {epq[0]}, {epq[0]}, {epq[1]}", f"v_or3_b32 {epq[0]}, {epq[0]}, {epq[2]}, {epq[3]}", f"v_cmp_ne_u32 vcc, 0, {epq[0]}"])
    after[EPAT + 28].append(["s_cmp_eq_u64 vcc, 0", f"s_cselect_b32 {sEPD}, 0, 0x100000"])
    after[EPAT + 29].append(VM("eps", f"buffer_store_dword {vnew}, {vep}, {FL}, {sEPD} offen sc1"))

    def rd2(k):
        p, kk = items[k]
        rg, off = lds_ref(ob, ohome[p] + kk * 1024)
        if k == first_of[p]:
            A(W(vm=f"o{p}", lg="*" if p == 0 else (["W31"] if p == (2 if D7 else 1) else ())))
            A("s_barrier")
            stamp(f"p{p}")
        A(LG(f"F{k}", f"ds_read_b128 {frag[k % DEPTH]}, {rg} offset:{off}", (ohome[p] + kk * 1024, ohome[p] + kk * 1024 + 1024)))

    for k in range(DEPTH - 1):
        rd2(k)
    for k in range(NI):
        p, kk = items[k]
        kk += 4
        sl = slots[p]
        A(W(lg=[f"F{k}", f"W{kk}"]))
        A(f"{MF} {acc[0][sl]}, {Wf.sub(kk * 8, 4)}, {frag[k % DEPTH]}, {acc[0][sl]}")
        if k + DEPTH - 1 < NI:
            rd2(k + DEPTH - 1)
        A(f"{MF} {acc[1][sl]}, {Wf.sub(kk * 8 + 4, 4)}, {frag[k % DEPTH]}, {acc[1][sl]}")
        A(after[k])
    stamp("pdone")

    def need_mask(X_, gi):
        mask = sum(1 << (i - 1 + 4 * four) for i, four in groups[gi])
        X_(f"s_or_b32 s83, {sOWN4}, 15")
        X_(f"s_and_b32 s83, s83, {mask}")

    def cold_await(lab, gi):
        need_mask(C, gi)
        C.label(lab + "_w")
        C(txt(canary("cw", gi)))
        C("s_waitcnt vmcnt(0)")
        C(judge())
        C("s_and_b32 s3, vcc_lo, s83")
        C("s_cmp_eq_u32 s3, s83")
        C(f"s_cbranch_scc1 {lab}_go")
        bounded(lab + "_w", lab + "_go")

    def settle(lab, keys, gi):
        A.label(lab)
        four_too = any(f for _, f in keys)
        A([f"v_mov_b32 {xacc[0]}, 0", f"v_mov_b32 {xacc[1]}, 0"][:2 if four_too else 1])
        for i, four in keys:
            A(verify(i, four))
        A(f"v_and_b32 {xacc[0]}, 0xff, {xacc[0]}")
        if four_too:
            A(f"v_and_or_b32 {xacc[0]}, {xacc[1]}, {sOWN4}, {xacc[0]}")
        A(f"v_cmp_ne_u32 vcc, 0, {xacc[0]}")
        A("s_nop 1")
        A(f"s_cbranch_vccnz {lab}_slow")
        A.label(lab + "_done")
        C.label(lab + "_slow")
        if gi is not None:
            cold_await(lab, gi)
            C.label(lab + "_go")
        C(txt([gather(i, four) for i, four in keys]))
        C("s_waitcnt vmcnt(0)")
        bounded(lab, lab + "_done")

    def add_in(t_, quads2):
        for tt in range(2):
            for hf in range(2):
                d = acc[tt][t_].sub(2 * hf, 2)
                A(f"v_pk_add_f32 {d}, {d}, {quads2[tt].sub(2 * hf, 2)}")

    def emit_rows(t_, soff, stg):
        for tt in range(2):
            for hf in range(2):
                A(f"v_cvt_pk_bf16_f32 {stg[tt * 2 + hf]}, {acc[tt][t_][2 * hf]}, {acc[tt][t_][2 * hf + 1]}")
        for hf in range(2):
            A(f"v_permlane32_swap_b32 {stg[hf]}, {stg[2 + hf]}")
        for hf in range(2):
            A(f"v_permlane16_swap_b32 {stg[hf]}, {stg[2 + hf]}")
        A(VM("out", f"buffer_store_dwordx4 {stg}, {oa}, {OUT}, {soff} offen {OUTMOD}".rstrip()))

    need_mask(A, 0)
    if "ack" in ONLY:
        A(W(vm="snd"))
        stamp("ack")
    A(W(vm="c2"))
    stamp("c2r")
    A(judge())
    A("s_and_b32 s3, vcc_lo, s83")
    A("s_cmp_eq_u32 s3, s83")
    A("s_cbranch_scc0 L_a_slow")
    A.label("L_a_go")
    C.label("L_a_slow")
    if C3AT:
        for n_, (cur, nxt) in enumerate(((vx[3], vcan), (vcan, vx[3]))):
            C.label(f"L_a_p{n_}")
            C(txt(canary("cw", 0, nxt)))
            C("s_waitcnt vmcnt(1)")
            C(judge(cur))
            C("s_and_b32 s3, vcc_lo, s83")
            C("s_cmp_eq_u32 s3, s83")
            C("s_cbranch_scc1 L_a_go")
        bounded("L_a_p0", "L_a_go")
    else:
        cold_await("L_a", 0)
    stamp("cok")
    if STAMPS:
        A(f"v_writelane_b32 {vstamp}, {sSPIN}, 61")
    A([gather(i, f) for i, f in groups[0]])
    settle("L_c0", early, None)
    if STAMPS:
        A(f"v_writelane_b32 {vstamp}, {sSPIN}, 62")
    for i in (3, 2, 1):
        add_in(4, gB[i])
    add_in(0, gA[3])
    if G2AT:
        add_in(0, gA[2])
    emit_rows(4, sROW4, qb.sub(4, 4))
    settle("L_c1", groups[0], None)
    if not G2AT:
        add_in(0, gA[2])
    stamp("gok")
    if STAMPS:
        A(f"v_writelane_b32 {vstamp}, {sSPIN}, 63")
    add_in(0, gA[1])
    emit_rows(0, sROW0, qb.sub(0, 4))
    A(f"s_andn2_b32 s3, {sEPD}, {sEPW}")
    A("s_cmp_lg_u32 s3, 0")
    A("s_cbranch_scc1 L_ci_w")
    A.label("L_noep")
    C.label("L_ci_w")
    for e in range(4):
        C(f"buffer_load_dword {quads[0][e]}, {vepf}, {FL}, 0 offen offset:{4 * e} sc1")
    C("s_waitcnt vmcnt(0)")
    for e in range(4):
        C(f"v_xor_b32 {quads[0][e]}, {vtag}, {quads[0][e]}")
    C(f"v_or_b32 {t1}, {quads[0][0]}, {quads[0][1]}")
    C(f"v_or3_b32 {t1}, {t1}, {quads[0][2]}, {quads[0][3]}")
    C(f"v_cmp_ne_u32 vcc, 0, {t1}")
    C("s_nop 1")
    C("s_cbranch_vccz L_ci_done")
    bounded("L_ci_w", "L_ci_done")
    C.label("L_ci_done")
    C(f"buffer_store_dword {vnew}, {vep}, {FL}, 0 offen sc1")
    C("s_branch L_noep")
    if STAMPS:
        A("s_waitcnt vmcnt(0)")
        stamp("end")
        A(W(lg="*"))
        harvest()
        A("s_lshl_b32 s3, s2, 8")
        A(f"s_add_u32 s3, s3, {STAMP_OFF}")
        A(srd(KS, 18, "s3", 256))
        A(f"v_lshlrev_b32 {t0}, 2, v0")
        A(f"buffer_store_dword {vstamp}, {t0}, {KS}, 0 offen")
    A.label("L_end")
    A("s_endpgm")
    A.lines += C.lines
    A.label("L_last")
    A("s_endpgm")
    if NONOP:
        print("dropped", drop_m0_nops(A.lines), "m0 nops")
    n = autopad(A.lines)
    print("autopad inserted", n, "nops; vgpr", V.hi, "agpr", AG.hi)
    check(A.lines, NAME)
    for pr in A.lds_problems[:5]:
        print("LDS ORDER:", pr)
    print("lds order problems:", len(A.lds_problems))
    return A.text(), descriptor(NAME, V.hi, AG.hi, 100), names


ABOUT = """;
; Phase 1, workgroup = (batch b, head h): Q^T = wq_h^T x_b^T with x and wq streamed through a 3-slot LDS ring
;   S^T = K Q^T, softmax with the true row maximum, O^T = V^T P^T; O is written to d_ws in MFMA fragment order.
"""


def main():
    code, desc, names = build()
    out = HEADER
    out += "; @launch grid=(256,1,1) block=(256,1,1) lds=163840\n"
    if names:
        out += "; stamps: " + ",".join(names) + "\n"
    out += ABOUT
    out += '.amdgcn_target "amdgcn-amd-amdhsa--gfx950"\n.text\n' + code + desc
    open(sys.argv[1], "w").write(out)


main()
```

```python
import math
import struct
import sys

from asmlib import *

OPT = dict(kv.split("=") for kv in sys.argv[2:])
STAMPS = int(OPT.get("stamps", 0))
ONLY = [x for x in OPT.get("only", "").split(",") if x]
PK = int(OPT.get("pk", 1))
RPS = int(OPT.get("rps", 1))
P1 = int(OPT.get("p1", 5))
P2 = int(OPT.get("p2", 0))
DEPTH = int(OPT.get("depth", 10))
G2AT = int(OPT.get("g2", 0))
C3AT = int(OPT.get("c3", 139))
G4AT = int(OPT.get("g4", 104))
EPAT = int(OPT.get("epat", 56))
PFWO = int(OPT.get("pfwo", 0))
PFN = int(OPT.get("pfn", 4))
P1E = int(OPT.get("p1e", 1))
P2LO = int(OPT.get("p2lo", 50))
PM = int(OPT.get("pm", 3))
PMLO = int(OPT.get("pmlo", 30))
PFKV = OPT.get("pfkv", "")
PFAT = int(OPT.get("pfat", 2))
AHEAD = int(OPT.get("ahead", 6))
PW6 = int(OPT.get("pw6", 8))
W7AT = int(OPT.get("w7at", 10))
G1AT = int(OPT.get("g1", 110))
CAN = OPT.get("can", "atomic")
C1AT = int(OPT.get("c1", 0))
GT1 = int(OPT.get("gt1", 97))
GG1 = int(OPT.get("gg1", 105))
C2AT = int(OPT.get("c2", 136))
CPF = int(OPT.get("cpf", 1))
TLB = OPT.get("tlb", "")
CB = int(OPT.get("cb", 0))
GTB = int(OPT.get("gtb", 145))
OUTMOD = OPT.get("outmod", "").replace("+", " ")
SPEC = int(OPT.get("spec", 0))
NONOP = int(OPT.get("nonop", 1))
TAGMUL = 0x9E3779B1
NTKV = "nt" if int(OPT.get("ntkv", 1)) else ""
NB = int(OPT.get("nb", 8))
O3 = [int(x) for x in OPT.get("o3", "36,46").split(",")]
O4 = [int(x) for x in OPT.get("o4", "63,71").split(",")]
SGAP = int(OPT.get("sgap", 2))
SGAPL = int(OPT.get("sgapl", 2))
SPLITP = int(OPT.get("splitp", 1))
GSP = int(OPT.get("gsp", 8))
S0AT = int(OPT.get("s0at", 0))
O2 = [int(x) for x in OPT.get("o2", "12,26").split(",")]
W7F = int(OPT.get("w7f", 0))
PP = int(OPT.get("pp", 2))
N45 = int(OPT.get("n45", 12))
SW = [[0, 1, 2, 3, 4], [1, 1, 4, 4, 4], [0, 2, 2, 4, 4]][int(OPT.get("sw", 2))]
ORD = int(OPT.get("ord", 0))
D7 = int(OPT.get("d7", 0))
QAB = OPT.get("qab", "")
DPOS = OPT.get("dpos", "")
WFIRST = int(OPT.get("wfirst", 0))
UNI = [int(x) for x in OPT.get("uni", "0,39").split(",") if x]
SPLIT7 = int(OPT.get("split7", 0))
P0 = int(OPT.get("p0", 0))
VE = int(OPT.get("ve", 0))
PAT = int(OPT.get("pat", 0))
PATS = {1: ([2, 1, 2, 1, 0, 1, 1, 0, 1, 0], (4, 7, 9)), 2: ([2, 1, 2, 1, 0, 1, 1, 1, 0, 0], (4, 8, 9)), 3: ([2, 1, 2, 2, 1, 0, 1, 0, 0, 0], (5, 7, 9)),
        4: ([1, 0, 2, 1, 0, 1, 2, 1, 0, 1], (1, 4, 8)), 5: ([2, 2, 2, 2, 1, 0, 0, 0, 0, 0], (5, 7, 9))}
WSOFF = int(OPT.get("wsoff", 0))
WG1 = int(OPT.get("wg1", 1))
WGRP = {1: [0, 2, 2, 4, 4], 2: [1, 1, 4, 4, 4], 3: [4, 4, 4, 4, 4], 4: [0, 1, 3, 3, 4]}
ABL = OPT.get("abl", "")
WG2 = int(OPT.get("wg2", 1))
SPIN = 64 if ABL else 1 << 20

NAME = "standalone__mha_block_cached__near_ridge_kernel"
SLOT = 53248
KBASE = 2 * SLOT
VBASE = KBASE + 20480
QS = 32768
U = [i * 32768 for i in range(5)]
F1OFF = 6 << 20
F2REL = 32768
POFF = 8 << 20
PSIZE = 16 << 20
STAMP_OFF = 64 << 20
MF = "v_mfma_f32_16x16x32_bf16"
MF16 = "v_mfma_f32_16x16x16_bf16"

sW, sB, sH, sROT1 = "s20", "s21", "s22", "s23"
X, WQ, KS, VS, OW, WO, OR, FL, DBG, PT, OUT = (f"s[{n}:{n + 3}]" for n in range(24, 68, 4))
sW1K, sXCD, sSO0, sSO1, sKQ, sNT, sC, sHH, sSPIN = "s68", "s69", "s70", "s71", "s77", "s78", "s80", "s81", "s82"
S4K = [f"s{72 + j}" for j in range(5)]
sGRP = "s86"
sOST = [f"s{56 + i}" for i in range(4)] + ["s85"]
sSEND = {i: f"s{87 + i}" for i in range(1, 5)}
sRECV = {i: f"s{91 + i}" for i in range(1, 4)}
sRECV4 = {1: "s24", 2: "s25", 3: "s26"}
sROW0, sROW4, sOWN4 = "s27", "s28", "s29"
sSEL = [f"s{32 + i}" for i in range(4)]
sTAG = [f"s{36 + i}" for i in range(4)]
sEFF = {(i, f): f"s{40 + 3 * f + i - 1}" for i in range(1, 4) for f in range(2)}
sEPD, sBP, sEPW = "s31", "s79", "s40"


def f32bits(x):
    return struct.unpack("<I", struct.pack("<f", x))[0]


def srd(d, lo, off, size):
    n = int(d[2:d.index(":")])
    if off is None:
        o = [f"s_mov_b32 s{n}, s{lo}", f"s_and_b32 s{n + 1}, s{lo + 1}, 0xffff"]
    else:
        o = [f"s_add_u32 s{n}, s{lo}, {off}", f"s_addc_u32 s{n + 1}, s{lo + 1}, 0", f"s_and_b32 s{n + 1}, s{n + 1}, 0xffff"]
    return o + [f"s_mov_b32 s{n + 2}, {size}", f"s_mov_b32 s{n + 3}, 0x20000"]


def lds_ref(regsets, const):
    k = const // 65536
    return regsets[k], const - k * 65536


OWNER = {}


def owned(groups, reg, pre, tag):
    def claim():
        OWNER[reg] = tag

    def verify():
        assert OWNER.get(reg) == tag, f"{reg} holds {OWNER.get(reg)}, needed {tag}"

    groups = [[verify] + g for g in groups]
    groups[0] = [claim] + pre + groups[0]
    return groups


def head_of(i, d="s87"):
    if i == 0:
        o = [f"s_add_u32 {d}, {sNT}, {sB}"]
    elif i == 1:
        o = [f"s_cmp_eq_u32 {sB}, 0", f"s_addc_u32 {d}, {sNT}, 0"]
    else:
        o = [f"s_cmp_le_u32 {sBP}, {i - 1}", f"s_addc_u32 {d}, {sNT}, {i - 1}"]
    return o + [f"s_and_b32 {d}, {d}, 7"]


def dma(tag, srd_regs, vregs, soff, base, mod=""):
    out = []
    for j, vr in enumerate(vregs):
        so = soff[j] if isinstance(soff, list) else soff
        out.append([f"s_add_u32 m0, {sW1K}, {base + j * 4096}", "s_nop 0",
                    VM(tag, f"buffer_load_dwordx4 {vr}, {srd_regs}, {so} offen {mod} lds".replace("  ", " "), (base + j * 4096, base + j * 4096 + 4096))])
    return out


def build():
    A = Asm()
    V = Alloc("v", 1, 256)
    AG = Alloc("a", 0, 256)
    vstamp = V.get() if STAMPS else None
    names = []
    st = {"pend": None, "flip": 0}

    def harvest():
        if st["pend"] is not None:
            pair, idx = st["pend"]
            if "smem" in A.lgq:
                A(W(lg="*"))
            A(f"v_writelane_b32 {vstamp}, s{pair}, {idx}")
            st["pend"] = None

    def stamp(nm):
        if not STAMPS or (STAMPS >= 2 and nm not in ["start", "end"] + ONLY):
            return
        harvest()
        pair = 96 + 2 * st["flip"]
        st["flip"] ^= 1
        cyc = STAMPS == 3 and nm in ONLY
        A(SM(f"{'s_memtime' if cyc else 's_memrealtime'} s[{pair}:{pair + 1}]"))
        st["pend"] = (pair, len(names))
        names.append(nm + ("_c" if cyc else ""))

    C = Asm()

    def txt(items):
        return [o.text if isinstance(o, Op) else o for o in flat(items)]

    def bounded(target, give_up):
        C(f"s_sub_u32 {sSPIN}, {sSPIN}, 1")
        C(f"s_cmp_eq_u32 {sSPIN}, 0")
        C(f"s_cbranch_scc0 {target}")
        C(f"s_mov_b32 {sSPIN}, 1")
        C(f"s_branch {give_up}")

    A(f".globl {NAME}")
    A(".p2align 8")
    A(f".type {NAME},@function")
    A.label(NAME)
    A("s_cmp_ge_u32 s2, 256")
    A("s_cbranch_scc1 L_end")
    A(SM("s_load_dwordx16 s[4:19], s[0:1], 0"))
    if STAMPS:
        A(f"v_mov_b32 {vstamp}, 0")
    stamp("start")

    lane, q, g, r, c, r4, l16 = (V.get() for _ in range(7))
    tq = V.get(4, 2)
    t0, t1, t2, t3 = (tq[i] for i in range(4))
    vcp = V.get()
    if CPF:
        A.comment("the workgroups of one die together touch every 128-byte line of this kernel's code once")
        A("s_getpc_b64 s[84:85]")
        A.label("L_pc")
        A("s_lshr_b32 s3, s2, 3")
        if CPF == 1:
            A(f"v_lshrrev_b32 {t2}, 5, v0")
            A(f"v_lshl_add_u32 {t2}, s3, 3, {t2}")
        else:
            A(f"v_mov_b32 {t2}, v0")
        A(f"v_lshlrev_b32 {t2}, 7, {t2}")
        A(f"v_min_u32 {t2}, L_last-L_pc, {t2}")
        A(f"v_mov_b32 {t1}, s85")
        A(f"v_add_co_u32 {t0}, vcc, s84, {t2}")
        A(f"v_addc_co_u32 {t1}, vcc, 0, {t1}, vcc")
        A(VM("cpf", f"global_load_dword {vcp}, {tq.sub(0, 2)}, off"))
    A(f"v_lshrrev_b32 {r4}, 6, v0")
    A(f"v_and_b32 {lane}, 63, v0")
    A(f"v_readfirstlane_b32 {sW}, {r4}")
    A(f"v_and_b32 {q}, 15, v0")
    A(f"v_lshrrev_b32 {g}, 4, {lane}")
    A(f"v_lshrrev_b32 {r4}, 4, v0")
    A(f"s_and_b32 {sXCD}, s2, 7")
    A(f"s_lshr_b32 {sB}, s2, 5")
    A(f"s_bfe_u32 {sHH}, s2, 0x20003")
    A(f"s_lshl_b32 s3, {sXCD}, 2")
    A(f"s_add_u32 {sH}, {sHH}, s3")
    A(f"s_add_u32 {sROT1}, {sXCD}, {sB}")
    A(f"s_lshl_b32 {sW1K}, {sW}, 10")
    A(f"s_mul_i32 s84, {sB}, 163840")
    A(f"s_lshl_b32 s85, {sH}, 8")
    vx = [V.get() for _ in range(5)]
    vq = [V.get() for _ in range(8)]
    vk, vv = V.get(), V.get()
    vf1, vep, vtag = V.get(), V.get(), V.get()
    A(f"v_xor_b32 {t0}, {q}, {r4}")
    A(f"v_lshlrev_b32 {t0}, 4, {t0}")
    A(f"v_lshl_add_u32 {vx[0]}, {r4}, 11, {t0}")
    A(f"v_lshl_add_u32 {vk}, {r4}, 8, {t0}")
    for j in range(1, 5):
        A(f"v_add_u32 {vx[j]}, {j * 32768}, {vx[0]}")
    A(f"v_lshrrev_b32 {t1}, 3, {r4}")
    A(f"v_lshl_or_b32 {t1}, {t1}, 2, {g}")
    A(f"v_lshlrev_b32 {t1}, 1, {t1}")
    A(f"v_xor_b32 {t1}, {q}, {t1}")
    A(f"v_lshlrev_b32 {t1}, 4, {t1}")
    A(f"v_lshl_add_u32 {vq[0]}, {r4}, 13, {t1}")
    for j in range(1, 8):
        A(f"v_add_u32 {vq[j]}, {j * 16 * 8192}, {vq[0]}")
    A(W(lg="*"))
    stamp("karg")
    if WSOFF:
        A(f"s_add_u32 s18, s18, {WSOFF << 20}")
        A("s_addc_u32 s19, s19, 0")
    A(srd(X, 4, "s84", 163840))
    A(srd(WQ, 10, "s85", 8388608 - 7936))

    def dma_stage(s_):
        slot = (s_ % 3) * SLOT
        pre = [f"s_add_u32 s3, {sROT1}, {s_}", "s_and_b32 s3, s3, 7", f"s_lshl_b32 {sSO0}, s3, 8", f"s_lshl_b32 {sSO1}, s3, 20"]
        gx = dma(f"st{s_}", X, vx, sSO0, slot)
        gq = dma(f"st{s_}", WQ, vq, sSO1, slot + 20480)
        if s_ == 7 and SPLIT7:
            for grp in gq[2 * SPLIT7:]:
                grp[-1].tag = "st7b"
        if WFIRST:
            gq[0] = pre + gq[0]
            return gq + gx
        gx[0] = pre + gx[0]
        return gx + gq

    first = dma_stage(0)
    A(first[:10])

    A(srd(FL, 18, F1OFF, 65536))
    A("s_lshl_b32 s3, s2, 7")
    A(f"s_lshl_b32 s83, {sW}, 2")
    A("s_add_u32 s3, s3, s83")
    A(f"v_lshlrev_b32 {vf1}, 20, {lane}")
    A(f"v_add_u32 {vf1}, s3, {vf1}")
    A(f"s_lshl_b32 s3, {sB}, 7")
    A(f"s_add_u32 s3, s3, {F2REL}")
    A(f"v_mov_b32 {vep}, s3")
    A(f"v_bfe_u32 {r}, v0, 2, 2")
    A(f"v_and_b32 {c}, 3, v0")
    A(f"v_lshlrev_b32 {l16}, 4, {lane}")
    A(f"s_lshr_b32 {sKQ}, {sXCD}, 1")
    A(f"s_and_b32 s3, {sXCD}, 1")
    A("s_lshl_b32 s3, s3, 2")
    A(f"s_add_u32 {sNT}, s3, {sHH}")
    A(f"s_lshl_b32 s3, {sB}, 5")
    A(f"s_add_u32 s83, s3, {sH}")
    A("s_mul_i32 s83, s83, 20480")
    A(srd(KS, 6, "s83", 20480))
    A(srd(VS, 8, "s83", 20480))
    A(srd(OW, 18, "s83", 20480))
    A(f"s_lshl_b32 s83, {sKQ}, 3")
    A("s_add_u32 s83, s83, s3")
    A("s_mul_i32 s83, s83, 20480")
    A(srd(OR, 18, "s83", 8 * 20480))
    A(f"s_lshl_b32 s83, {sKQ}, 21")
    A(f"s_lshl_b32 s3, {sNT}, 8")
    A("s_add_u32 s83, s83, s3")
    A(srd(WO, 12, "s83", 1024 * 2048 - 1792))
    A("s_add_u32 s83, s84, s3")
    A(f"s_lshl_b32 s3, {sW}, 6")
    A("s_add_u32 s83, s83, s3")
    A(srd(OUT, 14, "s83", 163840 - 1984))
    A(srd(PT, 18, POFF, PSIZE))
    for j in range(5):
        A(f"s_mov_b32 {S4K[j]}, {j * 4096}")
    A(f"s_mov_b32 {sC}, {f32bits(math.log2(math.e) / math.sqrt(128.0)):#x}")
    A(f"s_mov_b32 {sSPIN}, {SPIN}")
    A(f"s_max_u32 {sBP}, {sB}, 1")
    vw = [V.get() for _ in range(8)]
    A(f"v_and_b32 {t1}, 7, {r4}")
    A(f"v_lshlrev_b32 {t1}, 1, {t1}")
    A(f"v_xor_b32 {t1}, {q}, {t1}")
    A(f"v_lshlrev_b32 {t1}, 4, {t1}")
    A(f"v_lshl_add_u32 {vv}, {r4}, 8, {t1}")
    A(f"v_lshl_add_u32 {vw[0]}, {r4}, 11, {t1}")
    for j in range(1, 8):
        A(f"v_add_u32 {vw[j]}, {j * 16 * 2048}, {vw[0]}")
    xa = [[V.get() for _ in range(3)] for _ in range(4)]
    wa = [[V.get() for _ in range(3)] for _ in range(2)]
    for s4 in range(4):
        A(f"v_or_b32 {t0}, {4 * s4}, {g}")
        A(f"v_xor_b32 {t0}, {t0}, {q}")
        A(f"v_lshlrev_b32 {t0}, 4, {t0}")
        A(f"v_lshl_add_u32 {xa[s4][0]}, {q}, 8, {t0}")
        A(f"v_add_u32 {xa[s4][1]}, 0x10000, {xa[s4][0]}")
        A(f"v_add_u32 {xa[s4][2]}, 0x20000, {xa[s4][0]}")
    A(f"v_and_b32 {t0}, 1, {g}")
    A(f"v_lshl_or_b32 {t0}, {t0}, 2, {r}")
    A(f"v_lshl_add_u32 {t1}, {g}, 3, {r}")
    A(f"v_lshlrev_b32 {t1}, 8, {t1}")
    A(f"v_lshl_add_u32 {t1}, {c}, 3, {t1}")
    A(f"s_lshl_b32 s3, {sW}, 1")
    for tt in range(2):
        A(f"s_add_u32 s83, s3, {tt}")
        A(f"v_xor_b32 {t2}, s83, {t0}")
        A(f"v_lshl_add_u32 {wa[tt][0]}, {t2}, 5, {t1}")
        A(f"v_add_u32 {wa[tt][1]}, 0x10000, {wa[tt][0]}")
        A(f"v_add_u32 {wa[tt][2]}, 0x20000, {wa[tt][0]}")
    ka = [V.get() for _ in range(8)]
    va = [V.get() for _ in range(8)]
    qown, qwr = V.get(), V.get()
    A(f"v_lshrrev_b32 {t0}, 1, {g}")
    A(f"v_xor_b32 {t0}, {t0}, {q}")
    A(f"v_lshlrev_b32 {t0}, 4, {t0}")
    A(f"v_lshl_add_u32 {t0}, {q}, 8, {t0}")
    A(f"v_and_b32 {t1}, 1, {g}")
    A(f"v_lshl_add_u32 {t0}, {t1}, 3, {t0}")
    A(f"v_add_u32 {ka[0]}, {KBASE}, {t0}")
    for i in range(1, 8):
        A(f"v_xor_b32 {ka[i]}, {32 * i}, {ka[0]}")
    trb = V.get()
    A(f"v_lshl_add_u32 {t0}, {g}, 2, {r}")
    A(f"v_and_b32 {t1}, 7, {t0}")
    A(f"v_lshlrev_b32 {t1}, 5, {t1}")
    A(f"v_lshl_add_u32 {t0}, {t0}, 8, {t1}")
    A(f"v_lshl_add_u32 {trb}, {c}, 3, {t0}")
    A(f"v_add_u32 {t0}, {VBASE}, {trb}")
    for i in range(8):
        A(f"s_lshl_b32 s3, {sW}, 1")
        A(f"s_add_u32 s3, s3, {i}")
        A("s_and_b32 s3, s3, 7")
        A("s_lshl_b32 s3, s3, 5")
        A(f"v_xor_b32 {va[i]}, s3, {t0}")
    A(f"v_add_u32 {qwr}, {sW1K}, {l16}")
    A(f"s_lshl_b32 s3, {sW}, 12")
    A(f"v_add_u32 {qown}, s3, {l16}")
    A(f"s_lshl_b32 s3, {sB}, 5")
    vp1, vpf = V.get(), V.get()
    A(f"v_bfe_u32 {t1}, v0, 4, 1")
    A(f"v_lshl_add_u32 {t0}, {r}, 3, {t1}")
    A(f"s_lshl_b32 s83, {sKQ}, 1")
    A("s_add_u32 s83, s83, s3")
    A(f"v_add_u32 {t0}, s83, {t0}")
    A(f"v_lshlrev_b32 {t0}, 7, {t0}")
    A(f"v_lshl_add_u32 {vp1}, {c}, 2, {t0}")
    A(f"s_and_b32 {sGRP}, s2, 0xf9")
    A(f"s_lshl_b32 s87, {sKQ}, 2")
    A(f"s_add_u32 s87, s87, {sW}")
    for i in range(1, 5):
        A(f"s_add_u32 s3, {sKQ}, {i}" if i < 4 else f"s_mov_b32 s3, {sW}")
        A("s_and_b32 s3, s3, 3")
        A("s_lshl_b32 s3, s3, 1")
        A(f"s_add_u32 s3, s3, {sGRP}")
        A("s_lshl_b32 s3, s3, 4")
        A("s_add_u32 s3, s3, s87")
        A(f"s_lshl_b32 {sSEND[i]}, s3, 12")
    for i in range(1, 4):
        A(f"s_add_u32 s3, {sKQ}, {i}")
        A("s_and_b32 s3, s3, 3")
        A("s_lshl_b32 s83, s2, 2")
        A("s_add_u32 s3, s3, s83")
        A("s_lshl_b32 s3, s3, 2")
        A(f"s_add_u32 s3, s3, {sW}")
        A(f"s_lshl_b32 {sRECV[i]}, s3, 12")
    if PFWO:
        vpw, vdump = V.get(), V.get()
        A(f"v_lshrrev_b32 {vpw}, 1, v0")
        A(f"v_lshlrev_b32 {vpw}, 11, {vpw}")
        A(f"v_and_b32 {t0}, 1, v0")
        A(f"v_lshl_add_u32 {vpw}, {t0}, 7, {vpw}")
        A(head_of(0, "s84") + ["s_lshl_b32 s84, s84, 18", f"s_and_b32 s85, {sB}, {PFN - 1}"])
    vown = V.get()
    A(f"v_add_u32 {vown}, {U[3]}, {l16}")
    vow = [V.get() for _ in range(5)]
    for p in range(5):
        if p < 4:
            A([f"s_add_u32 s3, {sW}, {p}", "s_and_b32 s3, s3, 3", "s_mul_i32 s3, s3, 5", f"s_add_u32 s3, s3, {sW}"])
        else:
            A([f"s_mul_i32 s3, {sW}, 5", "s_add_u32 s3, s3, 4"])
        A(f"s_lshl_b32 {sOST[p]}, s3, 10")
        A(f"v_add_u32 {vow[p]}, {sOST[p]}, {vown}")
    stamp("setup")
    A(first[10:])

    A(VM("ep", f"buffer_load_dword {vtag}, {vep}, {FL}, 0 offen sc1"))
    A(dma_stage(1))
    stamp("iss1")

    accr = V.get(40, 4)
    acc = [[accr.sub((tt * 5 + t) * 4, 4) for t in range(5)] for tt in range(2)]
    bB = V.get(40, 4)
    bufB = [[bB.sub((p * 5 + t) * 4, 4) for t in range(5)] for p in range(2)]
    bA = V.get(20, 4)
    bufA = [[bA.sub((p * 2 + tt) * 4, 4) for tt in range(2)] for p in range(2)]
    Wf = AG.get(256, 4)
    Kf, Vf = Wf.sub(96, 80), Wf.sub(176, 80)
    sWO = "s95"

    def wo_dma(j, ubase):
        return owned(dma(f"wo{j}", WO, vw, sWO, ubase), sWO, head_of(j) + [f"s_lshl_b32 {sWO}, s87, 18"], f"wo{j}")

    def mfmas1(s_, i):
        buf = i & 1
        out = []
        for t in range(5):
            for tt in range(2):
                cc = "0" if (s_ == 0 and i == 0) else acc[tt][t]
                tags = [f"A{s_}_{i}_{tt}", f"B{s_}_{i}_{t}"]
                if WG1:
                    tags = [f"A{s_}_{i}_1", f"B{s_}_{i}_{WGRP[WG1][t]}"]
                out.append([W(lg=tags), f"{MF} {acc[tt][t]}, {bufA[buf][tt]}, {bufB[buf][t]}, {cc}"])
        return out

    def reads1(s_, i):
        ra, rb = [], []
        for tt in range(2):
            for hf in range(2):
                rg, off = lds_ref(wa[tt], (s_ % 3) * SLOT + 20480 + i * 8192 + hf * 1024)
                ra.append(LG(f"A{s_}_{i}_{tt}", f"ds_read_b64_tr_b16 {bufA[i & 1][tt].sub(2 * hf, 2)}, {rg} offset:{off}",
                             ((s_ % 3) * SLOT + 20480 + i * 8192, (s_ % 3) * SLOT + 20480 + (i + 1) * 8192)))
        for t in range(5):
            rg, off = lds_ref(xa[i], (s_ % 3) * SLOT + t * 4096)
            rb.append(LG(f"B{s_}_{i}_{t}", f"ds_read_b128 {bufB[i & 1][t]}, {rg} offset:{off}",
                         ((s_ % 3) * SLOT + t * 4096, (s_ % 3) * SLOT + (t + 1) * 4096)))
        return ra[:2] + rb[:1] + ra[2:] + rb[1:]

    extra1 = [dma_stage(s_ + 2) for s_ in range(6)] + [dma("k", KS, [vk] * 5, S4K, KBASE, NTKV), dma("v", VS, [vv] * 5, S4K, VBASE, NTKV)]
    wstream = wo_dma(0, U[0]) + wo_dma(1, U[2]) + wo_dma(2, U[1]) + wo_dma(3, U[4])
    if PFWO:
        for n_ in range(PFN):
            grp = [f"s_cmp_eq_u32 s85, {n_}", "s_cselect_b32 s83, s84, 0x400000", VM("pf", f"buffer_load_dword {vdump}, {vpw}, {WO}, s83 offen")]
            extra1[PFWO + n_] = extra1[PFWO + n_] + [grp]
    for s_ in range(8):
        A.comment(f"q-projection stage {s_}")
        if not ("l" in QAB and 2 < s_ < 7):
            A(W(vm=f"st{s_}", lg="*"))
        if not ("b" in QAB and 2 < s_ < 7):
            A("s_barrier")
        stamp(f"s{s_}")
        ex = extra1[s_]
        n = len(ex)
        parts = [ex[(n * i) // 4:(n * (i + 1)) // 4] for i in range(4)]
        if DPOS and n >= 13:
            c_ = [int(x) for x in DPOS]
            parts = [ex[sum(c_[:i]):sum(c_[:i + 1])] for i in range(3)] + [ex[sum(c_[:3]):]]
        if s_ == 6:
            parts = [ex[:3], ex[3:], [], []]
            if VE:
                vd = extra1[7]
                parts = [ex[:3], ex[3:], vd[:VE // 2], vd[VE // 2:VE]]
        if s_ == 7 and (P0 or VE):
            w0 = wstream[:P0]
            allx = ex[VE:] + w0
            m_ = len(allx)
            parts = [allx[(m_ * i) // 4:(m_ * (i + 1)) // 4] for i in range(4)]
        if PAT and 1 <= s_ <= 5:
            rslots, dslots = PATS[PAT]
            todo = list(ex)
            A(todo.pop(0))
            for i in range(4):
                mm_ = mfmas1(s_, i - 1) if i else mfmas1(s_ - 1, 3)
                rd = reads1(s_, i)
                for gp, m_ in enumerate(mm_):
                    A(m_)
                    for _ in range(rslots[gp]):
                        A(rd.pop(0))
                    if gp + 1 in dslots:
                        A(todo[0][:-2])
                    if gp in dslots:
                        A(todo.pop(0)[-1])
                assert not rd
            assert not todo
            continue
        if UNI and 1 <= s_ <= 5:
            seq = []
            for i in range(4):
                seq += interleave(mfmas1(s_, i - 1) if i else mfmas1(s_ - 1, 3), reads1(s_, i), start=0, per=RPS)
            mpos = [k for k, it in enumerate(seq) if isinstance(it, list)]
            lo_, hi_ = UNI[0], UNI[1]
            at = {}
            for j, grp in enumerate(ex):
                m_ = lo_ + (j * (hi_ - lo_) + (n - 1) // 2) // (n - 1)
                at.setdefault(mpos[m_] if m_ >= 0 else -1, []).append(grp)
            A(at.get(-1, []))
            for k, it in enumerate(seq):
                A(it)
                A(at.get(k, []))
            continue
        for i in range(4):
            if s_ == 7 and SPLIT7 and i == SPLIT7:
                A(W(vm="st7b"))
                A("s_barrier")
            rd = reads1(s_, i)
            if "x" in QAB:
                rd = [o for o in rd if "tr" in o.text]
            if "a" in QAB:
                rd = [o for o in rd if "tr" not in o.text]
            if s_ == 0 and i == 0:
                seq = rd + parts[0]
            else:
                m = mfmas1(s_, i - 1) if i else mfmas1(s_ - 1, 3)
                seq = spread(interleave(m, rd, start=0, per=RPS), parts[i], lo=2)
            A(seq)
    qb = V.get(20, 4)

    def qpack(t_):
        o = [f"v_cvt_pk_bf16_f32 {qb[t_ * 4 + tt * 2 + hf]}, {acc[tt][t_][2 * hf]}, {acc[tt][t_][2 * hf + 1]}" for tt in range(2) for hf in range(2)]
        return o + [LG("qw", f"ds_write_b128 {qwr}, {qb.sub(t_ * 4, 4)} offset:{QS + t_ * 4096}", (QS + t_ * 4096, QS + t_ * 4096 + 4096))]

    vnew = vk
    lastm = mfmas1(7, 3)
    A(lastm[:4])
    A([lastm[4], f"v_add_u32 {vnew}, 1, {vtag}", f"s_mov_b32 s3, {TAGMUL:#x}", lastm[5], f"v_mul_lo_u32 {vtag}, {vnew}, s3"])
    A(interleave(lastm[6:], qpack(0) + qpack(1)[:3], per=2))
    stamp("qdone")
    A(qpack(1)[3:] + qpack(2) + qpack(3) + qpack(4))
    A(W(vm="k", lg="*"))
    A("s_barrier")
    stamp("bq")

    Qf = [[bB.sub((T * 4 + u) * 4, 4) for u in range(4)] for T in range(2)]
    sr = V.get(40, 4)
    sacc = [[sr.sub((T * 5 + kt) * 4, 4) for kt in range(5)] for T in range(2)]
    P = [bA.sub(0, 10), bA.sub(10, 10)]
    sums = [bB.sub(32, 4), bB.sub(36, 4)]
    ones = qb.sub(16, 4)
    tmpr = V.get(4, 2)
    rcr = V.get(2, 2)
    oacc = [accr.sub(i * 4, 4) for i in range(10)]

    def rQ(T, u):
        if T == 0:
            return LG(f"Q0{u}", f"ds_read_b128 {Qf[0][u]}, {qown} offset:{QS + u * 1024}", (QS, QS + 16384))
        return LG(f"Q1{u}", f"ds_read_b128 {Qf[1][u]}, {l16} offset:{QS + 16384 + u * 1024}", (QS + 16384, QS + 20480))

    def rK(u):
        return [LG(f"K{kt}{u}", f"ds_read_b64 {Kf.sub((kt * 4 + u) * 4 + 2 * hf, 2)}, {ka[2 * u + hf]} offset:{kt * 4096}", (KBASE, KBASE + 20480))
                for kt in range(5) for hf in range(2)]

    def mS(T, u):
        return [[W(lg=[f"K{SW[kt]}{u}", f"Q{T}{u}"]),
                 f"{MF} {sacc[T][kt]}, {Kf.sub((kt * 4 + u) * 4, 4)}, {Qf[T][u]}, {'0' if u == 0 else sacc[T][kt]}"] for kt in range(5)]

    rV = [LG(f"V{i}{ks}", f"ds_read_b64_tr_b16 {Vf.sub(i * 10 + kt * 2, 2)}, {va[i]} offset:{kt * 4096}", (VBASE, VBASE + 20480))
          for ks in range(3) for i in range(8) for kt in range(2 * ks, min(2 * ks + 2, 5))]

    def softmax(T):
        vals = [sacc[T][kt][r_] for kt in range(5) for r_ in range(4)]
        m, t, nm = tmpr[0], tmpr[1], tmpr[2]
        o = [f"v_max3_f32 {m}, {vals[0]}, {vals[1]}, {vals[2]}", f"v_max3_f32 {t}, {vals[3]}, {vals[4]}, {vals[5]}"]
        for i in range(6, 18, 4):
            o.append(f"v_max3_f32 {m}, {m}, {vals[i]}, {vals[i + 1]}")
            o.append(f"v_max3_f32 {t}, {t}, {vals[i + 2]}, {vals[i + 3]}")
        o.append(f"v_max3_f32 {m}, {m}, {vals[18]}, {vals[19]}")
        o.append(f"v_max_f32 {m}, {m}, {t}")
        for sw in ("v_permlane32_swap_b32", "v_permlane16_swap_b32"):
            o += [f"v_mov_b32 {t}, {m}", f"{sw} {m}, {t}", f"v_max_f32 {m}, {m}, {t}"]
        o.append(f"v_mul_f32 {nm}, {sC}, {m}")
        sc = int(sC[1:])
        for i in range(0, 20, 2):
            if PK:
                pr = R("v", vals[i].n, 2)
                o.append(f"v_pk_fma_f32 {pr}, {pr}, s[{sc}:{sc + 1}], {tmpr.sub(2, 2)} op_sel_hi:[1,0,0] neg_lo:[0,0,1] neg_hi:[0,0,1]")
            else:
                o.append(f"v_fma_f32 {vals[i]}, {vals[i]}, {sC}, -{nm}")
                o.append(f"v_fma_f32 {vals[i + 1]}, {vals[i + 1]}, {sC}, -{nm}")
        for i in range(10):
            o += [f"v_exp_f32 {vals[2 * i]}, {vals[2 * i]}", f"v_exp_f32 {vals[2 * i + 1]}, {vals[2 * i + 1]}"]
            if i:
                o.append(f"v_cvt_pk_bf16_f32 {P[T][i - 1]}, {vals[2 * i - 2]}, {vals[2 * i - 1]}")
        o.append(f"v_cvt_pk_bf16_f32 {P[T][9]}, {vals[18]}, {vals[19]}")
        return o

    def mPV(T, slots):
        out = []
        for ks in range(3):
            op, n = (MF, 4) if ks < 2 else (MF16, 2)
            out.append(f"{op} {sums[T]}, {ones.sub(0, n)}, {P[T].sub(ks * 4, n)}, {'0' if ks == 0 else sums[T]}")
            for i, o in slots:
                out.append([W(lg=f"V{i}{ks}"), f"{op} {o}, {Vf.sub(i * 10 + ks * 4, n)}, {P[T].sub(ks * 4, n)}, {'0' if ks == 0 else o}"])
        return out

    def finish(T, pairs, stage):
        rc = rcr
        out = [f"v_rcp_f32 {rc[0]}, {sums[T][0]}"]
        for p, o0, o1 in pairs:
            ob = stage.sub(p * 4, 4)
            for o in (o0, o1):
                for hf in range(2):
                    if PK:
                        out.append(f"v_pk_mul_f32 {o.sub(2 * hf, 2)}, {o.sub(2 * hf, 2)}, {rc} op_sel_hi:[1,0]")
                    else:
                        out += [f"v_mul_f32 {o[2 * hf + e]}, {o[2 * hf + e]}, {rc[0]}" for e in range(2)]
            for hh, o in enumerate((o0, o1)):
                for hf in range(2):
                    out.append(f"v_cvt_pk_bf16_f32 {ob[hh * 2 + hf]}, {o[2 * hf]}, {o[2 * hf + 1]}")
            out.append(VM("ost", f"buffer_store_dwordx4 {ob}, {l16}, {OW}, {sOST[p]} offen sc1"))
            out.append(LG("own", f"ds_write_b128 {vow[p]}, {ob}", (U[3] + 8192 + p, U[3] + 8192 + p + 1)))
        return out

    assert P1 + PM <= 16 and P1 + PM + P2 <= 24
    A([rQ(0, 0)] + rK(0))
    for i in range(4):
        A(f"v_mov_b32 {ones[i]}, 0x3f803f80")
    if P1E:
        A(wstream[P0:P1])
    for u in range(4):
        nxt = ([rQ(0, u + 1)] + rK(u + 1)) if u < 3 else [rQ(1, k) for k in range(4)]
        A(interleave(mS(0, u), nxt, per=2))
    m1 = [x for u in range(4) for x in mS(1, u)]
    sm0 = softmax(0)
    A(m1[:4])
    segb = spread(sm0, m1[4:], lo=0, hi=len(sm0) - 12)
    A(spread(segb, wstream[P1:P1 + PM], lo=PMLO) if P1E else spread(segb, wstream[:P1], lo=4))
    A(W(vm="v", lg="*"))
    A("s_barrier")
    stamp("bv")
    sm1 = softmax(1)
    pv1 = mPV(1, [(0, oacc[8]), (1, oacc[9])])
    w2 = wstream[P1 + PM:P1 + PM + P2]
    if ORD == 0:
        pv0 = mPV(0, [(i, oacc[i]) for i in range(8)])
        A(rV[:8])
        A(spread(interleave(spread(sm1, pv0, lo=4), rV[8:], start=0, per=1), w2, lo=P2LO, hi=min(110, P2LO + 12 * max(P2, 1))))
        stamp("b2")
        fin0 = finish(0, [(p, oacc[2 * p], oacc[2 * p + 1]) for p in range(4)], qb)
        A(spread(fin0, pv1, lo=0, hi=30))
    else:
        A.comment("PV of the own tile pair by pair; each pair is normalised and stored beside the next pairs' MFMAs")
        rd = {(i, ks): [x for x in rV if x.tag == f"V{i}{ks}"] for i in range(8) for ks in range(3)}
        order = [(i, ks) for h_ in range(2) for ks in range(3) for i in range(4 * h_, 4 * h_ + 4)]
        rds = [x for key in order for x in rd[key]]
        sums0 = [m for m in mPV(0, []) ]
        mm = []
        for i, ks in order:
            op, n_ = (MF, 4) if ks < 2 else (MF16, 2)
            mm.append([W(lg=f"V{i | 1}{ks}"), f"{op} {oacc[i]}, {Vf.sub(i * 10 + ks * 4, n_)}, {P[0].sub(ks * 4, n_)}, {'0' if ks == 0 else oacc[i]}"])
        A(rds[:8])
        A(interleave(sums0[:2], sm1[:4], per=2))
        cutv = 18
        A(spread(interleave(spread(sm1[4:cutv], mm[:8] + sums0[2:]), rds[8:28], per=1), w2[:len(w2) // 2]))
        fin = finish(0, [(p, oacc[2 * p], oacc[2 * p + 1]) for p in range(4)], qb)
        per_pair = (len(fin) - 1) // 4
        A(spread(interleave(spread(sm1[cutv:cutv + 14], mm[8:16]), rds[28:], per=1), w2[len(w2) // 2:]))
        A(spread(fin[:1 + 2 * per_pair], mm[16:]))
        stamp("b2")
        A(fin[1 + 2 * per_pair:] + sm1[cutv + 14:])
        A(pv1)
    A(finish(1, [(4, oacc[8], oacc[9])], qb))
    stamp("ost")

    vo = vq
    ob = xa[0]
    wa2 = wa
    A(f"s_mul_i32 s83, {sW}, 5120")
    for j in range(1, 8):
        A(head_of(j, "s3") if j > 1 else [f"s_add_u32 s3, {sNT}, {sBP}", "s_and_b32 s3, s3, 7"])
        A("s_mul_i32 s3, s3, 20480")
        A("s_add_u32 s3, s3, s83")
        A(f"v_add_u32 {vo[j]}, s3, {l16}")
    oslot = xa[1] + xa[2][:2]
    for i in range(4):
        A(f"s_add_u32 s3, {sKQ}, {i}")
        A("s_and_b32 s3, s3, 3")
        A("s_lshl_b32 s3, s3, 10")
        A(f"v_add_u32 {oslot[i]}, s3, {vown}")
    A(f"v_add_u32 {oslot[4]}, 4096, {vown}")
    for k in range(3):
        A(f"v_add_u32 {ob[k]}, {k * 65536}, {l16}")
    for tt in range(2):
        A(f"s_lshl_b32 s3, {sW}, 6")
        A(f"s_add_u32 s3, s3, {32 * tt}")
        A(f"v_xor_b32 {wa2[tt][0]}, s3, {trb}")
        A(f"v_add_u32 {wa2[tt][1]}, 0x10000, {wa2[tt][0]}")
        A(f"v_add_u32 {wa2[tt][2]}, 0x20000, {wa2[tt][0]}")
    wb = [[ka[0], ka[1]], [ka[2], ka[3]]]
    A(f"s_cmp_eq_u32 {sB}, 0")
    A(f"s_cselect_b32 s3, {U[0]}, {U[2]}")
    A(f"s_cselect_b32 s83, {U[2]}, {U[0]}")
    for tt in range(2):
        A(f"v_add_u32 {wb[0][tt]}, s3, {wa2[tt][0]}")
        A(f"v_add_u32 {wb[1][tt]}, s83, {wa2[tt][0]}")
    A(f"s_cmp_eq_u32 {sW}, {sKQ}")
    for i in range(1, 4):
        A(f"s_cselect_b32 {sRECV4[i]}, {sRECV[i]}, {PSIZE}")
    A(f"s_cselect_b32 {sSEND[4]}, {PSIZE}, {sSEND[4]}")
    A(f"s_cselect_b32 {sOWN4}, 0xff, 0")
    A(f"s_mov_b32 {sROW4}, 0x40000")
    A(f"s_cselect_b32 {sROW4}, 0x20000, {sROW4}")
    A(f"s_lshl_b32 {sROW0}, {sKQ}, 15")
    oa = vx[0]
    A(f"v_readfirstlane_b32 {sTAG[0]}, {vtag}")
    for i in range(4):
        A(f"s_mov_b32 {sSEL[i]}, {0x07060500 + i:#x}")
    for i in (3, 2, 1, 0):
        A(f"s_bfe_u32 {sTAG[i]}, {sTAG[0]}, {0x80000 + 8 * i:#x}")
    A(f"v_lshlrev_b32 {oa}, 11, {q}")
    A(f"v_lshl_add_u32 {oa}, {g}, 4, {oa}")

    def wo_reads(j, ub):
        out = []
        for u in range(4):
            for tt in range(2):
                for hf in range(2):
                    rg, off = lds_ref(wa2[tt], ub + u * 8192 + hf * 4096) if j > 1 else (wb[j][tt], u * 8192 + hf * 4096)
                    out.append(LG(f"W{j * 4 + u}", f"ds_read_b64_tr_b16 {Wf.sub(((j * 4 + u) * 2 + tt) * 4 + 2 * hf, 2)}, {rg} offset:{off}", (ub + u * 8192, ub + (u + 1) * 8192)))
        return out

    rest = wstream[P1 + PM + P2:]
    nb = min(NB, 24 - (P1 + PM + P2))
    A(rest[:nb])
    A(W(vm="ost"))
    A(VM("f1", f"buffer_store_dword {vtag}, {vf1}, {FL}, 0 offen sc1"))
    stamp("f1set")
    slots = [4, 1, 2, 3, 0]
    ohome = [U[1], U[4], U[2], U[3], U[0]] if D7 else [U[1], U[0], U[2], U[3], U[4]]
    home7 = U[0] if D7 else U[4]

    def o_dma(p):
        sl = slots[p]
        pre = [f"s_add_u32 s87, {sKQ}, {sl}", "s_and_b32 s87, s87, 3", f"s_lshl_b32 {sSO0}, s87, 10"] if sl < 4 else [f"s_mov_b32 {sSO0}, 4096"]
        return owned(dma(f"o{p}", OR, vo[1:], sSO0, ohome[p], "sc1"), sSO0, pre, f"o{p}")

    done = P1 + PM + P2 + nb
    cut = min(24, max(done, 16 + AHEAD))
    A(wstream[done:cut])
    A(W(vm=["wo0", "wo1"], lg="*"))
    A("s_barrier")
    stamp("b3")
    A(interleave(wstream[cut:], wo_reads(0, U[0]) + wo_reads(1, U[2]), per=3))
    A(W(lg="*"))
    A("s_barrier")
    pf = [bB.sub(i * 4, 4) for i in range(10)]
    prd = [LG(f"P{n_}", f"ds_read_b128 {pf[n_ % 10]}, {oslot[n_ % 5]} offset:{(n_ // 5) * 5120}", (U[3], U[3] + 20480)) for n_ in range(20)]
    A(prd[:9])
    w45 = wo_dma(4, U[0]) + wo_dma(5, U[2])
    pre_seq = []
    for n_ in range(20):
        u, sl = divmod(n_, 5)
        grp = [W(lg=f"P{n_}"), f"{MF} {acc[0][sl]}, {Wf.sub(u * 8, 4)}, {pf[n_ % 10]}, {'0' if u == 0 else acc[0][sl]}"]
        if n_ + 9 < 20:
            grp.append(prd[n_ + 9])
        grp.append(f"{MF} {acc[1][sl]}, {Wf.sub(u * 8 + 4, 4)}, {pf[n_ % 10]}, {'0' if u == 0 else acc[1][sl]}")
        pre_seq.append(grp)
    A(spread(pre_seq, w45[:N45]))
    A(W(vm=["wo2", "wo3"], lg="*"))
    A("s_barrier")
    stamp("b4")
    pollop = VM("poll", f"buffer_load_dword {vpf}, {vp1}, {FL}, 0 offen sc1")
    w6 = wo_dma(6, U[3])
    A(interleave(w45[N45:] + [pollop] + w6[:PW6], wo_reads(2, U[1]) + wo_reads(3, U[4]), per=4))
    A(W(vm=["wo4", "wo5", "poll"], lg="*"))
    A("s_barrier")
    A.label("L_p1")
    A(f"v_cmp_ne_u32 vcc, {vtag}, {vpf}")
    A("s_nop 1")
    A("s_cbranch_vccnz L_p1_slow")
    A.label("L_p1_done")
    C.label("L_p1_slow")
    C(pollop.text)
    C("s_waitcnt vmcnt(0)")
    bounded("L_p1", "L_p1_done")
    stamp("f1ok")
    if STAMPS:
        A(f"v_writelane_b32 {vstamp}, {sSPIN}, 60")
    nxt, late = (o_dma(1), wo_dma(7, home7)) if D7 else (wo_dma(7, home7), o_dma(1))
    A(interleave(w6[PW6:] + o_dma(0), wo_reads(4, U[0]) + wo_reads(5, U[2]), per=3))
    A(nxt[:AHEAD])
    A(W(vm="wo6", lg="*"))
    A("s_barrier")
    stamp("b5")
    A(interleave(nxt[AHEAD:], wo_reads(6, U[3]), per=4))

    quads = [sr.sub(i * 4, 4) for i in range(10)] + [bA.sub(i * 4, 4) for i in range(2)]
    gA = {i: quads[2 * (i - 1):2 * i] for i in range(1, 4)}
    gB = {i: quads[6 + 2 * (i - 1):6 + 2 * i] for i in range(1, 4)}
    xacc = {0: tmpr[0], 1: tmpr[1]}

    groups = [[(1, 0)]] if G2AT else [[(2, 0), (1, 0)]]
    early = [(1, 1), (2, 1), (3, 1), (3, 0)] + ([(2, 0)] if G2AT else [])
    vcan = vx[1]
    vcan_g = vx[2:5]
    for gi, keys in enumerate(groups):
        A(f"v_mov_b32 {vcan_g[gi]}, {PSIZE}")
        for i, four in keys:
            A(f"s_add_u32 s3, {sRECV4[i] if four else sRECV[i]}, {4080 if four else 2032}")
            A(f"v_writelane_b32 {vcan_g[gi]}, s3, {i - 1 + 4 * four}")
    vepf = ka[4]
    A("s_and_b32 s3, s2, 31")
    A(f"s_or_b32 s3, s3, {sW}")
    A("s_cmp_eq_u32 s3, 0")
    A(f"s_cselect_b32 {sEPW}, 0, 0x100000")
    A(f"v_and_b32 {vepf}, 31, {lane}")
    A(f"v_add_u32 {vepf}, s2, {vepf}")
    A(f"v_lshlrev_b32 {vepf}, 7, {vepf}")
    A(f"v_add_u32 {vepf}, {sEPW}, {vepf}")
    A(f"v_lshl_add_u32 {vep}, {lane}, 20, {vep}")
    A(f"v_add_u32 {vep}, {sEPW}, {vep}")

    def canary(tag, gi, vcan=vcan):
        vcan_a = vcan_g[gi]
        if CAN == "atomic":
            return [f"v_mov_b32 {vcan}, 0", VM(tag, f"buffer_atomic_add {vcan}, {vcan_a}, {PT}, 0 offen sc0 sc1")]
        return [VM(tag, f"buffer_load_dword {vcan}, {vcan_a}, {PT}, 0 offen sc1")]

    def judge(vcan=vcan):
        return [f"v_and_b32 {vcan}, 0xff, {vcan}", f"v_cmp_eq_u32 vcc, {sTAG[0]}, {vcan}", "s_nop 3"]

    def gather(i, four, gated=False):
        so, bufs = (sRECV4[i], gB[i]) if four else (sRECV[i], gA[i])
        return [VM(f"g{i}{int(four)}", f"buffer_load_dwordx4 {bufs[tt]}, {l16}, {PT}, {so} offen offset:{(tt + 2 * four) * 1024} sc1") for tt in range(2)]

    def verify(i, four):
        x = xacc[int(four)]
        out = [W(vm=f"g{i}{int(four)}")]
        for qd in (gB if four else gA)[i]:
            out += [f"v_xor_b32 {qd[e]}, {sTAG[e]}, {qd[e]}" for e in range(4)]
            out += [f"v_or3_b32 {x}, {x}, {qd[e]}, {qd[e + 1]}" for e in (0, 2)]
        return out

    def send(sl):
        out = []
        for tt in range(2):
            d = bA.sub(12 + 4 * tt, 4) if sl == 4 else acc[tt][sl]
            out.append([f"v_perm_b32 {d[e]}, {acc[tt][sl][e]}, {vtag}, {sSEL[e]}" for e in range(4)]
                       + [VM("snd", f"buffer_store_dwordx4 {d}, {l16}, {PT}, {sSEND[sl]} offen offset:{(tt + (2 if sl == 4 else 0)) * 1024} sc1")])
        return out

    frag = [bB.sub(i * 4, 4) for i in range(DEPTH)]
    PL = 28
    NI = 5 * PL
    after = {k: [] for k in range(NI)}

    def place(items, lo, hi):
        for n_, it in enumerate(items):
            after[lo + (n_ * (hi - lo)) // len(items)].append(it)

    place(late, 0, 9)
    after[W7AT].append([W(vm="wo7"), "s_barrier"])
    place(wo_reads(7, home7), W7AT + 1, W7AT + 8)
    if D7:
        sched = [(0, j) for j in range(6)] + [(1, j) for j in range(6)] + [(0, 6), (1, 6)]
    else:
        sched = [(p, j) for p in range(2) for j in range(7)]
    sched += [(p, j) for p in range(2, 5) for j in range(7)]
    items = [(p, j * 4 + u) for p, j in sched for u in range(4)]
    first_of = {p: min(k for k, it in enumerate(items) if it[0] == p) for p in range(5)}
    last_of = {p: max(k for k, it in enumerate(items) if it[0] == p) for p in range(5)}
    place(o_dma(2), O2[0], O2[1])
    place(o_dma(3), O3[0], O3[1])
    place(o_dma(4), O4[0], O4[1])
    for p in range(4):
        gap = SGAP if p < 3 else SGAPL
        for tt, grp in enumerate(send(slots[p])):
            at = (S0AT if p == 0 and S0AT else last_of[p] + 3) + tt * gap
            after[at].append(grp[:2])
            after[at + 1].append(grp[2:4])
            after[at + 2].append(grp[4:])
            if p == 3 and tt == 1:
                after[at + 2].append(lambda: stamp("slast"))
    place([x for i in (1, 2, 3) for x in gather(i, 1)], G4AT, G4AT + 6)
    place(gather(3, 0), G1AT, G1AT + 2)
    if G2AT:
        place(gather(2, 0), G2AT, G2AT + 2)
    after[C2AT].append(canary("c2", 0))
    if C3AT:
        after[C3AT].append(canary("c3", 0, vx[3]))
    epq = bA.sub(8, 4)
    after[EPAT].append(VM("epf", f"buffer_load_dwordx4 {epq}, {vepf}, {FL}, 0 offen sc1"))
    after[EPAT + 26].append([W(vm="epf")] + [f"v_xor_b32 {epq[e]}, {vtag}, {epq[e]}" for e in range(4)])
    after[EPAT + 27].append([f"v_or_b32 {epq[0]}, {epq[0]}, {epq[1]}", f"v_or3_b32 {epq[0]}, {epq[0]}, {epq[2]}, {epq[3]}", f"v_cmp_ne_u32 vcc, 0, {epq[0]}"])
    after[EPAT + 28].append(["s_cmp_eq_u64 vcc, 0", f"s_cselect_b32 {sEPD}, 0, 0x100000"])
    after[EPAT + 29].append(VM("eps", f"buffer_store_dword {vnew}, {vep}, {FL}, {sEPD} offen sc1"))

    def rd2(k):
        p, kk = items[k]
        rg, off = lds_ref(ob, ohome[p] + kk * 1024)
        if k == first_of[p]:
            A(W(vm=f"o{p}", lg="*" if p == 0 else (["W31"] if p == (2 if D7 else 1) else ())))
            A("s_barrier")
            stamp(f"p{p}")
        A(LG(f"F{k}", f"ds_read_b128 {frag[k % DEPTH]}, {rg} offset:{off}", (ohome[p] + kk * 1024, ohome[p] + kk * 1024 + 1024)))

    for k in range(DEPTH - 1):
        rd2(k)
    for k in range(NI):
        p, kk = items[k]
        kk += 4
        sl = slots[p]
        A(W(lg=[f"F{k}", f"W{kk}"]))
        A(f"{MF} {acc[0][sl]}, {Wf.sub(kk * 8, 4)}, {frag[k % DEPTH]}, {acc[0][sl]}")
        if k + DEPTH - 1 < NI:
            rd2(k + DEPTH - 1)
        A(f"{MF} {acc[1][sl]}, {Wf.sub(kk * 8 + 4, 4)}, {frag[k % DEPTH]}, {acc[1][sl]}")
        A(after[k])
    stamp("pdone")

    def need_mask(X_, gi):
        mask = sum(1 << (i - 1 + 4 * four) for i, four in groups[gi])
        X_(f"s_or_b32 s83, {sOWN4}, 15")
        X_(f"s_and_b32 s83, s83, {mask}")

    def cold_await(lab, gi):
        need_mask(C, gi)
        C.label(lab + "_w")
        C(txt(canary("cw", gi)))
        C("s_waitcnt vmcnt(0)")
        C(judge())
        C("s_and_b32 s3, vcc_lo, s83")
        C("s_cmp_eq_u32 s3, s83")
        C(f"s_cbranch_scc1 {lab}_go")
        bounded(lab + "_w", lab + "_go")

    def settle(lab, keys, gi):
        A.label(lab)
        four_too = any(f for _, f in keys)
        A([f"v_mov_b32 {xacc[0]}, 0", f"v_mov_b32 {xacc[1]}, 0"][:2 if four_too else 1])
        for i, four in keys:
            A(verify(i, four))
        A(f"v_and_b32 {xacc[0]}, 0xff, {xacc[0]}")
        if four_too:
            A(f"v_and_or_b32 {xacc[0]}, {xacc[1]}, {sOWN4}, {xacc[0]}")
        A(f"v_cmp_ne_u32 vcc, 0, {xacc[0]}")
        A("s_nop 1")
        A(f"s_cbranch_vccnz {lab}_slow")
        A.label(lab + "_done")
        C.label(lab + "_slow")
        if gi is not None:
            cold_await(lab, gi)
            C.label(lab + "_go")
        C(txt([gather(i, four) for i, four in keys]))
        C("s_waitcnt vmcnt(0)")
        bounded(lab, lab + "_done")

    def add_in(t_, quads2):
        for tt in range(2):
            for hf in range(2):
                d = acc[tt][t_].sub(2 * hf, 2)
                A(f"v_pk_add_f32 {d}, {d}, {quads2[tt].sub(2 * hf, 2)}")

    def emit_rows(t_, soff, stg):
        for tt in range(2):
            for hf in range(2):
                A(f"v_cvt_pk_bf16_f32 {stg[tt * 2 + hf]}, {acc[tt][t_][2 * hf]}, {acc[tt][t_][2 * hf + 1]}")
        for hf in range(2):
            A(f"v_permlane32_swap_b32 {stg[hf]}, {stg[2 + hf]}")
        for hf in range(2):
            A(f"v_permlane16_swap_b32 {stg[hf]}, {stg[2 + hf]}")
        A(VM("out", f"buffer_store_dwordx4 {stg}, {oa}, {OUT}, {soff} offen {OUTMOD}".rstrip()))

    need_mask(A, 0)
    if "ack" in ONLY:
        A(W(vm="snd"))
        stamp("ack")
    A(W(vm="c2"))
    stamp("c2r")
    A(judge())
    A("s_and_b32 s3, vcc_lo, s83")
    A("s_cmp_eq_u32 s3, s83")
    A("s_cbranch_scc0 L_a_slow")
    A.label("L_a_go")
    C.label("L_a_slow")
    if C3AT:
        for n_, (cur, nxt) in enumerate(((vx[3], vcan), (vcan, vx[3]))):
            C.label(f"L_a_p{n_}")
            C(txt(canary("cw", 0, nxt)))
            C("s_waitcnt vmcnt(1)")
            C(judge(cur))
            C("s_and_b32 s3, vcc_lo, s83")
            C("s_cmp_eq_u32 s3, s83")
            C("s_cbranch_scc1 L_a_go")
        bounded("L_a_p0", "L_a_go")
    else:
        cold_await("L_a", 0)
    stamp("cok")
    if STAMPS:
        A(f"v_writelane_b32 {vstamp}, {sSPIN}, 61")
    A([gather(i, f) for i, f in groups[0]])
    settle("L_c0", early, None)
    if STAMPS:
        A(f"v_writelane_b32 {vstamp}, {sSPIN}, 62")
    for i in (3, 2, 1):
        add_in(4, gB[i])
    add_in(0, gA[3])
    if G2AT:
        add_in(0, gA[2])
    emit_rows(4, sROW4, qb.sub(4, 4))
    settle("L_c1", groups[0], None)
    if not G2AT:
        add_in(0, gA[2])
    stamp("gok")
    if STAMPS:
        A(f"v_writelane_b32 {vstamp}, {sSPIN}, 63")
    add_in(0, gA[1])
    emit_rows(0, sROW0, qb.sub(0, 4))
    A(f"s_andn2_b32 s3, {sEPD}, {sEPW}")
    A("s_cmp_lg_u32 s3, 0")
    A("s_cbranch_scc1 L_ci_w")
    A.label("L_noep")
    C.label("L_ci_w")
    for e in range(4):
        C(f"buffer_load_dword {quads[0][e]}, {vepf}, {FL}, 0 offen offset:{4 * e} sc1")
    C("s_waitcnt vmcnt(0)")
    for e in range(4):
        C(f"v_xor_b32 {quads[0][e]}, {vtag}, {quads[0][e]}")
    C(f"v_or_b32 {t1}, {quads[0][0]}, {quads[0][1]}")
    C(f"v_or3_b32 {t1}, {t1}, {quads[0][2]}, {quads[0][3]}")
    C(f"v_cmp_ne_u32 vcc, 0, {t1}")
    C("s_nop 1")
    C("s_cbranch_vccz L_ci_done")
    bounded("L_ci_w", "L_ci_done")
    C.label("L_ci_done")
    C(f"buffer_store_dword {vnew}, {vep}, {FL}, 0 offen sc1")
    C("s_branch L_noep")
    if STAMPS:
        A("s_waitcnt vmcnt(0)")
        stamp("end")
        A(W(lg="*"))
        harvest()
        A("s_lshl_b32 s3, s2, 8")
        A(f"s_add_u32 s3, s3, {STAMP_OFF}")
        A(srd(KS, 18, "s3", 256))
        A(f"v_lshlrev_b32 {t0}, 2, v0")
        A(f"buffer_store_dword {vstamp}, {t0}, {KS}, 0 offen")
    A.label("L_end")
    A("s_endpgm")
    A.lines += C.lines
    A.label("L_last")
    A("s_endpgm")
    if NONOP:
        print("dropped", drop_m0_nops(A.lines), "m0 nops")
    n = autopad(A.lines)
    print("autopad inserted", n, "nops; vgpr", V.hi, "agpr", AG.hi)
    check(A.lines, NAME)
    for pr in A.lds_problems[:5]:
        print("LDS ORDER:", pr)
    print("lds order problems:", len(A.lds_problems))
    return A.text(), descriptor(NAME, V.hi, AG.hi, 100), names


ABOUT = """;
; Phase 1, workgroup = (batch b, head h): Q^T = wq_h^T x_b^T with x and wq streamed through a 3-slot LDS ring
;   S^T = K Q^T, softmax with the true row maximum, O^T = V^T P^T; O is written to d_ws in MFMA fragment order.
"""


def main():
    code, desc, names = build()
    out = HEADER
    out += "; @launch grid=(256,1,1) block=(256,1,1) lds=163840\n"
    if names:
        out += "; stamps: " + ",".join(names) + "\n"
    out += ABOUT
    out += '.amdgcn_target "amdgcn-amd-amdhsa--gfx950"\n.text\n' + code + desc
    open(sys.argv[1], "w").write(out)


main()
```
